```python
import torch

def _softmax(x, axis=-1):
    return torch.softmax(x, dim=axis)
def _gelu(x):
    return torch.nn.functional.gelu(x, approximate="tanh")
def _silu(x):
    return torch.nn.functional.silu(x)
def _sigmoid(x):
    return torch.sigmoid(x)
def _layernorm(x, axis=-1, eps=1e-5):
    m = x.mean(dim=axis, keepdim=True)
    v = x.var(dim=axis, keepdim=True, unbiased=False)
    return (x - m) / torch.sqrt(v + eps)
def _scatter_add(tgt, idx, src, axis=0):
    return tgt.clone().index_add_(axis, idx, src)
def _segment_sum(src, seg, n):
    out = torch.zeros((n,) + src.shape[1:], dtype=src.dtype)
    return out.index_add_(0, seg, src)
def _pad(x, pw):
    flat = tuple(v for pair in reversed(pw) for v in pair)
    return torch.nn.functional.pad(x, flat)

kernel_name = 'parallel_sum__sliding_local_dilated__dense_activation_gelu__prompt'

def setup_inputs():

    _w = (lambda a: (lambda t: t.to(torch.bfloat16) if t.is_floating_point() else t)(torch.as_tensor(a)))
    def _A_setup():
        B, S, D = 1, 2048, 512
        return {
            "x": _w((lambda *s: torch.randn(*s, dtype=torch.bfloat16) * 0.05)(B, S, D)),
            "wqkv": _w((lambda *s: torch.randn(*s, dtype=torch.bfloat16) * 0.05)(D, 3 * D)),
            "wo": _w((lambda *s: torch.randn(*s, dtype=torch.bfloat16) * 0.05)(D, D)),
        }
    _A_in = _A_setup()

    def _B_setup():
        B, S, D, F = 1, 2048, 512, 1376
        return {
            "x": _w((lambda *s: torch.randn(*s, dtype=torch.bfloat16) * 0.05)(B, S, D)),
            "w1": _w((lambda *s: torch.randn(*s, dtype=torch.bfloat16) * 0.8)(D, F) * (D ** -0.5)),
            "b1": _w((lambda *s: torch.randn(*s, dtype=torch.bfloat16) * 0.8)(F) * 0.01),
            "w2": _w((lambda *s: torch.randn(*s, dtype=torch.bfloat16) * 0.8)(F, D) * (F ** -0.5)),
            "b2": _w((lambda *s: torch.randn(*s, dtype=torch.bfloat16) * 0.8)(D) * 0.01),
        }
    _B_in = _B_setup()

    return {
        "A_x": _A_in["x"],
        "A_wqkv": _A_in["wqkv"],
        "A_wo": _A_in["wo"],
        "B_x": _B_in["x"],
        "B_w1": _B_in["w1"],
        "B_b1": _B_in["b1"],
        "B_w2": _B_in["w2"],
        "B_b2": _B_in["b2"],
    }

def reference(A_x, A_wqkv, A_wo, B_x, B_w1, B_b1, B_w2, B_b2):
    def _A_ref(x, wqkv, wo):
        B, S, D = x.shape
        H = 32; Dh = D // H
        W, dil = 8, 2
        qkv = (lambda x, *d: x.permute(*d))((x @ wqkv).reshape(B, S, 3, H, Dh), 2, 0, 3, 1, 4)
        q, k, v = qkv[0], qkv[1], qkv[2]
        scale = Dh ** -0.5
        pos = torch.arange(S)
        off = torch.arange(W) * dil
        idx = pos[:, None] - off[None, :]
        mask = idx >= 0
        idx_c = torch.where(mask, idx, 0).reshape(-1)
        kg = k[:, :, idx_c, :].reshape(B, H, S, W, Dh)
        vg = v[:, :, idx_c, :].reshape(B, H, S, W, Dh)
        logits = torch.einsum("bhsd,bhswd->bhsw", q, kg) * scale
        logits = torch.where(mask[None, None, :, :], logits, -1e9)
        attn = _softmax(logits, axis=-1)
        o = torch.einsum("bhsw,bhswd->bhsd", attn, vg)
        return (lambda x, *d: x.permute(*d))(o, 0, 2, 1, 3).reshape(B, S, D) @ wo

    def _B_ref(x, w1, b1, w2, b2):
        h = torch.einsum("bsd,df->bsf", x, w1) + b1
        h = _gelu(h)
        return torch.einsum("bsf,fd->bsd", h, w2) + b2

    x = A_x
    xn = _layernorm(x, axis=-1)
    return x + _A_ref(xn, A_wqkv, A_wo) + _B_ref(xn, B_w1, B_b1, B_w2, B_b2)
```

```python
import re

TRANS = ("v_exp_f32", "v_log_f32", "v_rcp_f32", "v_rsq_f32", "v_sqrt_f32", "v_sin_f32", "v_cos_f32", "v_rcp_iflag_f32")
NODST_S = ("s_cmp", "s_waitcnt", "s_barrier", "s_nop", "s_branch", "s_cbranch", "s_setprio", "s_sleep", "s_endpgm",
           "s_bitcmp", "s_sethalt", "s_setreg")

def split_ops(s):
    out, depth, cur = [], 0, ""
    for ch in s:
        if ch == "[": depth += 1
        if ch == "]": depth -= 1
        if ch == "," and depth == 0:
            out.append(cur.strip()); cur = ""
        else:
            cur += ch
    if cur.strip(): out.append(cur.strip())
    return out

REG = re.compile(r"^-?\|?(?:abs\()?([vas])(?:(\d+)|\[(\d+):(\d+)\])\)?\|?$")
def regs_of(tok):
    tok = tok.strip()
    if tok in ("vcc",): return {("s", 106), ("s", 107)}
    if tok == "vcc_lo": return {("s", 106)}
    if tok == "vcc_hi": return {("s", 107)}
    if tok == "exec": return {("x", 0)}
    if tok == "m0": return {("m", 0)}
    m = REG.match(tok)
    if not m: return set()
    k = m.group(1)
    if m.group(2) is not None: return {(k, int(m.group(2)))}
    return {(k, i) for i in range(int(m.group(3)), int(m.group(4)) + 1)}

class Ins:
    def __init__(self, text, tag=None):
        self.text = text; self.tag = tag
        t = text.split(";")[0].strip()
        self.label = t.endswith(":")
        self.dst = set(); self.src = set(); self.srcC = set(); self.srcAB = set()
        self.kind = "other"; self.op = ""; self.dpp = False; self.wide_store = set()
        if self.label or not t or t.startswith("."):
            self.kind = "label" if self.label else "dir"; return
        parts = t.split(None, 1)
        op = parts[0]; self.op = op
        rest = parts[1] if len(parts) > 1 else ""
        ops = split_ops(rest)
        mods = ""
        if ops:
            last = ops[-1].split(None, 1)
            if len(last) > 1 and not last[0].endswith("(") :
                ops[-1] = last[0]; mods = last[1]
        self.mods = mods
        R = [regs_of(o) for o in ops]
        allr = lambda lst: set().union(*lst) if lst else set()
        if op.startswith("v_mfma"):
            self.kind = "mfma"; self.dst = R[0]; self.srcAB = R[1] | R[2]; self.srcC = R[3]
            self.src = self.srcAB | self.srcC
            self.passes = 8 if "32x32" in op else 4
            self.dtok = ops[0]; self.ctok = ops[3]
        elif op.startswith("v_"):
            self.kind = "valu"
            self.dpp = ("_dpp" in op) or ("row_" in mods) or ("quad_perm" in mods)
            if op.startswith("v_permlane") and "swap" in op:
                self.dst = R[0] | R[1]; self.src = R[0] | R[1]
            elif op.startswith("v_cmp"):
                self.dst = R[0]; self.src = allr(R[1:])
            elif op.startswith("v_nop"):
                pass
            else:
                self.dst = R[0]; self.src = allr(R[1:])
                if op.startswith(("v_fmac", "v_pk_fmac", "v_dot2c", "v_writelane")) or self.dpp: self.src |= R[0]
                if op.startswith(("v_add_co", "v_addc_co", "v_sub_co", "v_subb_co")):
                    self.dst |= R[1]; self.src = allr(R[2:])
            self.trans = op.replace("_e32", "").replace("_e64", "") in TRANS
        elif op.startswith("ds_"):
            self.kind = "ds"
            if op.startswith(("ds_read", "ds_bpermute", "ds_permute", "ds_swizzle")):
                self.dst = R[0]; self.src = allr(R[1:])
            else:
                self.src = allr(R)
        elif op.startswith(("buffer_", "global_")):
            self.kind = "vm"
            lds = bool(re.search(r"\blds\b", mods)) or "_lds_" in op
            self.lds = lds
            if "load" in op and not lds:
                self.dst = R[0]; self.src = allr(R[1:])
            elif lds:
                self.src = allr(R) | {("m", 0)}
            else:
                self.src = allr(R)
                if "atomic" in op and "sc0" in mods:
                    self.dst = R[0] if op.startswith("buffer") else R[0]
                if "x3" in op or "x4" in op:
                    self.wide_store = R[0] if op.startswith("buffer") else R[1]
        elif op.startswith(("s_load", "s_memtime", "s_memrealtime", "s_buffer_load")):
            self.kind = "smem"; self.dst = R[0]; self.src = allr(R[1:])
        elif op.startswith("s_"):
            self.kind = "salu"
            if op.startswith(NODST_S):
                self.src = allr(R)
            else:
                self.dst = R[0]; self.src = allr(R[1:])
                if op.startswith(("s_cmov", "s_addk", "s_mulk")): self.src |= R[0]
                if "saveexec" in op: self.dst |= {("x", 0)}
        else:
            raise ValueError("unknown instr " + text)

    def states(self):
        if self.kind in ("label", "dir"): return 0
        if self.op == "s_nop": return int(self.text.split()[1], 0) + 1
        return 1

def only(regs, kinds): return {r for r in regs if r[0] in kinds}

class Emitter:
    def __init__(self):
        self.out = []
        self.vm = []
        self.lg = []
        self.nops = 0
    def _wait(self, vm=None, lg=None):
        s = []
        if vm is not None:
            vm = min(vm, 63)
            if vm < len(self.vm):
                s.append(f"vmcnt({vm})"); self.vm = self.vm[len(self.vm) - vm:] if vm else []
        if lg is not None:
            if any(x[2] for x in self.lg): lg = 0
            lg = min(lg, 15)
            if lg < len(self.lg):
                s.append(f"lgkmcnt({lg})"); self.lg = self.lg[len(self.lg) - lg:] if lg else []
        if s: self._raw(Ins("s_waitcnt " + " ".join(s)))
    def wait(self, vm_tag=None, lg_tag=None, vm=None, lg=None):
        if vm_tag is not None:
            idx = [i for i, x in enumerate(self.vm) if x[1] == vm_tag]
            if idx:
                n = len(self.vm) - 1 - idx[-1]; vm = n if vm is None else min(vm, n)
        if lg_tag is not None:
            idx = [i for i, x in enumerate(self.lg) if x[1] == lg_tag]
            if idx:
                n = len(self.lg) - 1 - idx[-1]; lg = n if lg is None else min(lg, n)
        self._wait(vm, lg)
    def _auto(self, ins):
        touch = ins.src | ins.dst
        vm = lg = None
        for i, x in enumerate(self.vm):
            if x[0] & touch: vm = len(self.vm) - 1 - i
        for i, x in enumerate(self.lg):
            if x[0] & touch: lg = len(self.lg) - 1 - i
        if vm is not None or lg is not None: self._wait(vm, lg)
    def _need(self, ins):
        need = 0; dist = 0
        for p in reversed(self.out):
            if dist >= 20: break
            if p.kind == "flush": break
            r = self._rule(p, ins) if ins is not None else self._worst(p)
            if r > dist: need = max(need, r - dist)
            dist += p.states()
        return need
    @staticmethod
    def _worst(p):
        if p.kind == "mfma": return 8 if p.passes == 4 else 12
        if p.kind == "valu": return 5 if only(p.dst, "s") else 2
        if p.kind == "salu" and ("m", 0) in p.dst: return 1
        if p.kind == "vm" and p.wide_store: return 2
        return 0
    @staticmethod
    def _rule(p, c):
        r = 0
        if p.kind == "valu":
            pv = only(p.dst, "va"); ps = only(p.dst, "s")
            if c.kind == "mfma" and pv & c.src: r = max(r, 2)
            if c.kind == "valu":
                if c.dpp and pv & c.src: r = max(r, 2)
                if c.op.startswith("v_permlane") and pv & c.src: r = max(r, 2)
                if c.op.startswith(("v_readlane", "v_readfirstlane")) and pv & c.src: r = max(r, 1)
                if p.trans and not c.trans and pv & c.src: r = max(r, 1)
                if p.trans and c.trans and pv & c.src: r = max(r, 1)
                if ps & c.src: r = max(r, 4 if c.op.startswith(("v_readlane", "v_writelane")) else 2)
                if p.op.startswith("v_dot") and pv & (c.src | c.dst): r = max(r, 3)
            if c.kind in ("vm", "ds") and ps & c.src: r = max(r, 5)
            if p.op.startswith("v_dot") and c.kind in ("vm", "ds", "mfma") and pv & (c.src | c.dst): r = max(r, 3)
            if ("x", 0) in p.dst: r = max(r, 5)
        elif p.kind == "mfma":
            n4 = p.passes == 4
            if c.kind == "mfma":
                if p.dst & c.srcAB: r = max(r, 8 if n4 else 12)
                if p.dst & c.srcC:
                    if not (p.dtok == c.ctok and p.passes == c.passes): r = max(r, 6 if n4 else 10)
                elif p.dst & c.dst: r = max(r, 8 if n4 else 12)
            elif c.kind in ("valu", "vm", "ds"):
                if p.dst & (c.src | c.dst): r = max(r, 8 if n4 else 12)
                if c.kind == "valu" and p.srcC & c.dst: r = max(r, 3 if n4 else 7)
        elif p.kind == "salu":
            if ("m", 0) in p.dst and c.kind == "vm" and c.lds: r = max(r, 1)
        elif p.kind == "vm":
            if p.wide_store & c.dst: r = max(r, 2)
        return r
    def _raw(self, ins):
        self.out.append(ins)
    def _pad(self, n):
        while n > 0:
            k = min(n, 16); self._raw(Ins(f"s_nop {k - 1}")); n -= k; self.nops += k
    def flush(self):
        self._pad(self._need(None))
    def __call__(self, text, tag=None):
        if isinstance(text, (list, tuple)):
            for t in text:
                if isinstance(t, tuple): self(*t)
                elif callable(t): t(self)
                else: self(t)
            return
        if callable(text):
            text(self); return
        ins = Ins(text, tag)
        if ins.kind in ("label", "dir"):
            self._raw(ins); return
        self._auto(ins)
        self._pad(self._need(ins))
        self._raw(ins)
        if ins.kind == "vm": self.vm.append((set(ins.dst), tag))
        elif ins.kind == "ds": self.lg.append((set(ins.dst), tag, False))
        elif ins.kind == "smem": self.lg.append((set(ins.dst), tag, True))
    def save(self): return (list(self.vm), list(self.lg))
    def restore(self, st):
        self.vm, self.lg = list(st[0]), list(st[1])
    def text(self):
        return "\n".join(("" if i.kind in ("label", "dir") else "  ") + i.text for i in self.out) + "\n"

def weave(main, side, start=0, per=2, end=None):
    out = []; k = 0; acc = 0.0
    for i, m in enumerate(main):
        out.append(m)
        if i >= start and (end is None or i < end):
            acc += per
            while acc >= 1 - 1e-9 and k < len(side):
                out.append(side[k]); k += 1; acc -= 1
    out.extend(side[k:])
    return out
```

```python
import sys, math, struct, argparse
sys.path.insert(0, "gen")
from asm import *

NAME = "parallel_sum__sliding_local_dilated__dense_activation_gelu__prompt"
STAGE = 43008
XH = 16384
WOFF = 18432
W2REG = 36864
STAT = 147456
TILEB = 59 * 1024
BIG = 0x40000000
NEG = 0xF149F2CA
def f2u(x): return struct.unpack("<I", struct.pack("<f", x))[0]
LOG2E = 1.4426950408889634
C_SM = 0.25 * LOG2E
G0 = -2.0 * math.sqrt(2.0 / math.pi) * LOG2E
G1 = G0 * 0.044715

def vr(b, n=1): return f"v{b}" if n == 1 else f"v[{b}:{b+n-1}]"
def ar(b, n=1): return f"a{b}" if n == 1 else f"a[{b}:{b+n-1}]"
def sr(b, n=1): return f"s{b}" if n == 1 else f"s[{b}:{b+n-1}]"

S_W, S_MT, S_N = 26, 27, 3
SX, SW, SH, SB, SWA, SWB, SO, SD = 28, 32, 36, 40, 44, 48, 52, 84
S_KB, S_STR64, S_SEGSTEP, S_XBASE, S_KHBASE, S_KX, S_KH, S_KW = 56, 57, 58, 59, 60, 61, 62, 63
S_MX, S_MW, S_MH = 66, 67, 68
S_T = 69
S_M1, S_M2, S_M3, S_MD = 70, 72, 74, 76
S_SEG = 78
S_C = 82
S_STAMP = 88
def ACC(seg, j): return 4 + (seg * 9 + j) * 4
def ST(i): return 112 + 4 * i
ONES = 132
VX, VH_, VW = 136, 140, 141
VXA, VXS, VWA = 143, 147, 151
VHS = 153
RM = 154
T0 = 172
def XF(b, j): return ar(56 * b + 4 * j, 4)
def XSF(b, i): return ar(56 * b + 36 + 4 * i, 4)
def WF(b, seg): return 56 * b + 44 + 4 * seg

class Cfg:
    fused = False
    rot = 0
    stamps = False

def stamp(e, cfg, i):
    if cfg.stamps: e(f"s_memrealtime {sr(S_STAMP + 2 * i, 2)}")

def write_stamps(e, cfg, n, off):
    if not cfg.stamps: return
    e.wait(vm=0, lg=0)
    e(f"s_add_u32 s4, s24, {off}"); e("s_addc_u32 s5, s25, 0")
    e("s_mov_b32 s6, 0x10000"); e("s_mov_b32 s7, 0x20000")
    e(f"s_mul_i32 s8, s2, {n * 8}")
    e("v_lshlrev_b32 v1, 20, v0")
    for i in range(n):
        e(f"v_mov_b32 v2, s{S_STAMP + 2 * i}"); e(f"v_mov_b32 v3, s{S_STAMP + 2 * i + 1}")
        e(f"buffer_store_dwordx2 v[2:3], v1, s[4:7], s8 offen offset:{8 * i}")
        e.wait(vm=0)

def srd(e, d, lo, hi, nrec):
    e(f"s_mov_b32 s{d}, s{lo}"); e(f"s_mov_b32 s{d+1}, s{hi}")
    e(f"s_mov_b32 s{d+2}, {nrec}"); e(f"s_mov_b32 s{d+3}, 0x20000")

def ldsaddr(base_reg_pair, off):
    return (base_reg_pair[0], off) if off <= 65535 else (base_reg_pair[1], off - 65536)

def dma_stage(slot):
    sb = slot * STAGE
    tag = None
    L = []
    L.append(f"s_lshl_b32 s{S_T}, s{S_KB}, 7")
    L.append(f"s_add_u32 s{S_KX}, s{S_T}, s{S_XBASE}")
    L.append(f"s_add_u32 m0, s{S_MX}, {sb}")
    L.append(f"s_mul_i32 s{S_KW}, s{S_KB}, s{S_STR64}")
    for i in range(4):
        L.append(f"buffer_load_dwordx4 v{VX+i}, {sr(SX,4)}, s{S_KX} offen offset:{1024*i} lds")
    L.append(f"s_add_u32 m0, s{S_MW}, {sb}")
    L.append(f"s_add_u32 s{S_KW+1}, s{S_KW}, s{S_SEGSTEP}")
    L.append(f"buffer_load_dwordx4 v{VW}, {sr(SW,4)}, s{S_KW} offen lds")
    L.append(f"buffer_load_dwordx4 v{VW+1}, {sr(SW,4)}, s{S_KW} offen offset:1024 lds")
    L.append(f"s_add_u32 m0, s{S_MW}, {sb + 8192}")
    L.append(f"s_add_u32 s{S_KW+2}, s{S_KW+1}, s{S_SEGSTEP}")
    L.append(f"buffer_load_dwordx4 v{VW}, {sr(SW,4)}, s{S_KW+1} offen lds")
    L.append(f"buffer_load_dwordx4 v{VW+1}, {sr(SW,4)}, s{S_KW+1} offen offset:1024 lds")
    L.append(f"s_add_u32 m0, s{S_MW}, {sb + 16384}")
    L.append(f"s_add_u32 s{S_KH}, s{S_T}, s{S_KHBASE}")
    L.append(f"buffer_load_dwordx4 v{VW}, {sr(SW,4)}, s{S_KW+2} offen lds")
    L.append(f"buffer_load_dwordx4 v{VW+1}, {sr(SW,4)}, s{S_KW+2} offen offset:1024 lds")
    L.append(f"s_add_u32 m0, s{S_MH}, {sb}")
    L.append(f"s_add_u32 s{S_KB}, s{S_KB}, 1")
    L.append(f"buffer_load_dword v{VH_}, {sr(SX,4)}, s{S_KH} offen lds")
    L.append(f"s_and_b32 s{S_KB}, s{S_KB}, 7")
    return L

def tagged(L, tag):
    return [(x, tag) if isinstance(x, str) and x.startswith("buffer_") else x for x in L]

def frag_reads(b, slot, ks):
    sb = slot * STAGE
    xa = (VXA + ks, VXA + 2 + ks); xs = (VXS + ks, VXS + 2 + ks); wa = (VWA, VWA + 1)
    def X(j):
        r, o = ldsaddr(xa, sb + j * 2048); return f"ds_read_b128 {XF(b, j)}, v{r} offset:{o}"
    def XS(i):
        r, o = ldsaddr(xs, sb + i * 8192); return f"ds_read_b128 {XSF(b, i)}, v{r} offset:{o}"
    def W(seg, h):
        r, o = ldsaddr(wa, sb + WOFF + seg * 8192 + ks * 4096 + h * 512)
        return f"ds_read_b64_tr_b16 {ar(WF(b, seg) + 2 * h, 2)}, v{r} offset:{o}"
    return [W(0, 0), W(0, 1), X(0), W(1, 0), W(1, 1), W(2, 0), W(2, 1)] + [X(j) for j in range(1, 9)] + [XS(0), XS(1)]

def kstep_mfmas(b, first, attn, stats_first=False):
    M = []
    def mf(d, a, bb): return f"v_mfma_f32_16x16x32_bf16 {vr(d,4)}, {a}, {bb}, {'0' if first else vr(d,4)}"
    for j in range(9):
        for seg in range(3):
            w = ar(WF(b, seg), 4); x = XF(b, j)
            M.append(mf(ACC(seg, j), x, w) if (attn and seg == 2) else mf(ACC(seg, j), w, x))
    S = [mf(ST(0), vr(ONES, 4), XSF(b, 0)), mf(ST(1), XSF(b, 0), XSF(b, 0)),
         mf(ST(2), vr(ONES, 4), XSF(b, 1)), mf(ST(3), XSF(b, 1), XSF(b, 1)),
         mf(ST(4), XF(b, 8), XF(b, 8))]
    return S + M if stats_first else M + S

def prologue1(e, cfg):
    stamp(e, cfg, 0)
    e("s_load_dwordx16 s[4:19], s[0:1], 0")
    e("s_load_dwordx4 s[20:23], s[0:1], 64")
    e("s_load_dwordx2 s[24:25], s[0:1], 80")
    e("s_cmp_ge_u32 s2, 256")
    e("s_cbranch_scc1 L_end")
    e("s_and_b32 s69, s2, 7")
    e("s_lshr_b32 s70, s2, 3")
    e("v_lshrrev_b32 v1, 6, v0")
    e("v_and_b32 v2, 63, v0")
    e("s_and_b32 s71, s69, 1")
    e("s_lshl_b32 s71, s71, 3")
    e(f"v_readfirstlane_b32 s{S_W}, v1")
    e("s_and_b32 s72, s70, 7")
    e(f"s_add_u32 s{S_MT}, s71, s72")
    e("s_lshr_b32 s72, s70, 3")
    e("s_and_b32 s73, s69, 6")
    e("s_and_b32 s74, s72, 1")
    e("s_add_u32 s73, s73, s74")
    e("s_lshr_b32 s74, s72, 1")
    e("s_lshl_b32 s75, s74, 3")
    e(f"s_add_u32 s{S_N}, s73, s75")
    if cfg.rot:
        e("s_lshl_b32 s72, s72, 1")
        e(f"s_add_u32 s72, s72, s{S_MT}")
        e(f"s_and_b32 s{S_KB}, s72, 7")
    else:
        e(f"s_mov_b32 s{S_KB}, 0")
    e("v_lshrrev_b32 v3, 3, v2")
    e("v_lshrrev_b32 v4, 4, v2")
    e("v_and_b32 v5, 7, v2")
    e("v_xor_b32 v6, v4, v5")
    e("v_lshlrev_b32 v6, 4, v6")
    e("v_lshl_add_u32 v6, v3, 11, v6")
    e(f"v_lshl_add_u32 v{VX}, v1, 16, v6")
    e(f"v_xor_b32 v7, 64, v{VX}")
    e(f"v_add_u32 v{VX+1}, {16384 - 1024}, v7")
    e(f"v_add_u32 v{VX+2}, {32768 - 2048}, v{VX}")
    e(f"v_add_u32 v{VX+3}, {49152 - 3072}, v7")
    e(f"s_lshr_b32 s75, s{S_MT}, 1")
    e("s_lshl_b32 s76, s75, 18")
    e(f"s_and_b32 s77, s{S_MT}, 1")
    e("s_lshl_b32 s77, s77, 10")
    e(f"s_add_u32 s{S_XBASE}, s76, s77")
    e(f"s_sub_u32 s{S_KHBASE}, s{S_XBASE}, 16384")
    e("s_cmp_eq_u32 s75, 0")
    e(f"s_cmov_b32 s{S_KHBASE}, {BIG}")
    e(f"s_lshl_b32 s{S_MX}, s{S_W}, 12")
    e(f"s_lshl_b32 s{S_MW}, s{S_W}, 11")
    e(f"s_add_u32 s{S_MW}, s{S_MW}, {WOFF}")
    e(f"s_lshl_b32 s{S_MH}, s{S_W}, 8")
    e(f"s_add_u32 s{S_MH}, s{S_MH}, {XH + 1024}")
    e("s_cmp_eq_u32 s74, 0")
    e("s_mov_b32 s76, 2752"); e("s_cmov_b32 s76, 3072")
    e(f"s_mov_b32 s{S_SEGSTEP}, 128"); e(f"s_cmov_b32 s{S_SEGSTEP}, 1024")
    e("s_mov_b32 s77, 384"); e("s_cmov_b32 s77, 128")
    e(f"s_mov_b32 s{SW+2}, {512 * 2752}"); e(f"s_cmov_b32 s{SW+2}, {512 * 3072}")
    e("s_mul_i32 s77, s77, s73")
    e(f"s_lshl_b32 s{S_STR64}, s76, 6")
    e(f"s_sub_u32 s{SW+2}, s{SW+2}, s77")
    e(f"s_mov_b32 s{SW+3}, 0x20000")
    e("v_lshl_add_u32 v8, v1, 4, v3")
    e("v_mul_u32_u24 v8, s76, v8")
    e("v_and_b32 v9, 1, v4")
    e("v_lshlrev_b32 v9, 1, v9")
    e("v_xor_b32 v9, v9, v5")
    e("v_lshlrev_b32 v9, 4, v9")
    e(f"v_add_u32 v{VW}, v8, v9")
    e("v_xor_b32 v9, 64, v9")
    e("s_lshl_b32 s78, s76, 3")
    e("s_sub_u32 s78, s78, 1024")
    e(f"v_add3_u32 v{VW+1}, v8, v9, s78")
    e("v_lshrrev_b32 v8, 5, v2")
    e("v_lshl_add_u32 v8, v1, 1, v8")
    e("v_bfe_u32 v9, v2, 2, 3")
    e("v_xor_b32 v9, v9, v1")
    e("v_xor_b32 v9, 4, v9")
    e("v_and_b32 v10, 3, v2")
    e("v_lshl_add_u32 v9, v9, 2, v10")
    e("v_lshlrev_b32 v9, 2, v9")
    e(f"v_lshl_add_u32 v{VH_}, v8, 11, v9")
    e(f"s_mov_b32 s{SX+2}, 0x200000"); e(f"s_mov_b32 s{SX+3}, 0x20000")
    e.wait(lg=0)
    e(f"s_mov_b32 s{SX}, s4"); e(f"s_mov_b32 s{SX+1}, s5")
    e("s_cmp_eq_u32 s74, 0")
    e(f"s_cselect_b32 s{SW}, s6, s12"); e(f"s_cselect_b32 s{SW+1}, s7, s13")
    e(f"s_add_u32 s{SW}, s{SW}, s77"); e(f"s_addc_u32 s{SW+1}, s{SW+1}, 0")
    for st in range(3):
        e(tagged(dma_stage(st), f"st{st}"))
    stamp(e, cfg, 1)
    for i in range(4): e(f"v_mov_b32 v{ONES+i}, 0x3f803f80")
    e("v_lshlrev_b32 v8, 2, v0")
    e(f"v_add_u32 v9, {2 * STAGE}, v8")
    e(f"ds_write_b32 v8, v{ONES} offset:{XH}")
    e(f"ds_write_b32 v8, v{ONES} offset:{STAGE + XH}")
    e(f"ds_write_b32 v9, v{ONES} offset:{XH}")
    e("v_and_b32 v10, 15, v2")
    e("v_bfe_u32 v11, v2, 1, 3")
    e("v_xor_b32 v11, v11, v4")
    e("v_lshlrev_b32 v11, 4, v11")
    e(f"v_lshl_add_u32 v{VXA}, v10, 7, v11")
    e(f"v_xor_b32 v{VXA+1}, 64, v{VXA}")
    e(f"v_add_u32 v{VXA+2}, 0x10000, v{VXA}")
    e(f"v_add_u32 v{VXA+3}, 0x10000, v{VXA+1}")
    for i in range(4): e(f"v_lshl_add_u32 v{VXS+i}, v1, 11, v{VXA+i}")
    e("v_bfe_u32 v11, v2, 2, 2")
    e("v_lshl_add_u32 v12, v4, 3, v11")
    e("v_bfe_u32 v13, v2, 1, 1")
    e("v_lshl_add_u32 v13, v1, 1, v13")
    e("v_and_b32 v14, 2, v11")
    e("v_xor_b32 v13, v13, v14")
    e("v_and_b32 v14, 1, v4")
    e("v_lshlrev_b32 v14, 2, v14")
    e("v_xor_b32 v13, v13, v14")
    e("v_and_b32 v14, 1, v2")
    e("v_lshl_add_u32 v13, v13, 1, v14")
    e("v_lshlrev_b32 v13, 3, v13")
    e(f"v_lshl_add_u32 v{VWA}, v12, 7, v13")
    e(f"v_add_u32 v{VWA+1}, 0x10000, v{VWA}")
    e("v_and_b32 v11, 1, v4")
    e(f"v_mul_u32_u24 v11, {TILEB}, v11")
    e("v_and_b32 v12, 1, v1")
    e("v_lshlrev_b32 v12, 1, v12")
    e("v_lshrrev_b32 v13, 1, v4")
    e("v_add_u32 v12, v12, v13")
    e("v_lshl_add_u32 v11, v12, 8, v11")
    e("v_lshl_add_u32 v11, v10, 4, v11")
    e("v_lshrrev_b32 v12, 1, v1")
    e(f"v_lshl_add_u32 v{VHS}, v12, 10, v11")
    e(f"s_mul_i32 s75, s{S_MT}, {8 * TILEB}")
    e("s_cmp_eq_u32 s74, 0")
    e("s_mov_b32 s76, 6144"); e("s_cmov_b32 s76, 2048")
    e("s_mul_i32 s76, s76, s73")
    e("s_lshl_b32 s77, s74, 14")
    e("s_add_u32 s75, s75, s76")
    e("s_add_u32 s75, s75, s77")
    e(f"s_add_u32 s{SH}, s24, s75"); e(f"s_addc_u32 s{SH+1}, s25, 0")
    e(f"s_mov_b32 s{SH+2}, {8 * TILEB}"); e(f"s_mov_b32 s{SH+3}, 0x20000")
    e("v_and_b32 v11, 3, v2")
    e(f"v_cmp_eq_u32 {sr(S_M1,2)}, 1, v11")
    e(f"v_cmp_eq_u32 {sr(S_M2,2)}, 2, v11")
    e("s_cmp_eq_u32 s74, 0")
    e(f"v_cmp_eq_u32 {sr(S_M3,2)}, 3, v11")
    e("v_bfe_u32 v12, v2, 2, 2")
    e(f"v_cmp_eq_u32 {sr(S_MD,2)}, v12, v4")
    e("v_lshl_add_u32 v12, v1, 4, v10")
    e(f"v_lshlrev_b32 v13, 3, v12")
    e(f"v_add_u32 v13, {STAT}, v13")
    e(f"v_lshlrev_b32 v14, 2, v12")
    e(f"v_add_u32 v14, {STAT + 1152}, v14")
    e(f"v_lshlrev_b32 v15, 3, v10")
    e(f"v_add_u32 v15, {STAT + 1024}, v15")
    e(f"v_lshlrev_b32 v16, 2, v10")
    e(f"v_add_u32 v16, {STAT + 1152 + 512}, v16")
    e(f"v_mov_b32 v17, {STAT + 2304}")
    for i in range(4):
        e(f"v_cndmask_b32 v{252+i}, v17, v{13+i}, {sr(S_MD,2)}")
    e("v_lshlrev_b32 v250, 3, v10"); e(f"v_add_u32 v250, {STAT}, v250")
    e("v_lshlrev_b32 v251, 4, v4"); e(f"v_add_u32 v251, {STAT + 1152}, v251")
    e("v_mov_b32 v248, v4"); e("v_mov_b32 v249, v10")
    e.flush()
    e("s_cbranch_scc0 L_ffn")

def stats_side(attn):
    L = []
    t = T0
    for i, sq in enumerate((1, 3, 4)):
        d = t + i
        L.append(f"v_cndmask_b32 v{d}, v{ST(sq)}, v{ST(sq)+1}, {sr(S_M1,2)}")
        L.append(f"v_cndmask_b32 v{d}, v{d}, v{ST(sq)+2}, {sr(S_M2,2)}")
        L.append(f"v_cndmask_b32 v{d}, v{d}, v{ST(sq)+3}, {sr(S_M3,2)}")
    L.append(f"v_permlane32_swap_b32 v{ST(4)}, v{ST(4)+1}")
    sums = (ST(0), ST(2), ST(4))
    inv = f2u(1.0 / 512)
    for i in range(3): L.append(f"v_mul_f32 v{t+3+i}, 0x{inv:x}, v{sums[i]}")
    for i in range(3): L.append(f"v_mul_f32 v{t+i}, 0x{inv:x}, v{t+i}")
    for i in range(3): L.append(f"v_fma_f32 v{t+i}, -v{t+3+i}, v{t+3+i}, v{t+i}")
    for i in range(3): L.append(f"v_max_f32 v{t+i}, 0, v{t+i}")
    for i in range(3): L.append(f"v_cvt_pk_bf16_f32 v{t+i}, v{t+3+i}, v{t+i}")
    for i in range(3): L.append(f"v_lshlrev_b32 v{t+3+i}, 16, v{t+i}")
    for i in range(3): L.append(f"v_and_b32 v{t+i}, 0xffff0000, v{t+i}")
    for i in range(3): L.append(f"v_add_f32 v{t+i}, 0x{f2u(1e-5):x}, v{t+i}")
    for i in range(3): L.append(f"v_cvt_pk_bf16_f32 v{t+i}, v{t+i}, v{t+i}")
    for i in range(3): L.append(f"v_and_b32 v{t+i}, 0xffff0000, v{t+i}")
    for i in range(3): L.append(f"v_sqrt_f32 v{t+i}, v{t+i}")
    for i in range(3): L.append(f"v_cvt_pk_bf16_f32 v{t+i}, v{t+i}, v{t+i}")
    for i in range(3): L.append(f"v_and_b32 v{t+i}, 0xffff0000, v{t+i}")
    for i in range(3): L.append(f"v_rcp_f32 v{t+6+2*i}, v{t+i}")
    for i in range(3): L.append(f"v_mul_f32 v{t+7+2*i}, -v{t+3+i}, v{t+6+2*i}")
    L.append(f"ds_write_b64 v252, {vr(t+6,2)}")
    L.append(f"ds_write_b64 v252, {vr(t+8,2)} offset:512")
    L.append(f"ds_write_b64 v254, {vr(t+10,2)}")
    if attn:
        L.append(f"ds_write2_b32 v253, v{t+6}, v{t+7} offset0:0 offset1:144")
        L.append(f"ds_write2_b32 v253, v{t+8}, v{t+9} offset0:64 offset1:208")
        L.append(f"ds_write2_b32 v255, v{t+10}, v{t+11} offset0:0 offset1:144")
    L.append(lambda e: e.wait(lg=0))
    L.append("s_barrier")
    for j in range(9):
        L.append(f"ds_read_b64 {vr(RM+2*j,2)}, v250 offset:{128*j}")
    return L

def mainloop(e, cfg, attn, extra_side=None):
    e.wait(vm_tag="st0", lg=0)
    e("s_barrier")
    stamp(e, cfg, 2)
    e(frag_reads(0, 0, 0))
    for k in range(16):
        b = k & 1; s = k >> 1
        last = k == 15
        M = kstep_mfmas(b, k == 0, attn, stats_first=last)
        if last:
            side = stats_side(attn)
            e(weave(M, side, start=9, per=3))
            break
        if b == 0:
            side = frag_reads(1, s % 3, 1)
            e(weave(M, side, start=0, per=1))
        else:
            pre = [lambda e, s=s: e.wait(vm_tag=f"st{s+1}", lg=0), "s_barrier"]
            rd = frag_reads(0, (s + 1) % 3, 0)
            side = list(rd)
            if s + 3 < 8:
                dm = tagged(dma_stage(s % 3), f"st{s+3}")
                side = weave(rd, dm, start=4, per=1.0)
            e(M[:2]); e(pre)
            e(weave(M[2:], side, start=0, per=1.5))
    stamp(e, cfg, 3)

def hstore(quad, seg, jp, sc):
    return [f"s_add_u32 s{S_T}, s{S_SEG+seg}, {jp * 2 * TILEB}",
            f"buffer_store_dwordx4 {vr(quad,4)}, v{VHS}, {sr(SH,4)}, s{S_T} offen{sc}"]

def ffn_pre(e, cfg):
    srd(e, SB, 14, 15, 2752)
    e(f"s_sub_u32 s{S_T}, s{S_N}, 8")
    e(f"s_mul_i32 s{S_T}, s{S_T}, 384")
    e("v_lshlrev_b32 v3, 5, v1")
    e("v_lshl_add_u32 v3, v248, 3, v3")
    for seg in range(3):
        e(f"buffer_load_dwordx2 {vr(236+2*seg,2)}, v3, {sr(SB,4)}, s{S_T} offen offset:{128*seg}")
    e(f"s_sub_u32 s{S_T}, s{S_N}, 8")
    e(f"s_mul_i32 s{S_T}, s{S_T}, 12")
    e(f"s_add_u32 s{S_T}, s{S_T}, s{S_W}")
    for seg in range(3):
        e(f"s_mov_b32 s{S_SEG+seg}, {BIG}")
        e(f"s_cmp_lt_u32 s{S_T}, {86 - 4*seg}")
        e(f"s_cmov_b32 s{S_SEG+seg}, {2048*seg}")
    e(f"v_mov_b32 v246, 0x{f2u(G1):x}"); e(f"v_mov_b32 v247, 0x{f2u(G0):x}")

def ffn_epilogue(e, cfg):
    sc = " sc1" if cfg.fused else ""
    BB = 224
    CS = 208
    for seg in range(3):
        for h in range(2):
            e(f"v_lshlrev_b32 v{BB+4*seg+2*h}, 16, v{236+2*seg+h}")
            e(f"v_and_b32 v{BB+4*seg+2*h+1}, 0xffff0000, v{236+2*seg+h}")
    for seg in range(3):
        for r in range(4):
            e(f"v_mov_b32_dpp v{CS+4*seg+r}, v{ACC(seg,8)+r} row_newbcast:0 row_mask:0xf bank_mask:0xf")
    t = T0
    for seg in range(3):
        for jp in range(4):
            A = t; Bq = t + 8; Q = t + 16 + 4 * ((seg * 4 + jp) & 1)
            P = []
            for u in range(2):
                j = 2 * jp + u
                for h in range(2):
                    P.append((ACC(seg, j) + 2 * h, RM + 2 * j, CS + 4 * seg + 2 * h, BB + 4 * seg + 2 * h, 2 * u + h))
            for a, rm, cs, bb, i in P:
                e(f"v_pk_fma_f32 {vr(A+2*i,2)}, {vr(rm,2)}, {vr(cs,2)}, {vr(bb,2)} op_sel:[1,0,0] op_sel_hi:[1,1,1]")
            for a, rm, cs, bb, i in P:
                e(f"v_pk_fma_f32 {vr(a,2)}, {vr(rm,2)}, {vr(a,2)}, {vr(A+2*i,2)} op_sel:[0,0,0] op_sel_hi:[0,1,1]")
            for a, rm, cs, bb, i in P:
                e(f"v_pk_mul_f32 {vr(A+2*i,2)}, {vr(a,2)}, {vr(a,2)}")
            for a, rm, cs, bb, i in P:
                e(f"v_pk_fma_f32 {vr(A+2*i,2)}, {vr(A+2*i,2)}, v[246:247], v[246:247] op_sel:[0,0,1] op_sel_hi:[1,0,1]")
            for a, rm, cs, bb, i in P:
                e(f"v_pk_mul_f32 {vr(A+2*i,2)}, {vr(A+2*i,2)}, {vr(a,2)}")
            for i in range(8): e(f"v_exp_f32 v{A+i}, v{A+i}")
            for i in range(4): e(f"v_pk_add_f32 {vr(A+2*i,2)}, {vr(A+2*i,2)}, 1.0 op_sel_hi:[1,0]")
            for i in range(8): e(f"v_rcp_f32 v{A+i}, v{A+i}")
            for a, rm, cs, bb, i in P:
                e(f"v_pk_mul_f32 {vr(A+2*i,2)}, {vr(A+2*i,2)}, {vr(a,2)}")
            for i in range(4): e(f"v_cvt_pk_bf16_f32 v{Q+i}, v{A+2*i}, v{A+2*i+1}")
            e(f"v_permlane16_swap_b32 v{Q}, v{Q+2}")
            e(f"v_permlane16_swap_b32 v{Q+1}, v{Q+3}")
            e(hstore(Q, seg, jp, sc))

CCUR, CPREV, CFIRST, MPREV = 228, 232, 236, 240
def attn_pre(e, cfg):
    e(f"v_mov_b32 v3, 0x{NEG:x}")
    e("v_mov_b32 v5, 0xffff"); e("v_mov_b32 v6, 0xffff0000")
    e("v_lshlrev_b32 v7, 2, v248")
    e("v_sub_u32 v7, v249, v7")
    e(f"s_lshr_b32 s{S_T}, s{S_MT}, 1")
    e(f"s_cmp_eq_u32 s{S_T}, 0")
    e("s_cselect_b64 s[80:81], 0, -1")
    for r in range(4):
        e(f"v_subrev_u32 v8, {r}, v7")
        e("v_cmp_gt_u32 vcc, 8, v8")
        e(f"v_cndmask_b32 v{CCUR+r}, v3, 0, vcc")
        e("v_cmp_gt_i32 vcc, -8, v8")
        e(f"v_cndmask_b32 v{CPREV+r}, v3, 0, vcc")
        e(f"v_cndmask_b32 v{9+r}, 0, v{5+(r&1)}, vcc")
        e(f"v_cndmask_b32 v{CFIRST+r}, v3, v{CPREV+r}, s[80:81]")
    e(f"v_or_b32 v{MPREV}, v9, v10"); e(f"v_or_b32 v{MPREV+1}, v11, v12")
    e(f"s_mov_b32 s{S_SEG}, 0")
    e(f"s_mov_b32 s{S_C}, 0x{f2u(C_SM):x}"); e(f"s_mov_b32 s{S_C+1}, 0x{f2u(C_SM):x}")

def attn_epilogue(e, cfg):
    sc = " sc1" if cfg.fused else ""
    CSQ, CSK, CSV = 172, 176, 180
    VHh = 182
    R4 = 200
    TT = 216
    def rd4(j, b):
        return [f"ds_read_b128 {vr(R4+8*b,4)}, v251 offset:{64*j}",
                f"ds_read_b128 {vr(R4+8*b+4,4)}, v251 offset:{64*j+576}"]
    e(rd4(8, 0)); e(rd4(0, 1))
    for r in range(4):
        e(f"v_mov_b32_dpp v{CSQ+r}, v{ACC(0,8)+r} row_newbcast:0 row_mask:0xf bank_mask:0xf")
        e(f"v_mov_b32_dpp v{CSK+r}, v{ACC(1,8)+r} row_newbcast:0 row_mask:0xf bank_mask:0xf")
    e(f"v_mov_b32 v{CSV}, v{ACC(2,8)}"); e(f"v_mov_b32 v{CSV+1}, v{ACC(2,8)}")
    e(f"v_permlane32_swap_b32 v{CSV}, v{CSV+1}")
    def ln_qk(seg, j, cs):
        a = ACC(seg, j); rm = RM + 2 * j
        return [f"v_pk_mul_f32 {vr(TT,2)}, {vr(rm,2)}, {vr(cs,2)} op_sel:[1,0] op_sel_hi:[1,1]",
                f"v_pk_mul_f32 {vr(TT+2,2)}, {vr(rm,2)}, {vr(cs+2,2)} op_sel:[1,0] op_sel_hi:[1,1]",
                f"v_pk_fma_f32 {vr(TT,2)}, {vr(rm,2)}, {vr(a,2)}, {vr(TT,2)} op_sel:[0,0,0] op_sel_hi:[0,1,1]",
                f"v_pk_fma_f32 {vr(TT+2,2)}, {vr(rm,2)}, {vr(a+2,2)}, {vr(TT+2,2)} op_sel:[0,0,0] op_sel_hi:[0,1,1]",
                f"v_cvt_pk_bf16_f32 v{a}, v{TT}, v{TT+1}",
                f"v_cvt_pk_bf16_f32 v{a+1}, v{TT+2}, v{TT+3}"]
    def ln_v(j, b):
        a = ACC(2, j); r4 = R4 + 8 * b; m4 = r4 + 4; d = VHh + (0 if j == 8 else 2 + 2 * j)
        return [f"v_pk_mul_f32 {vr(TT,2)}, {vr(m4,2)}, {vr(CSV,2)} op_sel_hi:[1,0]",
                f"v_pk_mul_f32 {vr(TT+2,2)}, {vr(m4+2,2)}, {vr(CSV,2)} op_sel_hi:[1,0]",
                f"v_pk_fma_f32 {vr(TT,2)}, {vr(r4,2)}, {vr(a,2)}, {vr(TT,2)}",
                f"v_pk_fma_f32 {vr(TT+2,2)}, {vr(r4+2,2)}, {vr(a+2,2)}, {vr(TT+2,2)}",
                f"v_cvt_pk_bf16_f32 v{d}, v{TT}, v{TT+1}",
                f"v_cvt_pk_bf16_f32 v{d+1}, v{TT+2}, v{TT+3}"]
    order = [8] + list(range(8))
    for i, j in enumerate(order):
        e(ln_qk(1, j, CSK))
        if j != 8: e(ln_qk(0, j, CSQ))
        e(ln_v(j, i & 1))
        if i + 2 < 9: e(rd4(order[i + 2], i & 1))
    second = [ACC(0, 8), ACC(2, 8), ST(0), ST(1), ST(2), ST(3), ST(4), R4]
    for j in range(8):
        kp = ACC(1, 8) if j == 0 else ACC(1, j - 1)
        cp = CFIRST if j == 0 else CPREV
        e(f"v_mfma_f32_16x16x16_bf16 {vr(ACC(2,j),4)}, {vr(kp,2)}, {vr(ACC(0,j),2)}, {vr(cp,4)}")
        e(f"v_mfma_f32_16x16x16_bf16 {vr(second[j],4)}, {vr(ACC(1,j),2)}, {vr(ACC(0,j),2)}, {vr(CCUR,4)}")
    for jp in range(4):
        js = (2 * jp, 2 * jp + 1)
        X = {j: ACC(2, j) for j in js}
        Mx = {j: ACC(0, j) + 2 for j in js}
        P = {j: ACC(1, j) for j in js}
        for j in js:
            for r in range(4): e(f"v_max_f32 v{X[j]+r}, v{X[j]+r}, v{second[j]+r}")
        for j in js: e(f"v_max3_f32 v{Mx[j]}, v{X[j]}, v{X[j]+1}, v{X[j]+2}")
        for j in js: e(f"v_max_f32 v{Mx[j]}, v{Mx[j]}, v{X[j]+3}")
        for j in js: e(f"v_mov_b32 v{Mx[j]+1}, v{Mx[j]}")
        for j in js: e(f"v_permlane32_swap_b32 v{Mx[j]}, v{Mx[j]+1}")
        for j in js: e(f"v_max_f32 v{Mx[j]}, v{Mx[j]}, v{Mx[j]+1}")
        for j in js: e(f"v_mov_b32 v{Mx[j]+1}, v{Mx[j]}")
        for j in js: e(f"v_permlane16_swap_b32 v{Mx[j]}, v{Mx[j]+1}")
        for j in js: e(f"v_max_f32 v{Mx[j]}, v{Mx[j]}, v{Mx[j]+1}")
        for j in js: e(f"v_mul_f32 v{Mx[j]}, s{S_C}, v{Mx[j]}")
        for j in js:
            for h in range(2):
                e(f"v_pk_fma_f32 {vr(X[j]+2*h,2)}, {vr(X[j]+2*h,2)}, {sr(S_C,2)}, {vr(Mx[j],2)} op_sel_hi:[1,1,0] neg_lo:[0,0,1] neg_hi:[0,0,1]")
        for j in js:
            for r in range(4): e(f"v_exp_f32 v{X[j]+r}, v{X[j]+r}")
        for j in js:
            e(f"v_cvt_pk_bf16_f32 v{P[j]+2}, v{X[j]}, v{X[j]+1}")
            e(f"v_cvt_pk_bf16_f32 v{P[j]+3}, v{X[j]+2}, v{X[j]+3}")
        for j in js:
            e(f"v_and_b32 v{P[j]}, v{MPREV}, v{P[j]+2}")
            e(f"v_and_b32 v{P[j]+1}, v{MPREV+1}, v{P[j]+3}")
        for j in js:
            e(f"v_xor_b32 v{P[j]+2}, v{P[j]+2}, v{P[j]}")
            e(f"v_xor_b32 v{P[j]+3}, v{P[j]+3}, v{P[j]+1}")
        for j in js:
            e(f"v_mfma_f32_16x16x32_bf16 {vr(X[j],4)}, {vr(VHh+2*j,4)}, {vr(P[j],4)}, 0")
            e(f"v_mfma_f32_16x16x32_bf16 {vr(second[j],4)}, {vr(ONES,4)}, {vr(P[j],4)}, 0")
    for jp in range(4):
        js = (2 * jp, 2 * jp + 1)
        Q = TT + 4 * (jp & 1)
        for j in js: e(f"v_rcp_f32 v{second[j]}, v{second[j]}")
        for j in js:
            for h in range(2):
                e(f"v_pk_mul_f32 {vr(ACC(2,j)+2*h,2)}, {vr(ACC(2,j)+2*h,2)}, {vr(second[j],2)} op_sel_hi:[1,0]")
        for u, j in enumerate(js):
            e(f"v_cvt_pk_bf16_f32 v{Q+2*u}, v{ACC(2,j)}, v{ACC(2,j)+1}")
            e(f"v_cvt_pk_bf16_f32 v{Q+2*u+1}, v{ACC(2,j)+2}, v{ACC(2,j)+3}")
        e(f"v_permlane16_swap_b32 v{Q}, v{Q+2}")
        e(f"v_permlane16_swap_b32 v{Q+1}, v{Q+3}")
        e(hstore(Q, 0, jp, sc))

def ACC2(slot, nt): return 4 + (slot * 4 + nt) * 4
HREG = 68; NH = 44
V2H, V2W, V2T, V2R = 244, 248, 252, 68
S2_RB, S2_CB = 56, 57
S2_K4, S2_LAST = 58, 61
S2_MW = 62; S2_KW = 63

def p2_setup(e, cfg):
    e("s_and_b32 s69, s2, 7"); e("s_lshr_b32 s70, s2, 3")
    e("s_lshl_b32 s69, s69, 2"); e("s_and_b32 s71, s70, 3")
    e(f"s_add_u32 s{S2_RB}, s69, s71")
    e(f"s_lshr_b32 s{S2_CB}, s70, 2")
    e("v_lshrrev_b32 v1, 6, v0"); e("v_and_b32 v2, 63, v0")
    e(f"s_lshl_b32 s72, s{S2_CB}, 7")
    e(f"s_mul_i32 s73, s{S_W}, {15 * 32768}")
    e("s_add_u32 s73, s73, s72")
    e(f"s_sub_u32 s74, s73, {16 * 32768}")
    e(f"s_cmp_lt_u32 s{S_W}, 2")
    e(f"s_cselect_b32 s{SWA}, s8, s16"); e(f"s_cselect_b32 s{SWA+1}, s9, s17")
    e("s_cselect_b32 s75, s73, s74")
    e(f"s_mov_b32 s76, {1376 * 1024}"); e(f"s_cmov_b32 s76, {512 * 1024}")
    e(f"s_add_u32 s{SWA}, s{SWA}, s75"); e(f"s_addc_u32 s{SWA+1}, s{SWA+1}, 0")
    e(f"s_sub_u32 s{SWA+2}, s76, s75"); e(f"s_mov_b32 s{SWA+3}, 0x20000")
    e("s_add_u32 s73, s73, 32768"); e("s_add_u32 s74, s74, 32768")
    e(f"s_cmp_lt_u32 s{S_W}, 1")
    e(f"s_cselect_b32 s{SWB}, s8, s16"); e(f"s_cselect_b32 s{SWB+1}, s9, s17")
    e("s_cselect_b32 s75, s73, s74")
    e(f"s_mov_b32 s76, {1376 * 1024}"); e(f"s_cmov_b32 s76, {512 * 1024}")
    e(f"s_add_u32 s{SWB}, s{SWB}, s75"); e(f"s_addc_u32 s{SWB+1}, s{SWB+1}, 0")
    e(f"s_sub_u32 s{SWB+2}, s76, s75"); e(f"s_mov_b32 s{SWB+3}, 0x20000")
    e(f"s_mul_i32 s{S2_MW}, s{S_W}, {W2REG}")
    e("v_lshrrev_b32 v3, 3, v2"); e("v_bfe_u32 v68, v2, 4, 1"); e("v_lshlrev_b32 v68, 1, v68")
    e("v_and_b32 v69, 7, v2"); e("v_xor_b32 v68, v68, v69"); e("v_lshlrev_b32 v68, 4, v68")
    e(f"v_lshl_add_u32 v{V2W}, v3, 10, v68")
    e(f"v_xor_b32 v69, 64, v{V2W}")
    e(f"v_add_u32 v{V2W+1}, 7168, v69"); e(f"v_add_u32 v{V2W+2}, {2*7168}, v{V2W}"); e(f"v_add_u32 v{V2W+3}, {3*7168}, v69")
    e("v_lshrrev_b32 v68, 4, v2")
    e("v_bfe_u32 v69, v2, 2, 2")
    e("v_lshl_add_u32 v70, v68, 3, v69")
    e("v_bfe_u32 v71, v2, 1, 1")
    e("v_and_b32 v72, 2, v69"); e("v_xor_b32 v71, v71, v72")
    e("v_and_b32 v72, 1, v68"); e("v_lshlrev_b32 v72, 2, v72"); e("v_xor_b32 v71, v71, v72")
    e("v_and_b32 v72, 1, v2"); e("v_lshl_add_u32 v71, v71, 1, v72"); e("v_lshlrev_b32 v71, 3, v71")
    e("v_lshl_add_u32 v71, v70, 7, v71")
    e(f"v_add_u32 v{V2T}, s{S2_MW}, v71")
    for nt in range(1, 4): e(f"v_xor_b32 v{V2T+nt}, {32*nt}, v{V2T}")

def p2_w2_dma(ki):
    slot = ki % 9
    L = [f"s_add_u32 m0, s{S2_MW}, {slot * 4096}"]
    if ki == 0: srdr, so = SWA, "0"
    elif ki == 1: srdr, so = SWB, "0"
    else:
        srdr, so = SWB, f"s{S2_KW}"
        L.append(f"s_mov_b32 s{S2_KW}, {(ki - 1) * 32768}")
    if len(L) == 1: L.append("s_nop 0")
    for pc in range(4):
        L.append((f"buffer_load_dwordx4 v{V2W+pc}, {sr(srdr,4)}, {so} offen offset:{1024*pc} lds", f"w2_{ki}"))
    return L

def p2_w2_read(ki):
    slot = ki % 9
    L = [lambda e: e.wait(vm_tag=f"w2_{ki}")]
    for nt in range(4):
        for h in range(2):
            L.append((f"ds_read_b64_tr_b16 {ar(16*ki+4*nt+2*h,2)}, v{V2T+nt} offset:{slot*4096+h*512}", f"w2r_{ki}"))
    return L

def p2_accinit(e, cfg):
    e(f"s_lshr_b32 s69, s{S2_RB}, 1")
    e(f"s_and_b32 s70, s{S2_RB}, 1")
    e(f"s_mul_i32 s71, s{S2_RB}, {4 * TILEB}")
    e(f"s_add_u32 s{SH}, s24, s71"); e(f"s_addc_u32 s{SH+1}, s25, 0")
    e(f"s_mov_b32 s{SH+2}, {4 * TILEB}"); e(f"s_mov_b32 s{SH+3}, 0x20000")
    e(f"s_mov_b32 s{S2_K4}, 4096"); e(f"s_mov_b32 s{S2_K4+1}, 8192"); e(f"s_mov_b32 s{S2_K4+2}, 12288")
    e(f"s_mov_b32 s{S2_LAST}, 12288"); e(f"s_cmp_eq_u32 s{S_W}, 3"); e(f"s_cmov_b32 s{S2_LAST}, {BIG}")
    e(f"s_mul_i32 s72, s{S_W}, {15 * 1024}")
    e("v_lshlrev_b32 v3, 4, v2")
    e("v_add_u32 v3, s72, v3")
    for sl in range(4):
        e(f"s_add_u32 s73, s{S_W}, {sl}"); e("s_and_b32 s73, s73, 3"); e(f"s_mul_i32 s73, s73, {TILEB}")
        e(f"v_add_u32 v{V2H+sl}, s73, v3")
    e("s_lshr_b32 s73, s69, 1"); e("s_lshl_b32 s73, s73, 18")
    e("s_and_b32 s74, s69, 1"); e("s_lshl_b32 s74, s74, 10"); e("s_add_u32 s73, s73, s74")
    e("s_lshl_b32 s74, s70, 2"); e(f"s_add_u32 s74, s74, s{S_W}"); e("s_lshl_b32 s74, s74, 15")
    e("s_add_u32 s73, s73, s74")
    e(f"s_lshl_b32 s72, s{S2_CB}, 7")
    e("s_add_u32 s73, s73, s72")
    e(f"s_add_u32 s{SO}, s20, s73"); e(f"s_addc_u32 s{SO+1}, s21, 0")
    e(f"s_sub_u32 s{SO+2}, 0x200000, s73"); e(f"s_mov_b32 s{SO+3}, 0x20000")
    srd(e, SX, 4, 5, 0x200000)
    srd(e, SB, 18, 19, 1024)
    e("v_and_b32 v68, 15, v2"); e("v_lshrrev_b32 v69, 4, v2")
    e("v_lshlrev_b32 v70, 3, v69")
    e("v_lshl_add_u32 v71, v68, 11, v70")
    for nt in range(4):
        e(f"buffer_load_dwordx2 {vr(72+2*nt,2)}, v71, {sr(SX,4)}, s73 offen offset:{32*nt}")
    for nt in range(4):
        e(f"buffer_load_dwordx2 {vr(80+2*nt,2)}, v70, {sr(SB,4)}, s72 offen offset:{32*nt}")
    e("v_and_b32 v88, 1, v69"); e("v_lshlrev_b32 v88, 5, v88")
    e("v_lshrrev_b32 v89, 1, v69"); e("v_lshl_add_u32 v88, v89, 4, v88")
    e("v_lshl_add_u32 v1, v68, 11, v88")
    for nt in range(4):
        a = ACC2(0, nt)
        for h in range(2):
            e(f"v_lshlrev_b32 v{a+2*h}, 16, v{72+2*nt+h}"); e(f"v_and_b32 v{a+2*h+1}, 0xffff0000, v{72+2*nt+h}")
            e(f"v_lshlrev_b32 v88, 16, v{80+2*nt+h}"); e(f"v_and_b32 v89, 0xffff0000, v{80+2*nt+h}")
            e(f"v_pk_add_f32 {vr(a+2*h,2)}, {vr(a+2*h,2)}, v[88:89]")

def hload(idx, sc):
    ki, sl = idx >> 2, idx & 3
    reg = HREG + 4 * (idx % NH)
    so = "0" if ki < 4 else (f"s{S2_LAST}" if ki == 14 else f"s{S2_K4 + (ki >> 2) - 1}")
    return f"buffer_load_dwordx4 {vr(reg,4)}, v{V2H+sl}, {sr(SH,4)}, {so} offen offset:{(ki & 3) * 1024}{sc}"

def p2_main(e, cfg):
    sc = " sc1" if cfg.fused else ""
    for idx in range(NH): e(hload(idx, sc))
    stamp(e, cfg, 5)
    for ki in range(15):
        for sl in range(4):
            idx = ki * 4 + sl
            reg = HREG + 4 * (idx % NH)
            for nt in range(4):
                c = vr(ACC2(sl, nt), 4) if (ki > 0 or sl == 0) else "0"
                e(f"v_mfma_f32_16x16x32_bf16 {vr(ACC2(sl,nt),4)}, {ar(16*ki+4*nt,4)}, {vr(reg,4)}, {c}")
            if idx + NH < 60: e(hload(idx + NH, sc))
    e("v_lshlrev_b32 v68, 4, v2")
    e(f"v_add_u32 v69, s{S2_MW}, v68")
    for i in range(1, 4):
        e(f"s_sub_u32 s69, s{S_W}, {i}"); e("s_and_b32 s69, s69, 3"); e(f"s_mul_i32 s69, s69, {W2REG}")
        e(f"v_add_u32 v{69+i}, s69, v68")
    for sl in range(1, 4):
        for nt in range(4):
            e(f"ds_write_b128 v69, {vr(ACC2(sl,nt),4)} offset:{(sl-1)*4096+nt*1024}")
    e.wait(lg=0)
    e("s_barrier")
    for i in range(1, 4):
        for nt in range(4):
            e(f"ds_read_b128 {vr(ACC2(i,nt),4)}, v{69+i} offset:{(i-1)*4096+nt*1024}")
    for i in range(1, 4):
        for nt in range(4):
            for h in range(2):
                a = ACC2(0, nt) + 2 * h
                e(f"v_pk_add_f32 {vr(a,2)}, {vr(a,2)}, {vr(ACC2(i,nt)+2*h,2)}")
    for P in range(2):
        Q = 76 + 4 * P
        for u in range(2):
            a = ACC2(0, 2 * P + u)
            e(f"v_cvt_pk_bf16_f32 v{Q+2*u}, v{a}, v{a+1}"); e(f"v_cvt_pk_bf16_f32 v{Q+2*u+1}, v{a+2}, v{a+3}")
        e(f"v_permlane16_swap_b32 v{Q}, v{Q+2}"); e(f"v_permlane16_swap_b32 v{Q+1}, v{Q+3}")
        e(f"buffer_store_dwordx4 {vr(Q,4)}, v1, {sr(SO,4)}, 0 offen offset:{64*P}")

def kernel1(cfg):
    e = Emitter()
    prologue1(e, cfg)
    st = e.save()
    attn_pre(e, cfg); mainloop(e, cfg, True); attn_epilogue(e, cfg)
    stamp(e, cfg, 4)
    write_stamps(e, cfg, 5, 0x1000000)
    e("s_endpgm")
    e("L_ffn:"); e.restore(st)
    ffn_pre(e, cfg); mainloop(e, cfg, False); ffn_epilogue(e, cfg)
    stamp(e, cfg, 4)
    write_stamps(e, cfg, 5, 0x1000000)
    e("L_end:")
    e("s_endpgm")
    return e

def kernel2(cfg):
    e = Emitter()
    stamp(e, cfg, 0)
    e("s_load_dwordx16 s[4:19], s[0:1], 0")
    e("s_load_dwordx4 s[20:23], s[0:1], 64")
    e("s_load_dwordx2 s[24:25], s[0:1], 80")
    e("s_cmp_ge_u32 s2, 256")
    e("s_cbranch_scc1 L2_end")
    e("v_lshrrev_b32 v1, 6, v0")
    e(f"v_readfirstlane_b32 s{S_W}, v1")
    p2_setup(e, cfg)
    for ki in range(9): e(p2_w2_dma(ki))
    stamp(e, cfg, 1)
    p2_accinit(e, cfg)
    stamp(e, cfg, 2)
    for ki in range(15):
        e(p2_w2_read(ki))
        if ki + 9 < 15:
            e.wait(lg_tag=f"w2r_{ki}")
            e(p2_w2_dma(ki + 9))
    stamp(e, cfg, 3)
    stamp(e, cfg, 4)
    p2_main(e, cfg)
    stamp(e, cfg, 6)
    write_stamps(e, cfg, 7, 0x1010000)
    e("L2_end:")
    e("s_endpgm")
    return e

def desc(name, vg, acc):
    return f""".section .rodata,"a"
.p2align 6
.amdhsa_kernel {name}
  .amdhsa_next_free_vgpr {vg}
  .amdhsa_next_free_sgpr 102
  .amdhsa_accum_offset {acc}
  .amdhsa_group_segment_fixed_size 0
  .amdhsa_kernarg_size 88
  .amdhsa_user_sgpr_count 2
  .amdhsa_user_sgpr_kernarg_segment_ptr 1
  .amdhsa_system_sgpr_workgroup_id_x 1
.end_amdhsa_kernel
"""
def head(name): return f".globl {name}\n.p2align 8\n.type {name},@function\n{name}:\n"

def main():
    ap = argparse.ArgumentParser()
    ap.add_argument("out"); ap.add_argument("--rot", type=int, default=0); ap.add_argument("--stamps", action="store_true")
    a = ap.parse_args()
    cfg = Cfg(); cfg.rot = a.rot; cfg.stamps = a.stamps
    k1 = kernel1(cfg); k2 = kernel2(cfg)
    s = "; generated by dev/gen/gen.py (hand-scheduled CDNA4 assembly emitted by a macro script)\n"
    s += f"; @launch kernel=p1_kernel grid=(256,1,1) block=(256,1,1) lds=163840\n"
    s += f"; @launch kernel=p2_kernel grid=(256,1,1) block=(256,1,1) lds=163840\n"
    s += '.amdgcn_target "amdgcn-amd-amdhsa--gfx950"\n.text\n'
    s += head("p1_kernel") + k1.text() + head("p2_kernel") + k2.text()
    s += desc("p1_kernel", 512, 256) + desc("p2_kernel", 512, 256)
    open(a.out, "w").write(s)
    print("nops:", k1.nops, k2.nops, "instrs:", len(k1.out), len(k2.out))
main()
```

```python
import re

TRANS = ("v_exp_f32", "v_log_f32", "v_rcp_f32", "v_rsq_f32", "v_sqrt_f32", "v_sin_f32", "v_cos_f32", "v_rcp_iflag_f32")
NODST_S = ("s_cmp", "s_waitcnt", "s_barrier", "s_nop", "s_branch", "s_cbranch", "s_setprio", "s_sleep", "s_endpgm",
           "s_bitcmp", "s_sethalt", "s_setreg")

def split_ops(s):
    out, depth, cur = [], 0, ""
    for ch in s:
        if ch == "[": depth += 1
        if ch == "]": depth -= 1
        if ch == "," and depth == 0:
            out.append(cur.strip()); cur = ""
        else:
            cur += ch
    if cur.strip(): out.append(cur.strip())
    return out

REG = re.compile(r"^-?\|?(?:abs\()?([vas])(?:(\d+)|\[(\d+):(\d+)\])\)?\|?$")
def regs_of(tok):
    tok = tok.strip()
    if tok in ("vcc",): return {("s", 106), ("s", 107)}
    if tok == "vcc_lo": return {("s", 106)}
    if tok == "vcc_hi": return {("s", 107)}
    if tok == "exec": return {("x", 0)}
    if tok == "m0": return {("m", 0)}
    m = REG.match(tok)
    if not m: return set()
    k = m.group(1)
    if m.group(2) is not None: return {(k, int(m.group(2)))}
    return {(k, i) for i in range(int(m.group(3)), int(m.group(4)) + 1)}

class Ins:
    def __init__(self, text, tag=None):
        self.text = text; self.tag = tag
        t = text.split(";")[0].strip()
        self.label = t.endswith(":")
        self.dst = set(); self.src = set(); self.srcC = set(); self.srcAB = set()
        self.kind = "other"; self.op = ""; self.dpp = False; self.wide_store = set()
        if self.label or not t or t.startswith("."):
            self.kind = "label" if self.label else "dir"; return
        parts = t.split(None, 1)
        op = parts[0]; self.op = op
        rest = parts[1] if len(parts) > 1 else ""
        ops = split_ops(rest)
        mods = ""
        if ops:
            last = ops[-1].split(None, 1)
            if len(last) > 1 and not last[0].endswith("(") :
                ops[-1] = last[0]; mods = last[1]
        self.mods = mods
        R = [regs_of(o) for o in ops]
        allr = lambda lst: set().union(*lst) if lst else set()
        if op.startswith("v_mfma"):
            self.kind = "mfma"; self.dst = R[0]; self.srcAB = R[1] | R[2]; self.srcC = R[3]
            self.src = self.srcAB | self.srcC
            self.passes = 8 if "32x32" in op else 4
            self.dtok = ops[0]; self.ctok = ops[3]
        elif op.startswith("v_"):
            self.kind = "valu"
            self.dpp = ("_dpp" in op) or ("row_" in mods) or ("quad_perm" in mods)
            if op.startswith("v_permlane") and "swap" in op:
                self.dst = R[0] | R[1]; self.src = R[0] | R[1]
            elif op.startswith("v_cmp"):
                self.dst = R[0]; self.src = allr(R[1:])
            elif op.startswith("v_nop"):
                pass
            else:
                self.dst = R[0]; self.src = allr(R[1:])
                if op.startswith(("v_fmac", "v_pk_fmac", "v_dot2c", "v_writelane")) or self.dpp: self.src |= R[0]
                if op.startswith(("v_add_co", "v_addc_co", "v_sub_co", "v_subb_co")):
                    self.dst |= R[1]; self.src = allr(R[2:])
            self.trans = op.replace("_e32", "").replace("_e64", "") in TRANS
        elif op.startswith("ds_"):
            self.kind = "ds"
            if op.startswith(("ds_read", "ds_bpermute", "ds_permute", "ds_swizzle")):
                self.dst = R[0]; self.src = allr(R[1:])
            else:
                self.src = allr(R)
        elif op.startswith(("buffer_", "global_")):
            self.kind = "vm"
            lds = bool(re.search(r"\blds\b", mods)) or "_lds_" in op
            self.lds = lds
            if "load" in op and not lds:
                self.dst = R[0]; self.src = allr(R[1:])
            elif lds:
                self.src = allr(R) | {("m", 0)}
            else:
                self.src = allr(R)
                if "atomic" in op and "sc0" in mods:
                    self.dst = R[0] if op.startswith("buffer") else R[0]
                if "x3" in op or "x4" in op:
                    self.wide_store = R[0] if op.startswith("buffer") else R[1]
        elif op.startswith(("s_load", "s_memtime", "s_memrealtime", "s_buffer_load")):
            self.kind = "smem"; self.dst = R[0]; self.src = allr(R[1:])
        elif op.startswith("s_"):
            self.kind = "salu"
            if op.startswith(NODST_S):
                self.src = allr(R)
            else:
                self.dst = R[0]; self.src = allr(R[1:])
                if op.startswith(("s_cmov", "s_addk", "s_mulk")): self.src |= R[0]
                if "saveexec" in op: self.dst |= {("x", 0)}
        else:
            raise ValueError("unknown instr " + text)

    def states(self):
        if self.kind in ("label", "dir"): return 0
        if self.op == "s_nop": return int(self.text.split()[1], 0) + 1
        return 1

def only(regs, kinds): return {r for r in regs if r[0] in kinds}

class Emitter:
    def __init__(self):
        self.out = []
        self.vm = []
        self.lg = []
        self.nops = 0
        self.tags = {}
    def _wait(self, vm=None, lg=None):
        s = []
        if vm is not None:
            vm = min(vm, 63)
            if vm < len(self.vm):
                s.append(f"vmcnt({vm})"); self.vm = self.vm[len(self.vm) - vm:] if vm else []
        if lg is not None:
            if any(x[2] for x in self.lg): lg = 0
            lg = min(lg, 15)
            if lg < len(self.lg):
                s.append(f"lgkmcnt({lg})"); self.lg = self.lg[len(self.lg) - lg:] if lg else []
        if s: self._raw(Ins("s_waitcnt " + " ".join(s)))
    def wait(self, vm_tag=None, lg_tag=None, vm=None, lg=None):
        if vm_tag is not None:
            idx = [i for i, x in enumerate(self.vm) if x[1] == vm_tag]
            if idx:
                n = len(self.vm) - 1 - idx[-1]; vm = n if vm is None else min(vm, n)
        if lg_tag is not None:
            idx = [i for i, x in enumerate(self.lg) if x[1] == lg_tag]
            if idx:
                n = len(self.lg) - 1 - idx[-1]; lg = n if lg is None else min(lg, n)
        self._wait(vm, lg)
    def _auto(self, ins):
        touch = ins.src | ins.dst
        vm = lg = None
        for i, x in enumerate(self.vm):
            if x[0] & touch: vm = len(self.vm) - 1 - i
        for i, x in enumerate(self.lg):
            if x[0] & touch: lg = len(self.lg) - 1 - i
        if vm is not None or lg is not None: self._wait(vm, lg)
    def _need(self, ins):
        need = 0; dist = 0
        for p in reversed(self.out):
            if dist >= 20: break
            if p.kind == "flush": break
            r = self._rule(p, ins) if ins is not None else self._worst(p)
            if r > dist: need = max(need, r - dist)
            dist += p.states()
        return need
    @staticmethod
    def _worst(p):
        if p.kind == "mfma": return 8 if p.passes == 4 else 12
        if p.kind == "valu": return 5 if only(p.dst, "s") else 2
        if p.kind == "salu" and ("m", 0) in p.dst: return 1
        if p.kind == "vm" and p.wide_store: return 2
        return 0
    @staticmethod
    def _rule(p, c):
        r = 0
        if p.kind == "valu":
            pv = only(p.dst, "va"); ps = only(p.dst, "s")
            if c.kind == "mfma" and pv & c.src: r = max(r, 2)
            if c.kind == "valu":
                if c.dpp and pv & c.src: r = max(r, 2)
                if c.op.startswith("v_permlane") and pv & c.src: r = max(r, 2)
                if c.op.startswith(("v_readlane", "v_readfirstlane")) and pv & c.src: r = max(r, 1)
                if p.trans and not c.trans and pv & c.src: r = max(r, 1)
                if p.trans and c.trans and pv & c.src: r = max(r, 1)
                if ps & c.src: r = max(r, 4 if c.op.startswith(("v_readlane", "v_writelane")) else 2)
                if p.op.startswith("v_dot") and pv & (c.src | c.dst): r = max(r, 3)
            if c.kind in ("vm", "ds") and ps & c.src: r = max(r, 5)
            if p.op.startswith("v_dot") and c.kind in ("vm", "ds", "mfma") and pv & (c.src | c.dst): r = max(r, 3)
            if ("x", 0) in p.dst: r = max(r, 5)
        elif p.kind == "mfma":
            n4 = p.passes == 4
            if c.kind == "mfma":
                if p.dst & c.srcAB: r = max(r, 8 if n4 else 12)
                if p.dst & c.srcC:
                    if not (p.dtok == c.ctok and p.passes == c.passes): r = max(r, 6 if n4 else 10)
                elif p.dst & c.dst: r = max(r, 8 if n4 else 12)
            elif c.kind in ("valu", "vm", "ds"):
                if p.dst & (c.src | c.dst): r = max(r, 8 if n4 else 12)
                if c.kind == "valu" and p.srcC & c.dst: r = max(r, 3 if n4 else 7)
        elif p.kind == "salu":
            if ("m", 0) in p.dst and c.kind == "vm" and c.lds: r = max(r, 1)
        elif p.kind == "vm":
            if p.wide_store & c.dst: r = max(r, 2)
        return r
    def _raw(self, ins):
        self.out.append(ins)
    def _pad(self, n):
        while n > 0:
            k = min(n, 16); self._raw(Ins(f"s_nop {k - 1}")); n -= k; self.nops += k
    def flush(self):
        self._pad(self._need(None))
    def __call__(self, text, tag=None):
        if isinstance(text, (list, tuple)):
            for t in text:
                if isinstance(t, tuple): self(*t)
                elif callable(t): t(self)
                else: self(t)
            return
        if callable(text):
            text(self); return
        ins = Ins(text, tag)
        if ins.kind in ("label", "dir"):
            self._raw(ins); return
        self._auto(ins)
        self._pad(self._need(ins))
        self._raw(ins)
        if tag: self.tags[tag] = self.tags.get(tag, 0) + 1
        if ins.kind == "vm": self.vm.append((set(ins.dst), tag))
        elif ins.kind == "ds": self.lg.append((set(ins.dst), tag, False))
        elif ins.kind == "smem": self.lg.append((set(ins.dst), tag, True))
    def seen(self, tag, n=1):
        assert self.tags.get(tag, 0) >= n, f'{tag} not emitted yet'
    def save(self): return (list(self.vm), list(self.lg), dict(self.tags))
    def restore(self, st):
        self.vm, self.lg, self.tags = list(st[0]), list(st[1]), dict(st[2])
    def text(self):
        return "\n".join(("" if i.kind in ("label", "dir") else "  ") + i.text for i in self.out) + "\n"

def weave(main, side, start=0, per=2, end=None):
    out = []; k = 0; acc = 0.0
    for i, m in enumerate(main):
        out.append(m)
        if i >= start and (end is None or i < end):
            acc += per
            while acc >= 1 - 1e-9 and k < len(side):
                out.append(side[k]); k += 1; acc -= 1
    out.extend(side[k:])
    return out
```

```python
import sys, math, struct, argparse
sys.path.insert(0, "gen")
from asm import *

NAME = "parallel_sum__sliding_local_dilated__dense_activation_gelu__prompt"
STAGE = 43008
XH = 16384
WOFF = 18432
STAT = 126976
PG = {"E0": 131072, "E1": 135168, "S2a": 86016, "S2b": 90112, "S0a": 0, "S0b": 4096, "S1a": 43008, "S1b": 47104}
W2PAGE = ["E0", "E1", "E0", "E1", "S2a", "S2b", "S0a", "S0b", "E0", "E1", "S2a", "S1a", "S1b", "S2b", "S0a"]
TB2 = 81920
REDO = (0, 4096, 43008)
TILEB = 60 * 1024
FLAGOFF = 128 * TILEB
BIG = 0x40000000
NEG = 0xF149F2CA
def f2u(x): return struct.unpack("<I", struct.pack("<f", x))[0]
LOG2E = 1.4426950408889634
C_SM = 0.25 * LOG2E
G0 = -2.0 * math.sqrt(2.0 / math.pi) * LOG2E
G1 = G0 * 0.044715

def vr(b, n=1): return f"v{b}" if n == 1 else f"v[{b}:{b+n-1}]"
def ar(b, n=1): return f"a{b}" if n == 1 else f"a[{b}:{b+n-1}]"
def sr(b, n=1): return f"s{b}" if n == 1 else f"s[{b}:{b+n-1}]"

S_W, S_MT, S_N = 26, 27, 3
SX, SW, SH, SB, SWA, SWB, SO, SD = 28, 32, 36, 40, 44, 48, 52, 84
SB2, SF = 12, 16
S_XR, S_B2O, S_FLP, S_FLC = 8, 9, 20, 21
S_TW, S_TR = 82, 83
S_KB, S_STR64, S_SEGSTEP, S_XBASE, S_KHBASE, S_KX, S_KH, S_KW = 56, 57, 58, 59, 60, 61, 62, 63
S_MX, S_MW, S_MH = 66, 67, 68
S_T = 69
S_M1, S_M2, S_M3, S_MD = 70, 72, 74, 76
S_SEG = 78
S_FFN = 81
S_C = 82
S_STAMP = 88
S2_RB, S2_CB, S2_MW, S2_KW = 6, 7, 10, 11
S2_K4, S2_LAST = 58, 61
def ACC(seg, j): return 4 + (seg * 9 + j) * 4
def ST(i): return 112 + 4 * i
ONES = 132
VX, VH_, VW = 136, 140, 141
V2T = 136
VXA, VXS, VWA = 144, 148, 152
VHS, VTOUCH = 154, 155
RM = 156
T0 = 174
V2W = 244
VG, VT = 248, 249
VEP, VL4 = 240, 241
def XF(b, j): return ar(56 * b + 4 * j, 4)
def XSF(b, i): return ar(56 * b + 36 + 4 * i, 4)
def WF(b, seg): return 56 * b + 44 + 4 * seg
def W2F(ki): return 112 + 16 * ki if ki < 9 else 16 * (ki - 9)

class Cfg:
    rot = 0
    stamps = False
    x = ()

def stamp(e, cfg, name):
    if cfg.stamps and name in cfg.stamps:
        i = cfg.stamps.index(name)
        e(f"{'s_memtime' if 'clk' in cfg.x else 's_memrealtime'} {sr(S_STAMP + 2 * i, 2)}")

def write_stamps(e, cfg, n, off):
    if not cfg.stamps: return
    e.wait(vm=0, lg=0)
    e(f"s_add_u32 s4, s24, {off}"); e("s_addc_u32 s5, s25, 0")
    e("s_mov_b32 s6, 0x10000"); e("s_mov_b32 s7, 0x20000")
    e(f"s_mul_i32 s8, s2, {n * 8}")
    e("v_lshlrev_b32 v1, 20, v0")
    for i in range(n):
        e(f"v_mov_b32 v2, s{S_STAMP + 2 * i}"); e(f"v_mov_b32 v3, s{S_STAMP + 2 * i + 1}")
        e(f"buffer_store_dwordx2 v[2:3], v1, s[4:7], s8 offen offset:{8 * i}")
        e.wait(vm=0)

def srd(d, lo, hi, nrec):
    return [f"s_mov_b32 s{d}, s{lo}", f"s_mov_b32 s{d+1}, s{hi}", f"s_mov_b32 s{d+2}, {nrec}", f"s_mov_b32 s{d+3}, 0x20000"]

def ldsaddr(pair, off, base2=65536):
    return (pair[0], off) if off <= 65535 else (pair[1], off - base2)

def dma_stage(st):
    sb = (st % 3) * STAGE; tag = f"st{st}"
    X = lambda i: (f"buffer_load_dwordx4 v{VX+i}, {sr(SX,4)}, s{S_KX} offen offset:{1024*i} lds", tag)
    W = lambda seg, h: (f"buffer_load_dwordx4 v{VW+h}, {sr(SW,4)}, s{S_KW+seg} offen offset:{1024*h} lds", tag)
    return [
        [f"s_lshl_b32 s{S_T}, s{S_KB}, 7", f"s_add_u32 m0, s{S_MX}, {sb}", f"s_add_u32 s{S_KX}, s{S_T}, s{S_XBASE}", X(0)],
        [f"s_mul_i32 s{S_KW}, s{S_KB}, s{S_STR64}", X(1)],
        [f"s_add_u32 s{S_KH}, s{S_T}, s{S_KHBASE}", X(2)],
        [f"s_add_u32 s{S_KW+1}, s{S_KW}, s{S_SEGSTEP}", X(3)],
        [f"s_add_u32 m0, s{S_MW}, {sb}", f"s_add_u32 s{S_KW+2}, s{S_KW+1}, s{S_SEGSTEP}", W(0, 0)],
        [W(0, 1)],
        [f"s_add_u32 m0, s{S_MW}, {sb + 8192}", f"s_add_u32 s{S_KB}, s{S_KB}, 1", W(1, 0)],
        [W(1, 1)],
        [f"s_add_u32 m0, s{S_MW}, {sb + 16384}", f"s_and_b32 s{S_KB}, s{S_KB}, 7", W(2, 0)],
        [W(2, 1)],
        [f"s_add_u32 m0, s{S_MH}, {sb}", "s_nop 0", (f"buffer_load_dword v{VH_}, {sr(SX,4)}, s{S_KH} offen lds", tag)],
    ]

def w2_dma(ki):
    pg = PG[W2PAGE[ki]]
    first = []
    prev = [k for k in range(ki) if W2PAGE[k] == W2PAGE[ki]]
    if prev: first.append(lambda e, k=prev[-1]: (e.seen(f"w2r_{k}", 8), e.wait(lg_tag=f"w2r_{k}")))
    pre = [f"s_add_u32 m0, s{S2_MW}, {pg}"]
    if ki == 0: srdr, so = SWA, "0"; pre.append("s_nop 0")
    elif ki == 1: srdr, so = SWB, "0"; pre.append("s_nop 0")
    else:
        srdr, so = SWB, f"s{S2_KW}"
        pre.append(f"s_mov_b32 s{S2_KW}, {(ki - 1) * 32768}")
    G = []
    for pc in range(4):
        d = (f"buffer_load_dwordx4 v{V2W+pc}, {sr(srdr,4)}, {so} offen offset:{1024*pc} lds", f"w2_{ki}")
        G.append((first if pc == 0 else []) + pre + [d])
    return G

def w2_read(ki):
    pg = PG[W2PAGE[ki]]
    L = []
    for nt in range(4):
        for h in range(2):
            r, o = ldsaddr((V2T + nt, V2T + 4 + nt), pg + h * 512, TB2)
            L.append((f"ds_read_b64_tr_b16 {ar(W2F(ki)+4*nt+2*h,2)}, v{r} offset:{o}", f"w2r_{ki}"))
    L[0] = [lambda e: (e.seen(f"w2_{ki}", 4), e.wait(vm_tag=f"w2_{ki}")), L[0]]
    return L

def v2t_setup():
    a, b, c = V2T + 4, V2T + 5, V2T + 6
    L = [f"v_bfe_u32 v{a}, v2, 2, 2",
         f"v_lshl_add_u32 v{b}, v{VG}, 3, v{a}",
         f"v_bfe_u32 v{c}, v2, 1, 1",
         f"v_and_b32 v{a}, 2, v{a}", f"v_xor_b32 v{c}, v{c}, v{a}",
         f"v_and_b32 v{a}, 1, v{VG}", f"v_lshlrev_b32 v{a}, 2, v{a}", f"v_xor_b32 v{c}, v{c}, v{a}",
         f"v_and_b32 v{a}, 1, v2", f"v_lshl_add_u32 v{c}, v{c}, 1, v{a}", f"v_lshlrev_b32 v{c}, 3, v{c}",
         f"v_lshl_add_u32 v{c}, v{b}, 7, v{c}",
         f"v_add_u32 v{V2T}, s{S2_MW}, v{c}"]
    for nt in range(1, 4): L.append(f"v_xor_b32 v{V2T+nt}, {32*nt}, v{V2T}")
    for nt in range(4): L.append(f"v_add_u32 v{V2T+4+nt}, {TB2}, v{V2T+nt}")
    return L

def frag_reads(b, slot, ks):
    sb = slot * STAGE
    xa = (VXA + ks, VXA + 2 + ks); xs = (VXS + ks, VXS + 2 + ks); wa = (VWA, VWA + 1)
    def X(j):
        r, o = ldsaddr(xa, sb + j * 2048); return f"ds_read_b128 {XF(b, j)}, v{r} offset:{o}"
    def XS(i):
        r, o = ldsaddr(xs, sb + i * 8192); return f"ds_read_b128 {XSF(b, i)}, v{r} offset:{o}"
    def W(seg, h):
        r, o = ldsaddr(wa, sb + WOFF + seg * 8192 + ks * 4096 + h * 512)
        return f"ds_read_b64_tr_b16 {ar(WF(b, seg) + 2 * h, 2)}, v{r} offset:{o}"
    return [W(0, 0), W(0, 1), X(0), W(1, 0), W(1, 1), W(2, 0), W(2, 1)] + [X(j) for j in range(1, 9)] + [XS(0), XS(1)]

def kstep_mfmas(b, first, attn, stats_first=False):
    M = []
    def mf(d, a, bb): return f"v_mfma_f32_16x16x32_bf16 {vr(d,4)}, {a}, {bb}, {'0' if first else vr(d,4)}"
    for j in range(9):
        for seg in range(3):
            w = ar(WF(b, seg), 4); x = XF(b, j)
            M.append(mf(ACC(seg, j), x, w) if (attn and seg == 2) else mf(ACC(seg, j), w, x))
    S = [mf(ST(0), vr(ONES, 4), XSF(b, 0)), mf(ST(1), XSF(b, 0), XSF(b, 0)),
         mf(ST(2), vr(ONES, 4), XSF(b, 1)), mf(ST(3), XSF(b, 1), XSF(b, 1)),
         mf(ST(4), XF(b, 8), XF(b, 8))]
    return S + M if stats_first else M + S

def prologue1(e, cfg):
    stamp(e, cfg, "start")
    e("s_load_dwordx16 s[4:19], s[0:1], 0")
    e("s_load_dwordx4 s[20:23], s[0:1], 64")
    e("s_load_dwordx2 s[24:25], s[0:1], 80")
    e("s_cmp_ge_u32 s2, 256")
    e("s_cbranch_scc1 L_end")
    if "code" in cfg.x:
        e("s_getpc_b64 s[84:85]")
        e("L_pc:")
        e("v_lshrrev_b32 v1, 6, v0"); e("v_and_b32 v2, 63, v0")
        e("s_lshr_b32 s70, s2, 3"); e("s_lshl_b32 s70, s70, 8")
        e("v_lshlrev_b32 v1, 6, v1"); e("v_lshl_add_u32 v1, v2, 13, v1")
        e("s_mov_b32 s86, L_end-L_pc"); e("s_mov_b32 s87, 0x20000")
        e(f"buffer_load_dword v{T0+12}, v1, s[84:87], s70 offen", "code")
    e("s_and_b32 s69, s2, 7")
    e("s_lshr_b32 s70, s2, 3")
    e("v_lshrrev_b32 v1, 6, v0")
    e("v_and_b32 v2, 63, v0")
    e("s_and_b32 s71, s69, 1")
    e("s_lshl_b32 s71, s71, 3")
    e(f"v_readfirstlane_b32 s{S_W}, v1")
    e("s_and_b32 s72, s70, 7")
    e(f"s_add_u32 s{S_MT}, s71, s72")
    e("s_lshr_b32 s72, s70, 3")
    e("s_and_b32 s73, s69, 6")
    e("s_and_b32 s74, s72, 1")
    e("s_add_u32 s73, s73, s74")
    e(f"s_lshr_b32 s{S_FFN}, s72, 1")
    e(f"s_lshl_b32 s75, s{S_FFN}, 3")
    e(f"s_add_u32 s{S_N}, s73, s75")
    if cfg.rot:
        e("s_lshl_b32 s72, s72, 1")
        e(f"s_add_u32 s72, s72, s{S_MT}")
        e(f"s_and_b32 s{S_KB}, s72, 7")
    else:
        e(f"s_mov_b32 s{S_KB}, 0")
    e("v_lshrrev_b32 v3, 3, v2")
    e(f"v_lshrrev_b32 v{VG}, 4, v2")
    e("v_and_b32 v5, 7, v2")
    e(f"v_xor_b32 v6, v{VG}, v5")
    e("v_lshlrev_b32 v6, 4, v6")
    e("v_lshl_add_u32 v6, v3, 11, v6")
    e(f"v_lshl_add_u32 v{VX}, v1, 16, v6")
    e(f"v_xor_b32 v7, 64, v{VX}")
    e(f"v_add_u32 v{VX+1}, {16384 - 1024}, v7")
    e(f"v_add_u32 v{VX+2}, {32768 - 2048}, v{VX}")
    e(f"v_add_u32 v{VX+3}, {49152 - 3072}, v7")
    e(f"s_lshr_b32 s75, s{S_MT}, 1")
    e("s_lshl_b32 s76, s75, 18")
    e(f"s_and_b32 s77, s{S_MT}, 1")
    e("s_lshl_b32 s77, s77, 10")
    e(f"s_add_u32 s{S_XBASE}, s76, s77")
    e(f"s_sub_u32 s{S_KHBASE}, s{S_XBASE}, 16384")
    e("s_cmp_eq_u32 s75, 0")
    e(f"s_cmov_b32 s{S_KHBASE}, {BIG}")
    e(f"s_lshl_b32 s{S_MX}, s{S_W}, 12")
    e(f"s_lshl_b32 s{S_MW}, s{S_W}, 11")
    e(f"s_add_u32 s{S_MW}, s{S_MW}, {WOFF}")
    e(f"s_lshl_b32 s{S_MH}, s{S_W}, 8")
    e(f"s_add_u32 s{S_MH}, s{S_MH}, {XH + 1024}")
    e(f"s_cmp_eq_u32 s{S_FFN}, 0")
    e("s_mov_b32 s76, 2752"); e("s_cmov_b32 s76, 3072")
    e(f"s_mov_b32 s{S_SEGSTEP}, 128"); e(f"s_cmov_b32 s{S_SEGSTEP}, 1024")
    e("s_mov_b32 s77, 384"); e("s_cmov_b32 s77, 128")
    e(f"s_mov_b32 s{SW+2}, {512 * 2752}"); e(f"s_cmov_b32 s{SW+2}, {512 * 3072}")
    e("s_mul_i32 s77, s77, s73")
    e(f"s_lshl_b32 s{S_STR64}, s76, 6")
    e(f"s_sub_u32 s{SW+2}, s{SW+2}, s77")
    e(f"s_mov_b32 s{SW+3}, 0x20000")
    e("v_lshl_add_u32 v8, v1, 4, v3")
    e("v_mul_u32_u24 v8, s76, v8")
    e(f"v_and_b32 v9, 1, v{VG}")
    e("v_lshlrev_b32 v9, 1, v9")
    e("v_xor_b32 v9, v9, v5")
    e("v_lshlrev_b32 v10, 4, v9")
    e(f"v_add_u32 v{VW}, v8, v10")
    e("v_xor_b32 v9, 64, v10")
    e("s_lshl_b32 s78, s76, 3")
    e("s_sub_u32 s78, s78, 1024")
    e(f"v_add3_u32 v{VW+1}, v8, v9, s78")
    e("v_lshrrev_b32 v8, 5, v2")
    e("v_lshl_add_u32 v8, v1, 1, v8")
    e("v_bfe_u32 v9, v2, 2, 3")
    e("v_xor_b32 v9, v9, v1")
    e("v_xor_b32 v9, 4, v9")
    e("v_and_b32 v11, 3, v2")
    e("v_lshl_add_u32 v9, v9, 2, v11")
    e("v_lshlrev_b32 v9, 2, v9")
    e(f"v_lshl_add_u32 v{VH_}, v8, 11, v9")
    e(f"s_mov_b32 s{SX+2}, 0x200000"); e(f"s_mov_b32 s{SX+3}, 0x20000")
    e.wait(lg=0)
    e(f"s_mov_b32 s{SX}, s4"); e(f"s_mov_b32 s{SX+1}, s5")
    e(f"s_cmp_eq_u32 s{S_FFN}, 0")
    e(f"s_cselect_b32 s{SW}, s6, s12"); e(f"s_cselect_b32 s{SW+1}, s7, s13")
    e(f"s_add_u32 s{SW}, s{SW}, s77"); e(f"s_addc_u32 s{SW+1}, s{SW+1}, 0")
    stamp(e, cfg, "karg")
    L = []
    A = L.append
    if "mall" in cfg.x:
        A("s_and_b32 s74, s2, 1"); A("s_lshl_b32 s74, s74, 7"); A("s_bfe_u32 s75, s2, 0x20001"); A("s_lshl_b32 s75, s75, 5")
        A("s_add_u32 s74, s74, s75"); A("s_add_u32 s74, s74, s70")
        A([f"s_cmp_eq_u32 s{S_W}, 0", "s_cselect_b32 s76, s4, s6", "s_cselect_b32 s77, s5, s7", "s_cselect_b32 s75, 64, 48"])
        A([f"s_cmp_eq_u32 s{S_W}, 2", "s_cselect_b32 s76, s12, s76", "s_cselect_b32 s77, s13, s77", "s_cselect_b32 s75, 43, s75"])
        A([f"s_cmp_eq_u32 s{S_W}, 3", "s_cselect_b32 s76, s16, s76", "s_cselect_b32 s77, s17, s77", "s_cselect_b32 s75, 43, s75"])
        A("s_mul_i32 s72, s74, s75"); A("s_sub_u32 s75, s75, 1")
        A("v_min_u32 v12, s75, v2"); A("v_add_lshl_u32 v12, v12, s72, 7")
        A("s_lshl_b32 s74, s74, 4"); A("v_lshrrev_b32 v13, 4, v0"); A("v_add_lshl_u32 v13, v13, s74, 7")
        A(("M", [(f"global_load_dword v{T0+30}, v12, s[76:77]", "touch")]))
        A(("M", [(f"global_load_dword v{T0+31}, v13, s[8:9]", "touch")]))
    A("s_and_b32 s4, s2, 7"); A("s_lshl_b32 s4, s4, 2"); A("s_and_b32 s5, s70, 3")
    A(f"s_add_u32 s{S2_RB}, s4, s5")
    A(f"s_lshr_b32 s{S2_CB}, s70, 2")
    A(f"s_lshl_b32 s72, s{S2_CB}, 7")
    A(f"s_mul_i32 s12, s{S_W}, {15 * 32768}")
    A("s_add_u32 s12, s12, s72")
    A(f"s_sub_u32 s13, s12, {16 * 32768}")
    A([f"s_cmp_lt_u32 s{S_W}, 2", f"s_cselect_b32 s{SWA}, s8, s16", f"s_cselect_b32 s{SWA+1}, s9, s17",
       "s_cselect_b32 s75, s12, s13", f"s_mov_b32 s76, {1376 * 1024}", f"s_cmov_b32 s76, {512 * 1024}"])
    A([f"s_add_u32 s{SWA}, s{SWA}, s75", f"s_addc_u32 s{SWA+1}, s{SWA+1}, 0"])
    A(f"s_sub_u32 s{SWA+2}, s76, s75"); A(f"s_mov_b32 s{SWA+3}, 0x20000")
    A("s_add_u32 s12, s12, 32768"); A("s_add_u32 s13, s13, 32768")
    A([f"s_cmp_lt_u32 s{S_W}, 1", f"s_cselect_b32 s{SWB}, s8, s16", f"s_cselect_b32 s{SWB+1}, s9, s17",
       "s_cselect_b32 s75, s12, s13", f"s_mov_b32 s76, {1376 * 1024}", f"s_cmov_b32 s76, {512 * 1024}"])
    A([f"s_add_u32 s{SWB}, s{SWB}, s75", f"s_addc_u32 s{SWB+1}, s{SWB+1}, 0"])
    A(f"s_sub_u32 s{SWB+2}, s76, s75"); A(f"s_mov_b32 s{SWB+3}, 0x20000")
    A(f"s_lshl_b32 s{S2_MW}, s{S_W}, 13")
    A(f"v_lshl_add_u32 v{V2W}, v3, 10, v10")
    A(f"v_xor_b32 v12, 64, v{V2W}")
    A(f"v_add_u32 v{V2W+1}, 7168, v12"); A(f"v_add_u32 v{V2W+2}, {2*7168}, v{V2W}"); A(f"v_add_u32 v{V2W+3}, {3*7168}, v12")
    A("s_lshl_b32 s5, s5, 3")
    A("v_add_u32 v12, s5, v2")
    A(f"v_lshlrev_b32 v12, 10, v12")
    A([f"v_cmp_gt_u32 vcc, 8, v2", f"v_cndmask_b32 v{VTOUCH}, -1, v12, vcc"])
    for x in srd(SB, 14, 15, 2752): A(x)
    for x in srd(SB2, 18, 19, 1024): A(x)
    for x in srd(SF, 24, 25, FLAGOFF + 2048): A(x)
    for x in srd(SD, 22, 23, 256): A(x)
    A(f"v_and_b32 v{VT}, 15, v2")
    A(f"v_lshlrev_b32 v{VL4}, 2, v{VT}")
    A(f"s_mov_b32 s{S_B2O}, s72")
    A(f"s_lshr_b32 s74, s{S2_RB}, 2"); A("s_lshl_b32 s74, s74, 18")
    A(f"s_lshr_b32 s75, s{S2_RB}, 1"); A("s_and_b32 s75, s75, 1"); A("s_lshl_b32 s75, s75, 10"); A("s_add_u32 s74, s74, s75")
    A(f"s_and_b32 s75, s{S2_RB}, 1"); A("s_lshl_b32 s75, s75, 2"); A(f"s_add_u32 s75, s75, s{S_W}"); A("s_lshl_b32 s75, s75, 15")
    A("s_add_u32 s74, s74, s75")
    A(f"s_add_u32 s{S_XR}, s74, s72")
    A([f"s_add_u32 s{SO}, s20, s{S_XR}", f"s_addc_u32 s{SO+1}, s21, 0"])
    A(f"s_sub_u32 s{SO+2}, 0x200000, s{S_XR}"); A(f"s_mov_b32 s{SO+3}, 0x20000")
    A(f"s_lshl_b32 s{S_FLP}, s{S_MT}, 7"); A(f"s_add_u32 s{S_FLP}, s{S_FLP}, {FLAGOFF}")
    A(f"s_lshr_b32 s75, s{S2_RB}, 1"); A(f"s_lshl_b32 s{S_FLC}, s75, 7"); A(f"s_add_u32 s{S_FLC}, s{S_FLC}, {FLAGOFF}")
    A(f"s_mul_i32 s75, s{S_MT}, {8 * TILEB}")
    A([f"s_cmp_eq_u32 s{S_FFN}, 0", "s_mov_b32 s76, 6144", "s_cmov_b32 s76, 2048"])
    A("s_mul_i32 s76, s76, s73")
    A(f"s_lshl_b32 s77, s{S_FFN}, 14")
    A("s_add_u32 s74, s75, s76")
    A("s_add_u32 s74, s74, s77")
    A([f"s_add_u32 s{SH}, s24, s74", f"s_addc_u32 s{SH+1}, s25, 0"])
    A(f"s_mov_b32 s{SH+2}, {8 * TILEB}"); A(f"s_mov_b32 s{SH+3}, 0x20000")
    A(f"s_mul_i32 s76, s{S2_RB}, {4 * TILEB}")
    A(f"v_and_b32 v12, 7, v2"); A(f"v_mul_u32_u24 v{T0+3}, {TILEB}, v12")
    na = len(L)
    for i in range(4): A(f"v_mov_b32 v{ONES+i}, 0x3f803f80")
    A("v_lshlrev_b32 v8, 2, v0")
    A(f"v_add_u32 v9, {2 * STAGE}, v8")
    A(f"ds_write_b32 v8, v{ONES} offset:{XH}")
    A(f"ds_write_b32 v8, v{ONES} offset:{STAGE + XH}")
    A(f"ds_write_b32 v9, v{ONES} offset:{XH}")
    A("v_bfe_u32 v12, v2, 1, 3")
    A(f"v_xor_b32 v12, v12, v{VG}")
    A("v_lshlrev_b32 v12, 4, v12")
    A(f"v_lshl_add_u32 v{VXA}, v{VT}, 7, v12")
    A(f"v_xor_b32 v{VXA+1}, 64, v{VXA}")
    A(f"v_add_u32 v{VXA+2}, 0x10000, v{VXA}")
    A(f"v_add_u32 v{VXA+3}, 0x10000, v{VXA+1}")
    for i in range(4): A(f"v_lshl_add_u32 v{VXS+i}, v1, 11, v{VXA+i}")
    A("v_bfe_u32 v15, v2, 2, 2")
    A(f"v_lshl_add_u32 v12, v{VG}, 3, v15")
    A("v_bfe_u32 v13, v2, 1, 1")
    A("v_lshl_add_u32 v13, v1, 1, v13")
    A("v_and_b32 v14, 2, v15")
    A("v_xor_b32 v13, v13, v14")
    A(f"v_and_b32 v14, 1, v{VG}")
    A("v_lshlrev_b32 v14, 2, v14")
    A("v_xor_b32 v13, v13, v14")
    A("v_and_b32 v14, 1, v2")
    A("v_lshl_add_u32 v13, v13, 1, v14")
    A("v_lshlrev_b32 v13, 3, v13")
    A(f"v_lshl_add_u32 v{VWA}, v12, 7, v13")
    A(f"v_add_u32 v{VWA+1}, 0x10000, v{VWA}")
    A(f"v_and_b32 v16, 1, v{VG}")
    A(f"v_mul_u32_u24 v16, {TILEB}, v16")
    A("v_and_b32 v12, 1, v1")
    A("v_lshlrev_b32 v12, 1, v12")
    A(f"v_lshrrev_b32 v13, 1, v{VG}")
    A("v_add_u32 v12, v12, v13")
    A("v_lshl_add_u32 v16, v12, 8, v16")
    A(f"v_lshl_add_u32 v16, v{VT}, 4, v16")
    A("v_lshrrev_b32 v12, 1, v1")
    A(f"v_lshl_add_u32 v{VHS}, v12, 10, v16")
    M = []
    A = M.append
    A(f"v_cmp_eq_u32 {sr(S_M1,2)}, 1, v11")
    A(f"v_cmp_eq_u32 {sr(S_M2,2)}, 2, v11")
    A(f"v_cmp_eq_u32 {sr(S_M3,2)}, 3, v11")
    A(f"v_cmp_eq_u32 {sr(S_MD,2)}, v15, v{VG}")
    A(f"v_lshl_add_u32 v12, v1, 4, v{VT}")
    A(f"v_lshlrev_b32 v13, 3, v12")
    A(f"v_add_u32 v13, {STAT}, v13")
    A(f"v_lshlrev_b32 v14, 2, v12")
    A(f"v_add_u32 v14, {STAT + 1152}, v14")
    A(f"v_lshlrev_b32 v250, 3, v{VT}")
    A(f"v_add_u32 v15, {STAT + 1024}, v250")
    A(f"v_add_u32 v16, {STAT + 1152 + 512}, v{VL4}")
    A(f"v_mov_b32 v17, {STAT + 2304}")
    for i in range(4): A(f"v_cndmask_b32 v{252+i}, v17, v{13+i}, {sr(S_MD,2)}")
    A(f"v_add_u32 v250, {STAT}, v250")
    A(f"v_lshlrev_b32 v251, 4, v{VG}"); A(f"v_add_u32 v251, {STAT + 1152}, v251")
    D = dma_stage(0) + dma_stage(1)
    L.insert(na, f"v_add_u32 v{T0+3}, {59*1024 - 59*1024 % 4096}, v{T0+3}")
    L.insert(na, f"s_mov_b32 s{S_TW}, s75"); L.insert(na, f"s_mov_b32 s{S_TR}, s76")
    L += M
    mi = [i for i, x in enumerate(L) if isinstance(x, tuple) and x[0] == "M"]
    if mi:
        pre = [x for x in L[:mi[0]]]; post = L[mi[-1] + 1:]; mt = [L[i][1] for i in mi]
        at = cfg.mallat
        e(weave(D[:at], pre, start=2, per=max(1, len(pre) / (at - 2))))
        e(mt)
        e(weave(D[at:], post, start=0, per=len(post) / max(1, len(D) - at)))
    else:
        e(weave(D, L, start=2, per=len(L) / (len(D) - 2)))
    stamp(e, cfg, "pro")
    e(f"s_cmp_eq_u32 s{S_FFN}, 0")
    e.flush()
    e("s_cbranch_scc0 L_ffn")

def leader():
    a, b = T0, T0 + 1
    L = [f"v_lshlrev_b32 v{a}, v{a}, 1"]
    for r in (8, 4, 2, 1): L.append(f"v_or_b32_dpp v{a}, v{a}, v{a} row_ror:{r} row_mask:0xf bank_mask:0xf")
    L += [f"v_readfirstlane_b32 s4, v{a}", f"s_lshl_b32 s5, s{S_MT}, 2", f"v_lshlrev_b32 v{b}, 20, v0",
          [f"s_cmp_lg_u32 s{S_N}, 0", f"s_cmov_b32 s5, {BIG}"],
          "s_ff0_i32_b32 s4, s4", "s_or_b32 s4, s4, 0x100", f"v_mov_b32 v{a}, s4",
          (f"buffer_store_dword v{a}, v{b}, {sr(SD,4)}, s5 offen sc1", "ep")]
    return L

def stats_side(attn):
    L = []
    t = T0
    for i, sq in enumerate((1, 3, 4)):
        d = t + i
        L.append(f"v_cndmask_b32 v{d}, v{ST(sq)}, v{ST(sq)+1}, {sr(S_M1,2)}")
        L.append(f"v_cndmask_b32 v{d}, v{d}, v{ST(sq)+2}, {sr(S_M2,2)}")
        L.append(f"v_cndmask_b32 v{d}, v{d}, v{ST(sq)+3}, {sr(S_M3,2)}")
    L.append(f"v_permlane32_swap_b32 v{ST(4)}, v{ST(4)+1}")
    sums = (ST(0), ST(2), ST(4))
    inv = f2u(1.0 / 512)
    for i in range(3): L.append(f"v_mul_f32 v{t+3+i}, 0x{inv:x}, v{sums[i]}")
    for i in range(3): L.append(f"v_mul_f32 v{t+i}, 0x{inv:x}, v{t+i}")
    for i in range(3): L.append(f"v_fma_f32 v{t+i}, -v{t+3+i}, v{t+3+i}, v{t+i}")
    for i in range(3): L.append(f"v_max_f32 v{t+i}, 0, v{t+i}")
    for i in range(3): L.append(f"v_cvt_pk_bf16_f32 v{t+i}, v{t+3+i}, v{t+i}")
    for i in range(3): L.append(f"v_lshlrev_b32 v{t+3+i}, 16, v{t+i}")
    for i in range(3): L.append(f"v_and_b32 v{t+i}, 0xffff0000, v{t+i}")
    for i in range(3): L.append(f"v_add_f32 v{t+i}, 0x{f2u(1e-5):x}, v{t+i}")
    for i in range(3): L.append(f"v_cvt_pk_bf16_f32 v{t+i}, v{t+i}, v{t+i}")
    for i in range(3): L.append(f"v_and_b32 v{t+i}, 0xffff0000, v{t+i}")
    for i in range(3): L.append(f"v_sqrt_f32 v{t+i}, v{t+i}")
    for i in range(3): L.append(f"v_cvt_pk_bf16_f32 v{t+i}, v{t+i}, v{t+i}")
    for i in range(3): L.append(f"v_and_b32 v{t+i}, 0xffff0000, v{t+i}")
    for i in range(3): L.append(f"v_rcp_f32 v{t+6+2*i}, v{t+i}")
    for i in range(3): L.append(f"v_mul_f32 v{t+7+2*i}, -v{t+3+i}, v{t+6+2*i}")
    L.append(f"ds_write_b64 v252, {vr(t+6,2)}")
    L.append(f"ds_write_b64 v252, {vr(t+8,2)} offset:512")
    L.append(f"ds_write_b64 v254, {vr(t+10,2)}")
    if attn:
        L.append(f"ds_write2_b32 v253, v{t+6}, v{t+7} offset0:0 offset1:144")
        L.append(f"ds_write2_b32 v253, v{t+8}, v{t+9} offset0:64 offset1:208")
        L.append(f"ds_write2_b32 v255, v{t+10}, v{t+11} offset0:0 offset1:144")
    L.append([lambda e: e.wait(lg=0), "s_barrier"])
    for j in range(9):
        L.append(f"ds_read_b64 {vr(RM+2*j,2)}, v250 offset:{128*j}")
    return L

def kstep(e, M, reads=(), dmas=(), extra=(), bar=None, extra_start=None, extra_per=1):
    n = len(M)
    slots = [[] for _ in range(n)]
    i0 = 0
    if bar: slots[1] += bar; i0 = 1
    for i, r in enumerate(reads): slots[min(i0 + i, n - 1)].append(r)
    if dmas:
        span = n - 1 - (i0 + 1)
        for g, d in enumerate(dmas):
            slots[i0 + 1 + int(g * span / len(dmas))].append(d)
    xs = (i0 + len(reads)) if extra_start is None else extra_start
    for i, x in enumerate(extra): slots[min(xs + int(i / extra_per), n - 1)].append(x)
    for m, s in zip(M, slots):
        e(m); e(s)

def mainloop(e, cfg, attn):
    e.wait(vm_tag="st0", lg=0)
    e("s_barrier")
    stamp(e, cfg, "loop")
    e(frag_reads(0, 0, 0))
    st = {s: dma_stage(s) for s in range(2, 8)}
    w2d = {k: w2_dma(k) for k in range(15)}
    pro = "w2pro" in cfg.x
    dm = {0: st[2][:8], 1: st[2][8:] + st[3][:5], 2: st[3][5:], 3: st[4][:6], 4: st[4][6:], 5: st[5][:6], 6: st[5][6:],
          7: st[6][:6], 8: st[6][6:], 9: st[7][:6], 10: st[7][6:]}
    ex = {k: [] for k in range(16)}
    ex[3] = leader()
    ex[11] = v2t_setup()
    P = cfg.pace
    def ins(k, items, at=None):
        d = dm.setdefault(k, [])
        for it in items:
            d.insert(len(d) // 2 if at is None else at, it)
    def touch(ki):
        srdr, so, pre = (SWA, "0", []) if ki == 0 else (SWB, "s22", [f"s_mov_b32 s22, {(ki - 1) * 32768}"])
        return pre + [(f"buffer_load_dword v{T0+13+ki}, v{VTOUCH}, {sr(srdr,4)}, {so} offen {cfg.tmod}", "touch")]
    stale = [(f"buffer_load_dword v{T0}, v{VL4}, {sr(SF,4)}, s{S_FLP} offen sc1", "stale")]
    tlb = [[(f"buffer_load_dword v{T0+8}, v{T0+3}, {sr(SF,4)}, s{S_TW} offen offset:{59*1024 % 4096} sc1", "touch")],
           [(f"buffer_load_dword v{T0+9}, v{T0+3}, {sr(SF,4)}, s{S_TR} offen offset:{59*1024 % 4096} sc1", "touch")],
           [(f"buffer_load_dword v{T0+10}, v{VL4}, {sr(SO,4)}, 0 offen", "touch")],
           [(f"buffer_load_dword v{T0+11}, v{VL4}, {sr(SB2,4)}, 0 offen", "touch")]]
    dm[0] = dm[0] + [stale]
    if "tlb" in cfg.x:
        for i, t in enumerate(tlb): ins(2 + 2 * i, [t])
    if pro:
        pieces = w2d[0] + w2d[1]
        for i, pc in enumerate(pieces): dm[2 + i] = dm[2 + i] + [pc]
        ex[11] += w2_read(0); ex[12] = w2_read(1)
        order = [4, 5, 2, 3, 6, 7, 8, 9, 10, 11, 12, 13, 14]
        ex[13] = w2_read(4); ex[14] = w2_read(2) ; rd15 = w2_read(3)
        done = {0, 1, 4, 2, 3}
    else:
        order = [0, 1, 4, 5, 6, 7, 2, 3, 8, 9, 10, 11, 12, 13, 14]
        ex[13] = w2_read(0); ex[14] = w2_read(1); rd15 = w2_read(4)
        done = {0, 1, 4}
    q = []
    for k in order: q += w2d[k]
    tq = []
    if "touch" in cfg.x:
        n = cfg.tsteps
        for i, ki in enumerate(order): tq.append((int(i * n / len(order)) + cfg.tstart, touch(ki)))
    pos = 0
    for k in range(11, 16):
        dm[k] = q[pos:pos + P]; pos += P
    for k, t in tq: ins(k, [t])
    epl = (f"buffer_load_dword v{VEP}, v{VL4}, {sr(SD,4)}, 0 offen sc1", "epl")
    ex[10] = [epl]
    for k in range(16):
        b = k & 1; s = k >> 1
        last = k == 15
        M = kstep_mfmas(b, k == 0, attn, stats_first=last)
        per = 2 if len(ex[k]) > 12 else 1
        if last:
            kstep(e, M, reads=rd15, dmas=dm[k], extra=stats_side(attn), extra_start=9, extra_per=3)
        elif b == 0:
            kstep(e, M, reads=frag_reads(1, s % 3, 1), dmas=dm[k], extra=ex[k], extra_per=per)
        else:
            bar = [lambda e, s=s: e.wait(vm_tag=f"st{s+1}", lg=0), "s_barrier", lambda e, k=k: stamp(e, cfg, f"k{k}")]
            kstep(e, M, reads=frag_reads(0, (s + 1) % 3, 0), dmas=dm[k], extra=ex[k], bar=bar, extra_per=per)
    stamp(e, cfg, "lend")
    rest = []
    xr = [f"v_lshlrev_b32 v{VXA}, 3, v{VG}", f"v_lshl_add_u32 v{VXA+1}, v{VT}, 11, v{VXA}"]
    for nt in range(4): xr.append((f"buffer_load_dwordx2 {ar(96+2*nt,2)}, v{VXA+1}, {sr(SX,4)}, s{S_XR} offen offset:{32*nt}", "xr"))
    for nt in range(4): xr.append((f"buffer_load_dwordx2 {ar(104+2*nt,2)}, v{VXA}, {sr(SB2,4)}, s{S_B2O} offen offset:{32*nt}", "xr"))
    issued = pos // 4
    items = []
    i = pos
    while i < len(q):
        ko = order[i // 4]
        if i % 4 == 0:
            prev = [k for k in order[:i // 4] if W2PAGE[k] == W2PAGE[ko] and k not in done]
            for k in prev:
                items += w2_read(k); done.add(k)
        items.append(q[i]); i += 1
    late = []
    for k in order:
        if k not in done: late += w2_read(k)
    return xr + items, late

XOPT = []
def hstore(quad, seg, jp):
    if "nohs" in XOPT: return [f"s_add_u32 s{S_T}, s{S_SEG+seg}, {jp * 2 * TILEB}", "s_nop 0"]
    return [f"s_add_u32 s{S_T}, s{S_SEG+seg}, {jp * 2 * TILEB}",
            (f"buffer_store_dwordx4 {vr(quad,4)}, v{VHS}, {sr(SH,4)}, s{S_T} offen {'' if 'nosc1' in XOPT else 'sc1'}", "hs")]

F_A, F_Q, F_BB, F_CS, F_B1, F_G = 174, 182, 190, 202, 214, 220
def ffn_pre(e, cfg):
    e(f"s_sub_u32 s4, s{S_N}, 8")
    e(f"s_mul_i32 s5, s4, 384")
    e("v_lshlrev_b32 v3, 5, v1")
    e(f"v_lshl_add_u32 v3, v{VG}, 3, v3")
    for seg in range(3):
        e(f"buffer_load_dwordx2 {vr(F_B1+2*seg,2)}, v3, {sr(SB,4)}, s5 offen offset:{128*seg}")
    e(f"s_mul_i32 s4, s4, 12")
    e(f"s_add_u32 s4, s4, s{S_W}")
    for seg in range(3):
        e(f"s_mov_b32 s{S_SEG+seg}, {BIG}")
        e(f"s_cmp_lt_u32 s4, {86 - 4*seg}")
        e(f"s_cmov_b32 s{S_SEG+seg}, {2048*seg}")
    e(f"v_mov_b32 v{F_G}, 0x{f2u(G1):x}"); e(f"v_mov_b32 v{F_G+1}, 0x{f2u(G0):x}")

def ffn_epilogue(cfg):
    L = []; E = L.append
    BB, CS = F_BB, F_CS
    for seg in range(3):
        for h in range(2):
            E(f"v_lshlrev_b32 v{BB+4*seg+2*h}, 16, v{F_B1+2*seg+h}")
            E(f"v_and_b32 v{BB+4*seg+2*h+1}, 0xffff0000, v{F_B1+2*seg+h}")
    for seg in range(3):
        for r in range(4):
            E(f"v_mov_b32_dpp v{CS+4*seg+r}, v{ACC(seg,8)+r} row_newbcast:0 row_mask:0xf bank_mask:0xf")
    G = vr(F_G, 2)
    for seg in range(3):
        E(lambda e, seg=seg: stamp(e, cfg, f"e{seg}"))
        for jp in range(4):
            A = F_A; Q = F_Q + 4 * ((seg * 4 + jp) & 1)
            P = []
            for u in range(2):
                j = 2 * jp + u
                for h in range(2):
                    P.append((ACC(seg, j) + 2 * h, RM + 2 * j, CS + 4 * seg + 2 * h, BB + 4 * seg + 2 * h, 2 * u + h))
            for a, rm, cs, bb, i in P:
                E(f"v_pk_fma_f32 {vr(A+2*i,2)}, {vr(rm,2)}, {vr(cs,2)}, {vr(bb,2)} op_sel:[1,0,0] op_sel_hi:[1,1,1]")
            for a, rm, cs, bb, i in P:
                E(f"v_pk_fma_f32 {vr(a,2)}, {vr(rm,2)}, {vr(a,2)}, {vr(A+2*i,2)} op_sel:[0,0,0] op_sel_hi:[0,1,1]")
            for a, rm, cs, bb, i in P:
                E(f"v_pk_mul_f32 {vr(A+2*i,2)}, {vr(a,2)}, {vr(a,2)}")
            for a, rm, cs, bb, i in P:
                E(f"v_pk_fma_f32 {vr(A+2*i,2)}, {vr(A+2*i,2)}, {G}, {G} op_sel:[0,0,1] op_sel_hi:[1,0,1]")
            for a, rm, cs, bb, i in P:
                E(f"v_pk_mul_f32 {vr(A+2*i,2)}, {vr(A+2*i,2)}, {vr(a,2)}")
            for i in range(8): E(f"v_exp_f32 v{A+i}, v{A+i}")
            for i in range(4): E(f"v_pk_add_f32 {vr(A+2*i,2)}, {vr(A+2*i,2)}, 1.0 op_sel_hi:[1,0]")
            for i in range(8): E(f"v_rcp_f32 v{A+i}, v{A+i}")
            for a, rm, cs, bb, i in P:
                E(f"v_pk_mul_f32 {vr(A+2*i,2)}, {vr(A+2*i,2)}, {vr(a,2)}")
            for i in range(4): E(f"v_cvt_pk_bf16_f32 v{Q+i}, v{A+2*i}, v{A+2*i+1}")
            st = hstore(Q, seg, jp)
            E(st[0]); E("s_nop 0")
            E(f"v_permlane16_swap_b32 v{Q}, v{Q+2}")
            E(f"v_permlane16_swap_b32 v{Q+1}, v{Q+3}")
            E(st[1])
    return L

CSQ, CSK, CSV, VHH, R4, TT = 174, 178, 182, 184, 202, 218
CCUR, CPREV, CFIRST, MPREV = 226, 230, 234, 238
def attn_pre(e, cfg):
    e(f"v_mov_b32 v3, 0x{NEG:x}")
    e("v_mov_b32 v5, 0xffff"); e("v_mov_b32 v6, 0xffff0000")
    e(f"v_lshlrev_b32 v7, 2, v{VG}")
    e(f"v_sub_u32 v7, v{VT}, v7")
    e(f"s_lshr_b32 s4, s{S_MT}, 1")
    e(f"s_cmp_eq_u32 s4, 0")
    e("s_cselect_b64 s[4:5], 0, -1")
    for r in range(4):
        e(f"v_subrev_u32 v8, {r}, v7")
        e("v_cmp_gt_u32 vcc, 8, v8")
        e("v_cmp_gt_i32 s[22:23], -8, v8")
        e("s_nop 0")
        e(f"v_cndmask_b32 v{CCUR+r}, v3, 0, vcc")
        e(f"v_cndmask_b32 v{CPREV+r}, v3, 0, s[22:23]")
        e(f"v_cndmask_b32 v{9+r}, 0, v{5+(r&1)}, s[22:23]")
        e(f"v_cndmask_b32 v{CFIRST+r}, v3, v{CPREV+r}, s[4:5]")
    e(f"v_or_b32 v{MPREV}, v9, v10"); e(f"v_or_b32 v{MPREV+1}, v11, v12")
    e(f"s_mov_b32 s{S_SEG}, 0")

def attn_epilogue(cfg):
    L = []; E = L.append
    def rd4(j, b):
        return [f"ds_read_b128 {vr(R4+8*b,4)}, v251 offset:{64*j}",
                f"ds_read_b128 {vr(R4+8*b+4,4)}, v251 offset:{64*j+576}"]
    L += rd4(8, 0) + rd4(0, 1)
    E(f"s_mov_b32 s{S_C}, 0x{f2u(C_SM):x}"); E(f"s_mov_b32 s{S_C+1}, 0x{f2u(C_SM):x}")
    for r in range(4):
        E(f"v_mov_b32_dpp v{CSQ+r}, v{ACC(0,8)+r} row_newbcast:0 row_mask:0xf bank_mask:0xf")
        E(f"v_mov_b32_dpp v{CSK+r}, v{ACC(1,8)+r} row_newbcast:0 row_mask:0xf bank_mask:0xf")
    E(f"v_mov_b32 v{CSV}, v{ACC(2,8)}"); E(f"v_mov_b32 v{CSV+1}, v{ACC(2,8)}")
    def ln_qk(seg, j, cs):
        a = ACC(seg, j); rm = RM + 2 * j
        return [f"v_pk_mul_f32 {vr(TT,2)}, {vr(rm,2)}, {vr(cs,2)} op_sel:[1,0] op_sel_hi:[1,1]",
                f"v_pk_mul_f32 {vr(TT+2,2)}, {vr(rm,2)}, {vr(cs+2,2)} op_sel:[1,0] op_sel_hi:[1,1]",
                f"v_pk_fma_f32 {vr(TT,2)}, {vr(rm,2)}, {vr(a,2)}, {vr(TT,2)} op_sel:[0,0,0] op_sel_hi:[0,1,1]",
                f"v_pk_fma_f32 {vr(TT+2,2)}, {vr(rm,2)}, {vr(a+2,2)}, {vr(TT+2,2)} op_sel:[0,0,0] op_sel_hi:[0,1,1]",
                f"v_cvt_pk_bf16_f32 v{a}, v{TT}, v{TT+1}",
                f"v_cvt_pk_bf16_f32 v{a+1}, v{TT+2}, v{TT+3}"]
    def ln_v(j, b):
        a = ACC(2, j); r4 = R4 + 8 * b; m4 = r4 + 4; d = VHH + (0 if j == 8 else 2 + 2 * j)
        return [f"v_pk_mul_f32 {vr(TT,2)}, {vr(m4,2)}, {vr(CSV,2)} op_sel_hi:[1,0]",
                f"v_pk_mul_f32 {vr(TT+2,2)}, {vr(m4+2,2)}, {vr(CSV,2)} op_sel_hi:[1,0]",
                f"v_pk_fma_f32 {vr(TT,2)}, {vr(r4,2)}, {vr(a,2)}, {vr(TT,2)}",
                f"v_pk_fma_f32 {vr(TT+2,2)}, {vr(r4+2,2)}, {vr(a+2,2)}, {vr(TT+2,2)}",
                f"v_cvt_pk_bf16_f32 v{d}, v{TT}, v{TT+1}",
                f"v_cvt_pk_bf16_f32 v{d+1}, v{TT+2}, v{TT+3}"]
    order = [8] + list(range(8))
    for i, j in enumerate(order):
        L += ln_qk(1, j, CSK)
        if i == 0: E(f"v_permlane32_swap_b32 v{CSV}, v{CSV+1}")
        if j != 8: L += ln_qk(0, j, CSQ)
        L += ln_v(j, i & 1)
        if i + 2 < 9: L += rd4(order[i + 2], i & 1)
    E(lambda e: stamp(e, cfg, "e0"))
    second = [ACC(0, 8), ACC(2, 8), ST(0), ST(1), ST(2), ST(3), ST(4), R4]
    for j in range(8):
        kp = ACC(1, 8) if j == 0 else ACC(1, j - 1)
        cp = CFIRST if j == 0 else CPREV
        E(f"v_mfma_f32_16x16x16_bf16 {vr(ACC(2,j),4)}, {vr(kp,2)}, {vr(ACC(0,j),2)}, {vr(cp,4)}")
        E(f"v_mfma_f32_16x16x16_bf16 {vr(second[j],4)}, {vr(ACC(1,j),2)}, {vr(ACC(0,j),2)}, {vr(CCUR,4)}")
    for jp in range(4):
        if jp == 2: E(lambda e: stamp(e, cfg, "e1"))
        js = (2 * jp, 2 * jp + 1)
        X = {j: ACC(2, j) for j in js}
        Mx = {j: ACC(0, j) + 2 for j in js}
        P = {j: ACC(1, j) for j in js}
        for j in js:
            for r in range(4): E(f"v_max_f32 v{X[j]+r}, v{X[j]+r}, v{second[j]+r}")
        for j in js: E(f"v_max3_f32 v{Mx[j]}, v{X[j]}, v{X[j]+1}, v{X[j]+2}")
        for j in js: E(f"v_max_f32 v{Mx[j]}, v{Mx[j]}, v{X[j]+3}")
        for j in js: E(f"v_mov_b32 v{Mx[j]+1}, v{Mx[j]}")
        for j in js: E(f"v_permlane32_swap_b32 v{Mx[j]}, v{Mx[j]+1}")
        for j in js: E(f"v_max_f32 v{Mx[j]}, v{Mx[j]}, v{Mx[j]+1}")
        for j in js: E(f"v_mov_b32 v{Mx[j]+1}, v{Mx[j]}")
        for j in js: E(f"v_permlane16_swap_b32 v{Mx[j]}, v{Mx[j]+1}")
        for j in js: E(f"v_max_f32 v{Mx[j]}, v{Mx[j]}, v{Mx[j]+1}")
        for j in js: E(f"v_mul_f32 v{Mx[j]}, s{S_C}, v{Mx[j]}")
        for j in js:
            for h in range(2):
                E(f"v_pk_fma_f32 {vr(X[j]+2*h,2)}, {vr(X[j]+2*h,2)}, {sr(S_C,2)}, {vr(Mx[j],2)} op_sel_hi:[1,1,0] neg_lo:[0,0,1] neg_hi:[0,0,1]")
        for j in js:
            for r in range(4): E(f"v_exp_f32 v{X[j]+r}, v{X[j]+r}")
        for j in js:
            E(f"v_cvt_pk_bf16_f32 v{P[j]+2}, v{X[j]}, v{X[j]+1}")
            E(f"v_cvt_pk_bf16_f32 v{P[j]+3}, v{X[j]+2}, v{X[j]+3}")
        for j in js:
            E(f"v_and_b32 v{P[j]}, v{MPREV}, v{P[j]+2}")
            E(f"v_and_b32 v{P[j]+1}, v{MPREV+1}, v{P[j]+3}")
        for j in js:
            E(f"v_xor_b32 v{P[j]+2}, v{P[j]+2}, v{P[j]}")
            E(f"v_xor_b32 v{P[j]+3}, v{P[j]+3}, v{P[j]+1}")
        for j in js:
            E(f"v_mfma_f32_16x16x32_bf16 {vr(X[j],4)}, {vr(VHH+2*j,4)}, {vr(P[j],4)}, 0")
            E(f"v_mfma_f32_16x16x32_bf16 {vr(second[j],4)}, {vr(ONES,4)}, {vr(P[j],4)}, 0")
    E(lambda e: stamp(e, cfg, "e2"))
    for jp in range(4):
        js = (2 * jp, 2 * jp + 1)
        Q = TT + 4 * (jp & 1)
        for j in js: E(f"v_rcp_f32 v{second[j]}, v{second[j]}")
        for j in js:
            for h in range(2):
                E(f"v_pk_mul_f32 {vr(ACC(2,j)+2*h,2)}, {vr(ACC(2,j)+2*h,2)}, {vr(second[j],2)} op_sel_hi:[1,0]")
        for u, j in enumerate(js):
            E(f"v_cvt_pk_bf16_f32 v{Q+2*u}, v{ACC(2,j)}, v{ACC(2,j)+1}")
            E(f"v_cvt_pk_bf16_f32 v{Q+2*u+1}, v{ACC(2,j)+2}, v{ACC(2,j)+3}")
        st = hstore(Q, 0, jp)
        E(st[0]); E("s_nop 0")
        E(f"v_permlane16_swap_b32 v{Q}, v{Q+2}")
        E(f"v_permlane16_swap_b32 v{Q+1}, v{Q+3}")
        E(st[1])
    return L

def emit_epilogue(e, cfg, body, rest, gap):
    if "norest" in cfg.x: rest = []
    e(weave(body, rest, start=0, per=1.0 / gap))
    e.wait(lg=0)
    e.wait(vm_tag="epl")
    e.vm = [(set(), "hs")]

def ACC2(slot, nt): return 4 + (slot * 4 + nt) * 4
HREG = 68; NH = 44
V2H = 244

def hload(idx):
    ki, sl = idx >> 2, idx & 3
    reg = HREG + 4 * (idx % NH)
    so = "0" if ki < 4 else (f"s{S2_LAST}" if ki == 14 else f"s{S2_K4 + (ki >> 2) - 1}")
    return f"buffer_load_dwordx4 {vr(reg,4)}, v{V2H+sl}, {sr(SH,4)}, {so} offen offset:{(ki & 3) * 1024} sc1"

def phase2(e, cfg, late):
    stamp(e, cfg, "eend")
    e(f"s_lshr_b32 s69, s{S2_RB}, 1")
    e("s_mov_b32 s76, 40000")
    e(f"s_lshl_b32 s74, s{S_N}, 2"); e(f"s_add_u32 s74, s74, s{S_FLP}")
    e("v_lshlrev_b32 v90, 20, v0")
    e.flush()
    e("L_ep:")
    e(f"v_readlane_b32 s4, v{VEP}, s{S_MT}")
    e(f"v_readlane_b32 s5, v{VEP}, s69")
    e("s_nop 1")
    e("s_min_u32 s75, s4, s5")
    e("s_cmp_lg_u32 s75, 0")
    e("s_cbranch_scc1 L_epok")
    e(f"buffer_load_dword v{VEP}, v{VL4}, {sr(SD,4)}, 0 offen sc1")
    e("s_sub_u32 s76, s76, 1")
    e("s_waitcnt vmcnt(0)")
    e("s_cbranch_scc0 L_ep")
    e("L_epok:")
    e.vm = [(set(), "hs")]
    e("v_mov_b32 v91, s4")
    e.wait(vm_tag="hs")
    e("s_barrier")
    e(f"buffer_store_dword v91, v90, {sr(SF,4)}, s74 offen sc1")
    stamp(e, cfg, "flag")
    e(f"s_mul_i32 s71, s{S2_RB}, {4 * TILEB}")
    e(f"s_add_u32 s{SH}, s24, s71"); e(f"s_addc_u32 s{SH+1}, s25, 0")
    e(f"s_mov_b32 s{SH+2}, {4 * TILEB}")
    e(f"s_mov_b32 s{S2_K4}, 4096"); e(f"s_mov_b32 s{S2_K4+1}, 8192"); e(f"s_mov_b32 s{S2_K4+2}, 12288")
    e(f"s_mov_b32 s{S2_LAST}, 12288"); e(f"s_cmp_eq_u32 s{S_W}, 3"); e(f"s_cmov_b32 s{S2_LAST}, {BIG}")
    e(f"s_mul_i32 s72, s{S_W}, {15 * 1024}")
    e("v_lshlrev_b32 v3, 4, v2")
    e("v_add_u32 v3, s72, v3")
    for sl in range(4):
        e(f"s_add_u32 s73, s{S_W}, {sl}"); e("s_and_b32 s73, s73, 3"); e(f"s_mul_i32 s73, s73, {TILEB}")
        e(f"v_add_u32 v{V2H+sl}, s73, v3")
    e("s_mov_b32 s70, 0x078000ff"); e("s_mov_b32 s71, 0xf0001c00")
    e(f"s_lshl_b32 s72, s{S_W}, 4"); e("s_lshr_b64 s[70:71], s[70:71], s72"); e("s_and_b32 s70, s70, 0xffff")
    if "allmask" in cfg.x: e("s_mov_b32 s70, 0xffff")
    e("s_mov_b32 s76, 40000")
    e(late)
    e.flush()
    e("L_poll:")
    e(f"buffer_load_dword v92, v{VL4}, {sr(SF,4)}, s{S_FLC} offen sc1")
    e("s_sub_u32 s76, s76, 1")
    e("s_cbranch_scc1 L_go")
    e.wait(vm=0)
    e("v_cmp_ne_u32 vcc, s5, v92")
    e("s_nop 1")
    e("s_and_b32 s75, vcc_lo, s70")
    e("s_cbranch_scc1 L_poll")
    e("L_go:")
    e("s_waitcnt vmcnt(0)")
    stamp(e, cfg, "poll")
    for idx in range(NH): e(hload(idx))
    e(f"v_and_b32 v2, 1, v{VG}"); e("v_lshlrev_b32 v2, 5, v2")
    e(f"v_lshrrev_b32 v3, 1, v{VG}"); e("v_lshl_add_u32 v2, v3, 4, v2")
    e(f"v_lshl_add_u32 v1, v{VT}, 11, v2")
    for nt in range(4):
        a = ACC2(0, nt); t = ACC2(1, nt)
        for h in range(2):
            e(f"v_accvgpr_read_b32 v{a+2*h+1}, a{96+2*nt+h}"); e(f"v_accvgpr_read_b32 v{t+2*h+1}, a{104+2*nt+h}")
        for h in range(2):
            e(f"v_lshlrev_b32 v{a+2*h}, 16, v{a+2*h+1}"); e(f"v_and_b32 v{a+2*h+1}, 0xffff0000, v{a+2*h+1}")
            e(f"v_lshlrev_b32 v{t+2*h}, 16, v{t+2*h+1}"); e(f"v_and_b32 v{t+2*h+1}, 0xffff0000, v{t+2*h+1}")
        for h in range(2):
            e(f"v_pk_add_f32 {vr(a+2*h,2)}, {vr(a+2*h,2)}, {vr(t+2*h,2)}")
    for ki in range(15):
        for sl in range(4):
            idx = ki * 4 + sl
            reg = HREG + 4 * (idx % NH)
            for nt in range(4):
                c = vr(ACC2(sl, nt), 4) if (ki > 0 or sl == 0) else "0"
                e(f"v_mfma_f32_16x16x32_bf16 {vr(ACC2(sl,nt),4)}, {ar(W2F(ki)+4*nt,4)}, {vr(reg,4)}, {c}")
            if idx == 0: stamp(e, cfg, "hld")
            if idx + NH < 60: e(hload(idx + NH))
            if idx == 50:
                e("v_and_b32 v68, 63, v0"); e("v_lshlrev_b32 v68, 4, v68")
                e(f"v_add_u32 v69, s{S2_MW}, v68")
                for i in range(1, 4):
                    e(f"s_sub_u32 s69, s{S_W}, {i}"); e("s_and_b32 s69, s69, 3"); e(f"s_lshl_b32 s69, s69, 13")
                    e(f"v_add_u32 v{69+i}, s69, v68")
    stamp(e, cfg, "mm")
    for sl in range(1, 4):
        for nt in range(4):
            e(f"ds_write_b128 v69, {vr(ACC2(sl,nt),4)} offset:{REDO[sl-1]+nt*1024}")
    e.wait(lg=0)
    e("s_barrier")
    for i in range(1, 4):
        for nt in range(4):
            e(f"ds_read_b128 {vr(ACC2(i,nt),4)}, v{69+i} offset:{REDO[i-1]+nt*1024}")
    for i in range(1, 4):
        for nt in range(4):
            for h in range(2):
                a = ACC2(0, nt) + 2 * h
                e(f"v_pk_add_f32 {vr(a,2)}, {vr(a,2)}, {vr(ACC2(i,nt)+2*h,2)}")
    for P in range(2):
        Q = 76 + 4 * P
        for u in range(2):
            a = ACC2(0, 2 * P + u)
            e(f"v_cvt_pk_bf16_f32 v{Q+2*u}, v{a}, v{a+1}"); e(f"v_cvt_pk_bf16_f32 v{Q+2*u+1}, v{a+2}, v{a+3}")
        e(f"v_permlane16_swap_b32 v{Q}, v{Q+2}"); e(f"v_permlane16_swap_b32 v{Q+1}, v{Q+3}")
        e(f"buffer_store_dwordx4 {vr(Q,4)}, v1, {sr(SO,4)}, 0 offen offset:{64*P}")
    stamp(e, cfg, "end")
    if cfg.stamps and "drain" in cfg.stamps:
        e.wait(vm=0); stamp(e, cfg, "drain")

def kernel(cfg):
    e = Emitter()
    prologue1(e, cfg)
    st = e.save()
    attn_pre(e, cfg); rest, late = mainloop(e, cfg, True)
    emit_epilogue(e, cfg, attn_epilogue(cfg), rest, cfg.gap)
    e.flush()
    e("s_branch L_p2")
    e("L_ffn:"); e.restore(st)
    ffn_pre(e, cfg); rest, late = mainloop(e, cfg, False)
    emit_epilogue(e, cfg, ffn_epilogue(cfg), rest, cfg.gap)
    e.flush()
    e("L_p2:")
    phase2(e, cfg, late)
    write_stamps(e, cfg, len(cfg.stamps or []), 0x1000000)
    e("L_end:")
    e("s_endpgm")
    return e

def desc(name, vg, acc):
    return f""".section .rodata,"a"
.p2align 6
.amdhsa_kernel {name}
  .amdhsa_next_free_vgpr {vg}
  .amdhsa_next_free_sgpr 102
  .amdhsa_accum_offset {acc}
  .amdhsa_group_segment_fixed_size 0
  .amdhsa_kernarg_size 88
  .amdhsa_user_sgpr_count 2
  .amdhsa_user_sgpr_kernarg_segment_ptr 1
  .amdhsa_system_sgpr_workgroup_id_x 1
.end_amdhsa_kernel
"""
def head(name): return f".globl {name}\n.p2align 8\n.type {name},@function\n{name}:\n"

def main():
    ap = argparse.ArgumentParser()
    ap.add_argument("out"); ap.add_argument("--rot", type=int, default=0); ap.add_argument("--stamps", default="")
    ap.add_argument("--tsteps", type=int, default=13); ap.add_argument("--tstart", type=int, default=0); ap.add_argument("--mallat", type=int, default=11); ap.add_argument("--gap", type=float, default=8); ap.add_argument("--pace", type=int, default=6); ap.add_argument("--tmod", default="")
    ap.add_argument("-x", default="")
    a = ap.parse_args()
    cfg = Cfg(); cfg.x = a.x.split(","); cfg.rot = a.rot; cfg.stamps = [x for x in a.stamps.split(',') if x]; cfg.pace = a.pace; cfg.mallat = a.mallat; cfg.tsteps = a.tsteps; cfg.tstart = a.tstart; cfg.gap = a.gap; cfg.tmod = a.tmod
    XOPT.extend(cfg.x)
    k = kernel(cfg)
    s = "; hand-scheduled CDNA4 assembly (emitted by a macro script)\n"
    s += f"; stamps: {a.stamps} x: {a.x}\n" if a.stamps else ""
    s += f"; @launch grid=(256,1,1) block=(256,1,1) lds=163840\n"
    s += '.amdgcn_target "amdgcn-amd-amdhsa--gfx950"\n.text\n'
    s += head(NAME + "_kernel") + k.text()
    s += desc(NAME + "_kernel", 512, 256)
    open(a.out, "w").write(s)
    print("nops:", k.nops, "instrs:", len(k.out))
main()
```

```python
import sys, math, struct, argparse
sys.path.insert(0, "gen")
from asm import *

NAME = "parallel_sum__sliding_local_dilated__dense_activation_gelu__prompt"
STAGE = 43008
XH = 16384
WOFF = 18432
STAT = 126976
PG = {"E0": 131072, "E1": 135168, "S2a": 86016, "S2b": 90112, "S0a": 0, "S0b": 4096, "S1a": 43008, "S1b": 47104}
W2PAGE = ["E0", "E1", "E0", "E1", "S2a", "S2b", "S0a", "S0b", "E0", "E1", "S2a", "S1a", "S1b", "S2b", "S0a"]
TB2 = 81920
REDO = (0, 4096, 43008)
TILEB = 60 * 1024
FLAGOFF = 128 * TILEB
BIG = 0x40000000
NEG = 0xF149F2CA
def f2u(x): return struct.unpack("<I", struct.pack("<f", x))[0]
LOG2E = 1.4426950408889634
C_SM = 0.25 * LOG2E
G0 = -2.0 * math.sqrt(2.0 / math.pi) * LOG2E
G1 = G0 * 0.044715

def vr(b, n=1): return f"v{b}" if n == 1 else f"v[{b}:{b+n-1}]"
def ar(b, n=1): return f"a{b}" if n == 1 else f"a[{b}:{b+n-1}]"
def sr(b, n=1): return f"s{b}" if n == 1 else f"s[{b}:{b+n-1}]"

S_W, S_MT, S_N = 26, 27, 3
SX, SW, SH, SB, SWA, SWB, SO, SD = 28, 32, 36, 40, 44, 48, 52, 84
SB2, SF = 12, 16
S_XR, S_B2O, S_FLP, S_FLC = 8, 9, 20, 21
S_TW, S_TR = 82, 83
S_KB, S_STR64, S_SEGSTEP, S_XBASE, S_KHBASE, S_KX, S_KH, S_KW = 56, 57, 58, 59, 60, 61, 62, 63
S_MX, S_MW, S_MH = 66, 67, 68
S_T = 69
S_T2 = 5
S_M1, S_M2, S_M3, S_MD = 70, 72, 74, 76
S_SEG = 78
S_FFN = 81
S_C = 82
S_STAMP = 88
S2_RB, S2_CB, S2_MW, S2_KW = 6, 7, 10, 11
S_ROT = 23
S2_HS = [None] + list(range(56, 69)) + [22]
def ACC(seg, j): return 4 + (seg * 9 + j) * 4
def ST(i): return 112 + 4 * i
ONES = 132
VX, VH_, VW = 136, 140, 141
V2T = 136
VXA, VXS, VWA = 144, 148, 152
VHS, VTOUCH = 154, 155
RM = 156
T0 = 174
V2W = 244
VG, VT = 248, 249
VEP, VL4 = 240, 241
def XF(b, j): return ar(56 * b + 4 * j, 4)
def XSF(b, i): return ar(56 * b + 36 + 4 * i, 4)
def WF(b, seg): return 56 * b + 44 + 4 * seg
def W2F(ki): return 112 + 16 * ki if ki < 9 else 16 * (ki - 9)

XOPT = []
class Cfg:
    rot = 0
    stamps = False
    x = ()

def stamp(e, cfg, name):
    if cfg.stamps and name in cfg.stamps:
        i = cfg.stamps.index(name)
        e(f"{'s_memtime' if 'clk' in cfg.x else 's_memrealtime'} {sr(S_STAMP + 2 * i, 2)}")

def write_stamps(e, cfg, n, off):
    if not cfg.stamps: return
    e.wait(vm=0, lg=0)
    if "dbg" in cfg.x:
        e(f"v_subrev_u32 v1, {64 * cfg.swave}, v0"); e("v_lshlrev_b32 v1, 20, v1")
        e(f"s_not_b32 s4, s{S_STAMP}"); e("v_mov_b32 v2, s4")
        e(f"buffer_atomic_umax v2, v1, {sr(SD,4)}, 0 offen offset:0 sc1")
        for i in range(n):
            e(f"v_mov_b32 v{3+i}, s{S_STAMP + 2 * i}")
            e(f"buffer_atomic_umax v{3+i}, v1, {sr(SD,4)}, 0 offen offset:{4 + 4 * i} sc1")
        e("s_cmp_eq_u32 s2, 100"); e(f"s_cselect_b32 s8, 0, {BIG}")
        for i in range(n):
            e(f"buffer_store_dword v{3+i}, v1, {sr(SD,4)}, s8 offen offset:{32 + 4 * i} sc1")
        e.wait(vm=0)
        return
    e(f"s_add_u32 s4, s24, {off}"); e("s_addc_u32 s5, s25, 0")
    e("s_mov_b32 s6, 0x10000"); e("s_mov_b32 s7, 0x20000")
    e(f"s_mul_i32 s8, s2, {n * 8}")
    e(f"v_subrev_u32 v1, {64 * cfg.swave}, v0"); e("v_lshlrev_b32 v1, 20, v1")
    for i in range(n):
        e(f"v_mov_b32 v2, s{S_STAMP + 2 * i}"); e(f"v_mov_b32 v3, s{S_STAMP + 2 * i + 1}")
        e(f"buffer_store_dwordx2 v[2:3], v1, s[4:7], s8 offen offset:{8 * i}")
        e.wait(vm=0)

def srd(d, lo, hi, nrec):
    return [f"s_mov_b32 s{d}, s{lo}", f"s_mov_b32 s{d+1}, s{hi}", f"s_mov_b32 s{d+2}, {nrec}", f"s_mov_b32 s{d+3}, 0x20000"]

def ldsaddr(pair, off, base2=65536):
    return (pair[0], off) if off <= 65535 else (pair[1], off - base2)

def dma_stage(st):
    sb = (st % 3) * STAGE; tag = f"st{st}"
    X = lambda i: (f"buffer_load_dwordx4 v{VX+i}, {sr(SX,4)}, s{S_KX} offen offset:{1024*i} lds", tag)
    W = lambda seg, h: (f"buffer_load_dwordx4 v{VW+h}, {sr(SW,4)}, s{S_KW+seg} offen offset:{1024*h} lds", tag)
    return [
        [f"s_lshl_b32 s{S_T}, s{S_KB}, 7", f"s_add_u32 m0, s{S_MX}, {sb}", f"s_add_u32 s{S_KX}, s{S_T}, s{S_XBASE}", X(0)],
        [f"s_mul_i32 s{S_KW}, s{S_KB}, s{S_STR64}", X(1)],
        [f"s_add_u32 s{S_KH}, s{S_T}, s{S_KHBASE}", X(2)],
        [f"s_add_u32 s{S_KW+1}, s{S_KW}, s{S_SEGSTEP}", X(3)],
        [f"s_add_u32 m0, s{S_MW}, {sb}", f"s_add_u32 s{S_KW+2}, s{S_KW+1}, s{S_SEGSTEP}", W(0, 0)],
        [W(0, 1)],
        [f"s_add_u32 m0, s{S_MW}, {sb + 8192}", f"s_add_u32 s{S_KB}, s{S_KB}, 1", W(1, 0)],
        [W(1, 1)],
        [f"s_add_u32 m0, s{S_MW}, {sb + 16384}", f"s_and_b32 s{S_KB}, s{S_KB}, 7", W(2, 0)],
        [W(2, 1)],
        [f"s_add_u32 m0, s{S_MH}, {sb}", "s_nop 0", (f"buffer_load_dword v{VH_}, {sr(SX,4)}, s{S_KH} offen lds", tag)],
    ]

def w2_dma(ki):
    pg = PG[W2PAGE[ki]]
    first = []
    prev = [k for k in range(ki) if W2PAGE[k] == W2PAGE[ki]]
    if prev: first.append(lambda e, k=prev[-1]: (e.seen(f"w2r_{k}", 8), e.wait(lg_tag=f"w2r_{k}")))
    pre = [f"s_add_u32 m0, s{S2_MW}, {pg}"]
    if ki == 0: srdr, so = SWA, "0"; pre.append("s_nop 0")
    elif ki == 1: srdr, so = SWB, "0"; pre.append("s_nop 0")
    else:
        pass
    if ki >= 1:
        srdr, so = SWB, f"s{S2_KW}"
        pre = pre[:1] + ["s_nop 0"]
        first += [f"s_add_u32 s{S2_KW}, s{S_ROT}, {(ki - 1) * 32768}", f"s_sub_u32 s{S_T2}, s{S2_KW}, {14 * 32768}",
                  f"s_min_u32 s{S2_KW}, s{S2_KW}, s{S_T2}"]
    G = []
    for pc in range(4):
        d = (f"buffer_load_dwordx4 v{V2W+pc}, {sr(srdr,4)}, {so} offen offset:{1024*pc} lds", f"w2_{ki}")
        G.append((first if pc == 0 else []) + pre + [d])
    return G

def w2_read(ki):
    pg = PG[W2PAGE[ki]]
    L = []
    for nt in range(4):
        for h in range(2):
            r, o = ldsaddr((V2T + nt, V2T + 4 + nt), pg + h * 512, TB2)
            L.append((f"ds_read_b64_tr_b16 {ar(W2F(ki)+4*nt+2*h,2)}, v{r} offset:{o}", f"w2r_{ki}"))
    L[0] = [lambda e: (e.seen(f"w2_{ki}", 4), e.wait(vm_tag=f"w2_{ki}")), L[0]]
    return L

def v2t_setup():
    a, b, c = V2T + 4, V2T + 5, V2T + 6
    L = [f"v_bfe_u32 v{a}, v2, 2, 2",
         f"v_lshl_add_u32 v{b}, v{VG}, 3, v{a}",
         f"v_bfe_u32 v{c}, v2, 1, 1",
         f"v_and_b32 v{a}, 2, v{a}", f"v_xor_b32 v{c}, v{c}, v{a}",
         f"v_and_b32 v{a}, 1, v{VG}", f"v_lshlrev_b32 v{a}, 2, v{a}", f"v_xor_b32 v{c}, v{c}, v{a}",
         f"v_and_b32 v{a}, 1, v2", f"v_lshl_add_u32 v{c}, v{c}, 1, v{a}", f"v_lshlrev_b32 v{c}, 3, v{c}",
         f"v_lshl_add_u32 v{c}, v{b}, 7, v{c}",
         f"v_add_u32 v{V2T}, s{S2_MW}, v{c}"]
    for nt in range(1, 4): L.append(f"v_xor_b32 v{V2T+nt}, {32*nt}, v{V2T}")
    for nt in range(4): L.append(f"v_add_u32 v{V2T+4+nt}, {TB2}, v{V2T+nt}")
    return L

def frag_reads(b, slot, ks):
    sb = slot * STAGE
    xa = (VXA + ks, VXA + 2 + ks); xs = (VXS + ks, VXS + 2 + ks); wa = (VWA, VWA + 1)
    def X(j):
        r, o = ldsaddr(xa, sb + j * 2048); return f"ds_read_b128 {XF(b, j)}, v{r} offset:{o}"
    def XS(i):
        r, o = ldsaddr(xs, sb + i * 8192); return f"ds_read_b128 {XSF(b, i)}, v{r} offset:{o}"
    def W(seg, h):
        r, o = ldsaddr(wa, sb + WOFF + seg * 8192 + ks * 4096 + h * 512)
        return f"ds_read_b64_tr_b16 {ar(WF(b, seg) + 2 * h, 2)}, v{r} offset:{o}"
    return [W(0, 0), W(0, 1), X(0), W(1, 0), W(1, 1), W(2, 0), W(2, 1)] + [X(j) for j in range(1, 9)] + [XS(0), XS(1)]

def kstep_mfmas(b, first, attn, stats_first=False):
    M = []
    def mf(d, a, bb): return f"v_mfma_f32_16x16x32_bf16 {vr(d,4)}, {a}, {bb}, {'0' if first else vr(d,4)}"
    for j in range(9):
        for seg in range(3):
            w = ar(WF(b, seg), 4); x = XF(b, j)
            M.append(mf(ACC(seg, j), x, w) if (attn and seg == 2) else mf(ACC(seg, j), w, x))
    S = [mf(ST(0), vr(ONES, 4), XSF(b, 0)), mf(ST(1), XSF(b, 0), XSF(b, 0)),
         mf(ST(2), vr(ONES, 4), XSF(b, 1)), mf(ST(3), XSF(b, 1), XSF(b, 1)),
         mf(ST(4), XF(b, 8), XF(b, 8))]
    return S + M if stats_first else M + S

def prologue1(e, cfg):
    stamp(e, cfg, "start")
    e("s_load_dwordx16 s[4:19], s[0:1], 0")
    e("s_load_dwordx4 s[20:23], s[0:1], 64")
    e("s_load_dwordx2 s[24:25], s[0:1], 80")
    e("s_cmp_ge_u32 s2, 256")
    e("s_cbranch_scc1 L_end")
    if "code" in cfg.x:
        e("s_getpc_b64 s[84:85]")
        e("L_pc:")
        e("v_lshrrev_b32 v1, 6, v0"); e("v_and_b32 v2, 63, v0")
        e("s_lshr_b32 s70, s2, 3"); e("s_lshl_b32 s70, s70, 8")
        e("v_lshlrev_b32 v1, 6, v1"); e("v_lshl_add_u32 v1, v2, 13, v1")
        e("s_mov_b32 s86, L_end-L_pc"); e("s_mov_b32 s87, 0x20000")
        e(f"buffer_load_dword v{T0+12}, v1, s[84:87], s70 offen", "code")
    e("s_and_b32 s69, s2, 7")
    e("s_lshr_b32 s70, s2, 3")
    e("v_lshrrev_b32 v1, 6, v0")
    e("v_and_b32 v2, 63, v0")
    e("s_and_b32 s71, s69, 1")
    e("s_lshl_b32 s71, s71, 3")
    e(f"v_readfirstlane_b32 s{S_W}, v1")
    e("s_and_b32 s72, s70, 7")
    e(f"s_add_u32 s{S_MT}, s71, s72")
    e("s_lshr_b32 s72, s70, 3")
    e("s_and_b32 s73, s69, 6")
    e("s_and_b32 s74, s72, 1")
    e("s_add_u32 s73, s73, s74")
    e(f"s_lshr_b32 s{S_FFN}, s72, 1")
    e(f"s_lshl_b32 s75, s{S_FFN}, 3")
    e(f"s_add_u32 s{S_N}, s73, s75")
    if cfg.rot:
        e("s_lshl_b32 s72, s72, 1")
        e(f"s_add_u32 s72, s72, s{S_MT}")
        e(f"s_and_b32 s{S_KB}, s72, 7")
    else:
        e(f"s_mov_b32 s{S_KB}, 0")
    e("v_lshrrev_b32 v3, 3, v2")
    e(f"v_lshrrev_b32 v{VG}, 4, v2")
    e("v_and_b32 v5, 7, v2")
    e(f"v_xor_b32 v6, v{VG}, v5")
    e("v_lshlrev_b32 v6, 4, v6")
    e("v_lshl_add_u32 v6, v3, 11, v6")
    e(f"v_lshl_add_u32 v{VX}, v1, 16, v6")
    e(f"v_xor_b32 v7, 64, v{VX}")
    e(f"v_add_u32 v{VX+1}, {16384 - 1024}, v7")
    e(f"v_add_u32 v{VX+2}, {32768 - 2048}, v{VX}")
    e(f"v_add_u32 v{VX+3}, {49152 - 3072}, v7")
    e(f"s_lshr_b32 s75, s{S_MT}, 1")
    e("s_lshl_b32 s76, s75, 18")
    e(f"s_and_b32 s77, s{S_MT}, 1")
    e("s_lshl_b32 s77, s77, 10")
    e(f"s_add_u32 s{S_XBASE}, s76, s77")
    e(f"s_sub_u32 s{S_KHBASE}, s{S_XBASE}, 16384")
    e("s_cmp_eq_u32 s75, 0")
    e(f"s_cmov_b32 s{S_KHBASE}, {BIG}")
    e(f"s_lshl_b32 s{S_MX}, s{S_W}, 12")
    e(f"s_lshl_b32 s{S_MW}, s{S_W}, 11")
    e(f"s_add_u32 s{S_MW}, s{S_MW}, {WOFF}")
    e(f"s_lshl_b32 s{S_MH}, s{S_W}, 8")
    e(f"s_add_u32 s{S_MH}, s{S_MH}, {XH + 1024}")
    e(f"s_cmp_eq_u32 s{S_FFN}, 0")
    e("s_mov_b32 s76, 2752"); e("s_cmov_b32 s76, 3072")
    e(f"s_mov_b32 s{S_SEGSTEP}, 128"); e(f"s_cmov_b32 s{S_SEGSTEP}, 1024")
    e("s_mov_b32 s77, 384"); e("s_cmov_b32 s77, 128")
    e(f"s_mov_b32 s{SW+2}, {512 * 2752}"); e(f"s_cmov_b32 s{SW+2}, {512 * 3072}")
    e("s_mul_i32 s77, s77, s73")
    e(f"s_lshl_b32 s{S_STR64}, s76, 6")
    e(f"s_sub_u32 s{SW+2}, s{SW+2}, s77")
    e(f"s_mov_b32 s{SW+3}, 0x20000")
    e("v_lshl_add_u32 v8, v1, 4, v3")
    e("v_mul_u32_u24 v8, s76, v8")
    e(f"v_and_b32 v9, 1, v{VG}")
    e("v_lshlrev_b32 v9, 1, v9")
    e("v_xor_b32 v9, v9, v5")
    e("v_lshlrev_b32 v10, 4, v9")
    e(f"v_add_u32 v{VW}, v8, v10")
    e("v_xor_b32 v9, 64, v10")
    e("s_lshl_b32 s78, s76, 3")
    e("s_sub_u32 s78, s78, 1024")
    e(f"v_add3_u32 v{VW+1}, v8, v9, s78")
    e("v_lshrrev_b32 v8, 5, v2")
    e("v_lshl_add_u32 v8, v1, 1, v8")
    e("v_bfe_u32 v9, v2, 2, 3")
    e("v_xor_b32 v9, v9, v1")
    e("v_xor_b32 v9, 4, v9")
    e("v_and_b32 v11, 3, v2")
    e("v_lshl_add_u32 v9, v9, 2, v11")
    e("v_lshlrev_b32 v9, 2, v9")
    e(f"v_lshl_add_u32 v{VH_}, v8, 11, v9")
    e(f"s_mov_b32 s{SX+2}, 0x200000"); e(f"s_mov_b32 s{SX+3}, 0x20000")
    e.wait(lg=0)
    e(f"s_mov_b32 s{SX}, s4"); e(f"s_mov_b32 s{SX+1}, s5")
    e(f"s_cmp_eq_u32 s{S_FFN}, 0")
    e(f"s_cselect_b32 s{SW}, s6, s12"); e(f"s_cselect_b32 s{SW+1}, s7, s13")
    e(f"s_add_u32 s{SW}, s{SW}, s77"); e(f"s_addc_u32 s{SW+1}, s{SW+1}, 0")
    stamp(e, cfg, "karg")
    L = []
    A = L.append
    if "mall" in cfg.x:
        A("s_and_b32 s74, s2, 1"); A("s_lshl_b32 s74, s74, 7"); A("s_bfe_u32 s75, s2, 0x20001"); A("s_lshl_b32 s75, s75, 5")
        A("s_add_u32 s74, s74, s75"); A("s_add_u32 s74, s74, s70")
        A([f"s_cmp_eq_u32 s{S_W}, 0", "s_cselect_b32 s76, s4, s6", "s_cselect_b32 s77, s5, s7", "s_cselect_b32 s75, 64, 36",
           f"s_cselect_b32 s72, 0, {128 * 24}", "s_mov_b32 s71, 16383"])
        A([f"s_cmp_ge_u32 s{S_W}, 2", "s_cselect_b32 s76, s12, s76", "s_cselect_b32 s77, s13, s77", "s_cselect_b32 s75, 33, s75",
           f"s_cselect_b32 s72, {128 * 43 // 2}, s72", "s_cselect_b32 s71, 11007, s71"])
        A("s_mul_i32 s78, s74, s75"); A("s_add_u32 s72, s72, s78"); A("s_sub_u32 s75, s75, 1")
        A("v_min_u32 v12, s75, v2"); A("v_add_u32 v12, s72, v12"); A("v_min_u32 v12, s71, v12"); A("v_lshlrev_b32 v12, 7, v12")
        A(("M", [(f"global_load_dword v{T0+30}, v12, s[76:77]", "touch")]))
        A([f"s_cmp_eq_u32 s{S_W}, 3", f"s_cselect_b32 s{S_TW}, s16, s8", f"s_cselect_b32 s{S_TW+1}, s17, s9", "s_cselect_b32 s75, 43, 16"])
        A("s_mul_i32 s72, s74, s75"); A("s_sub_u32 s75, s75, 1")
        A("v_min_u32 v12, s75, v2"); A(f"v_add_lshl_u32 v{T0+3}, v12, s72, 7")
    A("s_and_b32 s4, s2, 7"); A("s_lshl_b32 s4, s4, 2"); A("s_and_b32 s5, s70, 3")
    A(f"s_add_u32 s{S2_RB}, s4, s5")
    A(f"s_lshr_b32 s{S2_CB}, s70, 2")
    A(f"s_lshl_b32 s72, s{S2_CB}, 7")
    A(f"s_mul_i32 s12, s{S_W}, {15 * 32768}")
    A("s_add_u32 s12, s12, s72")
    A(f"s_sub_u32 s13, s12, {16 * 32768}")
    A([f"s_cmp_lt_u32 s{S_W}, 2", f"s_cselect_b32 s{SWA}, s8, s16", f"s_cselect_b32 s{SWA+1}, s9, s17",
       "s_cselect_b32 s75, s12, s13", f"s_mov_b32 s76, {1376 * 1024}", f"s_cmov_b32 s76, {512 * 1024}"])
    A([f"s_add_u32 s{SWA}, s{SWA}, s75", f"s_addc_u32 s{SWA+1}, s{SWA+1}, 0"])
    A(f"s_sub_u32 s{SWA+2}, s76, s75"); A(f"s_mov_b32 s{SWA+3}, 0x20000")
    A("s_add_u32 s12, s12, 32768"); A("s_add_u32 s13, s13, 32768")
    A([f"s_cmp_lt_u32 s{S_W}, 1", f"s_cselect_b32 s{SWB}, s8, s16", f"s_cselect_b32 s{SWB+1}, s9, s17",
       "s_cselect_b32 s75, s12, s13", f"s_mov_b32 s76, {1376 * 1024}", f"s_cmov_b32 s76, {512 * 1024}"])
    A([f"s_add_u32 s{SWB}, s{SWB}, s75", f"s_addc_u32 s{SWB+1}, s{SWB+1}, 0"])
    A(f"s_sub_u32 s{SWB+2}, s76, s75"); A(f"s_mov_b32 s{SWB+3}, 0x20000")
    A(f"s_lshl_b32 s{S2_MW}, s{S_W}, 13")
    A(f"v_lshl_add_u32 v{V2W}, v3, 10, v10")
    A(f"v_xor_b32 v12, 64, v{V2W}")
    A(f"v_add_u32 v{V2W+1}, 7168, v12"); A(f"v_add_u32 v{V2W+2}, {2*7168}, v{V2W}"); A(f"v_add_u32 v{V2W+3}, {3*7168}, v12")
    A("s_lshl_b32 s5, s5, 3")
    A("v_add_u32 v12, s5, v2")
    A(f"v_lshlrev_b32 v12, 10, v12")
    A([f"v_cmp_gt_u32 vcc, 8, v2", f"v_cndmask_b32 v{VTOUCH}, -1, v12, vcc"])
    for x in srd(SB, 14, 15, 2752): A(x)
    for x in srd(SB2, 18, 19, 1024): A(x)
    for x in srd(SF, 24, 25, FLAGOFF + 2048): A(x)
    for x in srd(SD, 22, 23, 256): A(x)
    A(f"v_and_b32 v{VT}, 15, v2")
    A(f"v_lshlrev_b32 v{VL4}, 2, v{VT}")
    A(f"s_mov_b32 s{S_B2O}, s72")
    A(f"s_lshr_b32 s74, s{S2_RB}, 2"); A("s_lshl_b32 s74, s74, 18")
    A(f"s_lshr_b32 s75, s{S2_RB}, 1"); A("s_and_b32 s75, s75, 1"); A("s_lshl_b32 s75, s75, 10"); A("s_add_u32 s74, s74, s75")
    A(f"s_and_b32 s75, s{S2_RB}, 1"); A("s_lshl_b32 s75, s75, 2"); A(f"s_add_u32 s75, s75, s{S_W}"); A("s_lshl_b32 s75, s75, 15")
    A("s_add_u32 s74, s74, s75")
    A(f"s_add_u32 s{S_XR}, s74, s72")
    A([f"s_add_u32 s{SO}, s20, s{S_XR}", f"s_addc_u32 s{SO+1}, s21, 0"])
    A(f"s_sub_u32 s{SO+2}, 0x200000, s{S_XR}"); A(f"s_mov_b32 s{SO+3}, 0x20000")
    A(f"s_lshl_b32 s{S_FLP}, s{S_MT}, 7"); A(f"s_add_u32 s{S_FLP}, s{S_FLP}, {FLAGOFF}")
    A(f"s_lshr_b32 s75, s{S2_RB}, 1"); A(f"s_lshl_b32 s{S_FLC}, s75, 7"); A(f"s_add_u32 s{S_FLC}, s{S_FLC}, {FLAGOFF}")
    A(f"s_mul_i32 s75, s{S_MT}, {8 * TILEB}")
    A([f"s_cmp_eq_u32 s{S_FFN}, 0", "s_mov_b32 s76, 6144", "s_cmov_b32 s76, 2048"])
    A("s_mul_i32 s76, s76, s73")
    A(f"s_lshl_b32 s77, s{S_FFN}, 14")
    A("s_add_u32 s74, s75, s76")
    A("s_add_u32 s74, s74, s77")
    A([f"s_add_u32 s{SH}, s24, s74", f"s_addc_u32 s{SH+1}, s25, 0"])
    A(f"s_mov_b32 s{SH+2}, {8 * TILEB}"); A(f"s_mov_b32 s{SH+3}, 0x20000")
    na = len(L)
    for i in range(4): A(f"v_mov_b32 v{ONES+i}, 0x3f803f80")
    A("v_lshlrev_b32 v8, 2, v0")
    A(f"v_add_u32 v9, {2 * STAGE}, v8")
    A(f"ds_write_b32 v8, v{ONES} offset:{XH}")
    A(f"ds_write_b32 v8, v{ONES} offset:{STAGE + XH}")
    A(f"ds_write_b32 v9, v{ONES} offset:{XH}")
    A("v_bfe_u32 v12, v2, 1, 3")
    A(f"v_xor_b32 v12, v12, v{VG}")
    A("v_lshlrev_b32 v12, 4, v12")
    A(f"v_lshl_add_u32 v{VXA}, v{VT}, 7, v12")
    A(f"v_xor_b32 v{VXA+1}, 64, v{VXA}")
    A(f"v_add_u32 v{VXA+2}, 0x10000, v{VXA}")
    A(f"v_add_u32 v{VXA+3}, 0x10000, v{VXA+1}")
    for i in range(4): A(f"v_lshl_add_u32 v{VXS+i}, v1, 11, v{VXA+i}")
    A("v_bfe_u32 v15, v2, 2, 2")
    A(f"v_lshl_add_u32 v12, v{VG}, 3, v15")
    A("v_bfe_u32 v13, v2, 1, 1")
    A("v_lshl_add_u32 v13, v1, 1, v13")
    A("v_and_b32 v14, 2, v15")
    A("v_xor_b32 v13, v13, v14")
    A(f"v_and_b32 v14, 1, v{VG}")
    A("v_lshlrev_b32 v14, 2, v14")
    A("v_xor_b32 v13, v13, v14")
    A("v_and_b32 v14, 1, v2")
    A("v_lshl_add_u32 v13, v13, 1, v14")
    A("v_lshlrev_b32 v13, 3, v13")
    A(f"v_lshl_add_u32 v{VWA}, v12, 7, v13")
    A(f"v_add_u32 v{VWA+1}, 0x10000, v{VWA}")
    A(f"v_and_b32 v16, 1, v{VG}")
    A(f"v_mul_u32_u24 v16, {TILEB}, v16")
    A("v_and_b32 v12, 1, v1")
    A("v_lshlrev_b32 v12, 1, v12")
    A(f"v_lshrrev_b32 v13, 1, v{VG}")
    A("v_add_u32 v12, v12, v13")
    A("v_lshl_add_u32 v16, v12, 8, v16")
    A(f"v_lshl_add_u32 v16, v{VT}, 4, v16")
    A("v_lshrrev_b32 v12, 1, v1")
    A(f"v_lshl_add_u32 v{VHS}, v12, 10, v16")
    M = []
    A = M.append
    A(f"v_cmp_eq_u32 {sr(S_M1,2)}, 1, v11")
    A(f"v_cmp_eq_u32 {sr(S_M2,2)}, 2, v11")
    A(f"v_cmp_eq_u32 {sr(S_M3,2)}, 3, v11")
    A(f"v_cmp_eq_u32 {sr(S_MD,2)}, v15, v{VG}")
    A(f"v_lshl_add_u32 v12, v1, 4, v{VT}")
    A(f"v_lshlrev_b32 v13, 3, v12")
    A(f"v_add_u32 v13, {STAT}, v13")
    A(f"v_lshlrev_b32 v14, 2, v12")
    A(f"v_add_u32 v14, {STAT + 1152}, v14")
    A(f"v_lshlrev_b32 v250, 3, v{VT}")
    A(f"v_add_u32 v15, {STAT + 1024}, v250")
    A(f"v_add_u32 v16, {STAT + 1152 + 512}, v{VL4}")
    A(f"v_mov_b32 v17, {STAT + 2304}")
    for i in range(4): A(f"v_cndmask_b32 v{252+i}, v17, v{13+i}, {sr(S_MD,2)}")
    A(f"v_add_u32 v250, {STAT}, v250")
    A(f"v_lshlrev_b32 v251, 4, v{VG}"); A(f"v_add_u32 v251, {STAT + 1152}, v251")
    D = dma_stage(0) + dma_stage(1)
    L += M
    mi = [i for i, x in enumerate(L) if isinstance(x, tuple) and x[0] == "M"]
    if mi:
        pre = [x for x in L[:mi[0]]]; post = L[mi[-1] + 1:]; mt = [L[i][1] for i in mi]
        at = cfg.mallat
        e(weave(D[:at], pre, start=2, per=max(1, len(pre) / (at - 2))))
        e(mt)
        e(weave(D[at:], post, start=0, per=len(post) / max(1, len(D) - at)))
    else:
        e(weave(D, L, start=2, per=len(L) / (len(D) - 2)))
    stamp(e, cfg, "pro")
    e(f"s_cmp_eq_u32 s{S_FFN}, 0")
    e.flush()
    e("s_cbranch_scc0 L_ffn")

def leader():
    a, b = T0, T0 + 1
    L = [f"v_lshlrev_b32 v{a}, v{a}, 1"]
    for r in (8, 4, 2, 1): L.append(f"v_or_b32_dpp v{a}, v{a}, v{a} row_ror:{r} row_mask:0xf bank_mask:0xf")
    L += [f"v_readfirstlane_b32 s4, v{a}", f"s_lshl_b32 s5, s{S_MT}, 2", f"v_lshlrev_b32 v{b}, 20, v0",
          [f"s_cmp_lg_u32 s{S_N}, 0", f"s_cmov_b32 s5, {BIG}"],
          "s_ff0_i32_b32 s4, s4", "s_or_b32 s4, s4, 0x100", f"v_mov_b32 v{a}, s4",
          (f"buffer_store_dword v{a}, v{b}, {sr(SD,4)}, s5 offen offset:{64 if 'dbg' in XOPT else 0} sc1", "ep")]
    return L

def stats_side(attn):
    L = []
    t = T0
    for i, sq in enumerate((1, 3, 4)):
        d = t + i
        L.append(f"v_cndmask_b32 v{d}, v{ST(sq)}, v{ST(sq)+1}, {sr(S_M1,2)}")
        L.append(f"v_cndmask_b32 v{d}, v{d}, v{ST(sq)+2}, {sr(S_M2,2)}")
        L.append(f"v_cndmask_b32 v{d}, v{d}, v{ST(sq)+3}, {sr(S_M3,2)}")
    L.append(f"v_permlane32_swap_b32 v{ST(4)}, v{ST(4)+1}")
    sums = (ST(0), ST(2), ST(4))
    inv = f2u(1.0 / 512)
    for i in range(3): L.append(f"v_mul_f32 v{t+3+i}, 0x{inv:x}, v{sums[i]}")
    for i in range(3): L.append(f"v_mul_f32 v{t+i}, 0x{inv:x}, v{t+i}")
    for i in range(3): L.append(f"v_fma_f32 v{t+i}, -v{t+3+i}, v{t+3+i}, v{t+i}")
    for i in range(3): L.append(f"v_max_f32 v{t+i}, 0, v{t+i}")
    for i in range(3): L.append(f"v_cvt_pk_bf16_f32 v{t+i}, v{t+3+i}, v{t+i}")
    for i in range(3): L.append(f"v_lshlrev_b32 v{t+3+i}, 16, v{t+i}")
    for i in range(3): L.append(f"v_and_b32 v{t+i}, 0xffff0000, v{t+i}")
    for i in range(3): L.append(f"v_add_f32 v{t+i}, 0x{f2u(1e-5):x}, v{t+i}")
    for i in range(3): L.append(f"v_cvt_pk_bf16_f32 v{t+i}, v{t+i}, v{t+i}")
    for i in range(3): L.append(f"v_and_b32 v{t+i}, 0xffff0000, v{t+i}")
    for i in range(3): L.append(f"v_sqrt_f32 v{t+i}, v{t+i}")
    for i in range(3): L.append(f"v_cvt_pk_bf16_f32 v{t+i}, v{t+i}, v{t+i}")
    for i in range(3): L.append(f"v_and_b32 v{t+i}, 0xffff0000, v{t+i}")
    for i in range(3): L.append(f"v_rcp_f32 v{t+6+2*i}, v{t+i}")
    for i in range(3): L.append(f"v_mul_f32 v{t+7+2*i}, -v{t+3+i}, v{t+6+2*i}")
    L.append(f"ds_write_b64 v252, {vr(t+6,2)}")
    L.append(f"ds_write_b64 v252, {vr(t+8,2)} offset:512")
    L.append(f"ds_write_b64 v254, {vr(t+10,2)}")
    if attn:
        L.append(f"ds_write2_b32 v253, v{t+6}, v{t+7} offset0:0 offset1:144")
        L.append(f"ds_write2_b32 v253, v{t+8}, v{t+9} offset0:64 offset1:208")
        L.append(f"ds_write2_b32 v255, v{t+10}, v{t+11} offset0:0 offset1:144")
    L.append([lambda e: e.wait(lg=0), "s_barrier"])
    for j in range(9):
        L.append(f"ds_read_b64 {vr(RM+2*j,2)}, v250 offset:{128*j}")
    return L

def kstep(e, M, reads=(), dmas=(), extra=(), bar=None, extra_start=None, extra_per=1):
    n = len(M)
    slots = [[] for _ in range(n)]
    i0 = 0
    if bar: slots[1] += bar; i0 = 1
    for i, r in enumerate(reads): slots[min(i0 + i, n - 1)].append(r)
    if dmas:
        span = n - 1 - (i0 + 1)
        for g, d in enumerate(dmas):
            slots[i0 + 1 + int(g * span / len(dmas))].append(d)
    xs = (i0 + len(reads)) if extra_start is None else extra_start
    for i, x in enumerate(extra): slots[min(xs + int(i / extra_per), n - 1)].append(x)
    for m, s in zip(M, slots):
        e(m); e(s)

def mainloop(e, cfg, attn):
    e.wait(vm_tag="st0", lg=0)
    e("s_barrier")
    stamp(e, cfg, "loop")
    e(frag_reads(0, 0, 0))
    e(f"s_mul_i32 s{S_ROT}, s{S2_CB}, 7"); e(f"s_lshr_b32 s{S_ROT}, s{S_ROT}, 2"); e(f"s_lshl_b32 s{S_ROT}, s{S_ROT}, 15")
    if "norot" in cfg.x: e(f"s_mov_b32 s{S_ROT}, 0")
    st = {s: dma_stage(s) for s in range(2, 8)}
    w2d = {k: w2_dma(k) for k in range(15)}
    pro = "w2pro" in cfg.x
    dm = {0: st[2][:8], 1: st[2][8:] + st[3][:5], 2: st[3][5:], 3: st[4][:6], 4: st[4][6:], 5: st[5][:6], 6: st[5][6:],
          7: st[6][:6], 8: st[6][6:], 9: st[7][:6], 10: st[7][6:]}
    ex = {k: [] for k in range(16)}
    ex[3] = leader()
    ex[11] = v2t_setup()
    P = cfg.pace
    def ins(k, items, at=None):
        d = dm.setdefault(k, [])
        for it in items:
            d.insert(len(d) // 2 if at is None else at, it)
    def touch(ki):
        srdr, so, pre = (SWA, "0", []) if ki == 0 else (SWB, "s22", [f"s_mov_b32 s22, {(ki - 1) * 32768}"])
        return pre + [(f"buffer_load_dword v{T0+13+ki}, v{VTOUCH}, {sr(srdr,4)}, {so} offen {cfg.tmod}", "touch")]
    stale = [(f"buffer_load_dword v{T0}, v{VL4}, {sr(SF,4)}, s{S_FLP} offen sc1", "stale")]
    dm[0] = dm[0] + [stale]
    if "mall" in cfg.x:
        dm[cfg.mall2] = dm[cfg.mall2] + [[(f"global_load_dword v{T0+31}, v{T0+3}, {sr(S_TW,2)}", "touch")]]
    if pro:
        pieces = w2d[0] + w2d[1]
        for i, pc in enumerate(pieces): dm[2 + i] = dm[2 + i] + [pc]
        ex[11] += w2_read(0); ex[12] = w2_read(1)
        order = [4, 5, 2, 3, 6, 7, 8, 9, 10, 11, 12, 13, 14]
        ex[13] = w2_read(4); ex[14] = w2_read(2) ; rd15 = w2_read(3)
        done = {0, 1, 4, 2, 3}
    else:
        order = [0, 1, 4, 5, 6, 7, 2, 3, 8, 9, 10, 11, 12, 13, 14]
        ex[13] = w2_read(0); ex[14] = w2_read(1); rd15 = w2_read(4)
        done = {0, 1, 4}
    q = []
    for k in order: q += w2d[k]
    tq = []
    if "touch" in cfg.x:
        n = cfg.tsteps
        for i, ki in enumerate(order): tq.append((int(i * n / len(order)) + cfg.tstart, touch(ki)))
    pos = 0
    for k in range(11, 16):
        dm[k] = q[pos:pos + P]; pos += P
    for k, t in tq: ins(k, [t])
    epl = (f"buffer_load_dword v{VEP}, v{VL4}, {sr(SD,4)}, 0 offen offset:{64 if 'dbg' in XOPT else 0} sc1", "epl")
    ex[10] = [epl]
    hs = hs_setup()
    ex[12] = ex[12] + hs[:6]; ex[13] = ex[13] + hs[6:10]; ex[14] = ex[14] + hs[10:]
    if "nodma" in cfg.x:
        for k in range(11): dm[k] = []
    fr = (lambda *a: []) if "noread" in cfg.x else frag_reads
    for k in range(16):
        b = k & 1; s = k >> 1
        last = k == 15
        M = kstep_mfmas(b, k == 0, attn, stats_first=last)
        if "nostat" in cfg.x and not last: M = M[:27]
        per = 2 if len(ex[k]) > 12 else 1
        if last:
            kstep(e, M, reads=rd15, dmas=dm[k], extra=stats_side(attn), extra_start=9, extra_per=3)
        elif b == 0:
            kstep(e, M, reads=fr(1, s % 3, 1), dmas=dm[k], extra=ex[k], extra_per=per)
        else:
            bar = [lambda e, s=s: e.wait(vm_tag=f"st{s+1}", lg=0), "s_nop 0" if "nobar" in cfg.x else "s_barrier", lambda e, k=k: stamp(e, cfg, f"k{k}")]
            kstep(e, M, reads=fr(0, (s + 1) % 3, 0), dmas=dm[k], extra=ex[k], bar=bar, extra_per=per)
    stamp(e, cfg, "lend")
    rest = []
    xr = [f"v_lshlrev_b32 v{VXA}, 3, v{VG}", f"v_lshl_add_u32 v{VXA+1}, v{VT}, 11, v{VXA}"]
    for nt in range(4): xr.append((f"buffer_load_dwordx2 {ar(96+2*nt,2)}, v{VXA+1}, {sr(SX,4)}, s{S_XR} offen offset:{32*nt}", "xr"))
    for nt in range(4): xr.append((f"buffer_load_dwordx2 {ar(104+2*nt,2)}, v{VXA}, {sr(SB2,4)}, s{S_B2O} offen offset:{32*nt}", "xr"))
    issued = pos // 4
    items = []
    i = pos
    while i < len(q):
        ko = order[i // 4]
        if i % 4 == 0:
            prev = [k for k in order[:i // 4] if W2PAGE[k] == W2PAGE[ko] and k not in done]
            for k in prev:
                items += w2_read(k); done.add(k)
        items.append(q[i]); i += 1
    late = []
    for k in order:
        if k not in done: late += w2_read(k)
    return xr + items, late

def hstore(quad, seg, jp):
    if "nohs" in XOPT: return [f"s_add_u32 s{S_T}, s{S_SEG+seg}, {jp * 2 * TILEB}", "s_nop 0"]
    return [f"s_add_u32 s{S_T}, s{S_SEG+seg}, {jp * 2 * TILEB}",
            (f"buffer_store_dwordx4 {vr(quad,4)}, v{VHS}, {sr(SH,4)}, s{S_T} offen {'' if 'nosc1' in XOPT else 'sc1'}", "hs")]

F_A, F_Q, F_BB, F_CS, F_B1, F_G = 174, 182, 190, 202, 214, 220
def ffn_pre(e, cfg):
    e(f"s_sub_u32 s4, s{S_N}, 8")
    e(f"s_mul_i32 s5, s4, 384")
    e("v_lshlrev_b32 v3, 5, v1")
    e(f"v_lshl_add_u32 v3, v{VG}, 3, v3")
    for seg in range(3):
        e(f"buffer_load_dwordx2 {vr(F_B1+2*seg,2)}, v3, {sr(SB,4)}, s5 offen offset:{128*seg}")
    e(f"s_mul_i32 s4, s4, 12")
    e(f"s_add_u32 s4, s4, s{S_W}")
    for seg in range(3):
        e(f"s_mov_b32 s{S_SEG+seg}, {BIG}")
        e(f"s_cmp_lt_u32 s4, {88 - 4*seg}")
        e(f"s_cmov_b32 s{S_SEG+seg}, {2048*seg}")
    e(f"v_mov_b32 v{F_G}, 0x{f2u(G1):x}"); e(f"v_mov_b32 v{F_G+1}, 0x{f2u(G0):x}")

def ffn_epilogue(cfg):
    L = []; E = L.append
    BB, CS = F_BB, F_CS
    for seg in range(3):
        for h in range(2):
            E(f"v_lshlrev_b32 v{BB+4*seg+2*h}, 16, v{F_B1+2*seg+h}")
            E(f"v_and_b32 v{BB+4*seg+2*h+1}, 0xffff0000, v{F_B1+2*seg+h}")
    for seg in range(3):
        for r in range(4):
            E(f"v_mov_b32_dpp v{CS+4*seg+r}, v{ACC(seg,8)+r} row_newbcast:0 row_mask:0xf bank_mask:0xf")
    G = vr(F_G, 2)
    for seg in range(3):
        E(lambda e, seg=seg: stamp(e, cfg, f"e{seg}"))
        for jp in range(4):
            A = F_A; Q = F_Q + 4 * ((seg * 4 + jp) & 1)
            P = []
            for u in range(2):
                j = 2 * jp + u
                for h in range(2):
                    P.append((ACC(seg, j) + 2 * h, RM + 2 * j, CS + 4 * seg + 2 * h, BB + 4 * seg + 2 * h, 2 * u + h))
            for a, rm, cs, bb, i in P:
                E(f"v_pk_fma_f32 {vr(A+2*i,2)}, {vr(rm,2)}, {vr(cs,2)}, {vr(bb,2)} op_sel:[1,0,0] op_sel_hi:[1,1,1]")
            for a, rm, cs, bb, i in P:
                E(f"v_pk_fma_f32 {vr(a,2)}, {vr(rm,2)}, {vr(a,2)}, {vr(A+2*i,2)} op_sel:[0,0,0] op_sel_hi:[0,1,1]")
            for a, rm, cs, bb, i in P:
                E(f"v_pk_mul_f32 {vr(A+2*i,2)}, {vr(a,2)}, {vr(a,2)}")
            for a, rm, cs, bb, i in P:
                E(f"v_pk_fma_f32 {vr(A+2*i,2)}, {vr(A+2*i,2)}, {G}, {G} op_sel:[0,0,1] op_sel_hi:[1,0,1]")
            for a, rm, cs, bb, i in P:
                E(f"v_pk_mul_f32 {vr(A+2*i,2)}, {vr(A+2*i,2)}, {vr(a,2)}")
            for i in range(8): E(f"v_exp_f32 v{A+i}, v{A+i}")
            for i in range(4): E(f"v_pk_add_f32 {vr(A+2*i,2)}, {vr(A+2*i,2)}, 1.0 op_sel_hi:[1,0]")
            for i in range(8): E(f"v_rcp_f32 v{A+i}, v{A+i}")
            for a, rm, cs, bb, i in P:
                E(f"v_pk_mul_f32 {vr(A+2*i,2)}, {vr(A+2*i,2)}, {vr(a,2)}")
            for i in range(4): E(f"v_cvt_pk_bf16_f32 v{Q+i}, v{A+2*i}, v{A+2*i+1}")
            st = hstore(Q, seg, jp)
            E(st[0]); E("s_nop 0")
            E(f"v_permlane16_swap_b32 v{Q}, v{Q+2}")
            E(f"v_permlane16_swap_b32 v{Q+1}, v{Q+3}")
            E(st[1])
    return L

CSQ, CSK, CSV, VHH, R4, TT = 174, 178, 182, 184, 202, 218
CCUR, CPREV, CFIRST, MPREV = 226, 230, 234, 238
def attn_pre(e, cfg):
    e(f"v_mov_b32 v3, 0x{NEG:x}")
    e("v_mov_b32 v5, 0xffff"); e("v_mov_b32 v6, 0xffff0000")
    e(f"v_lshlrev_b32 v7, 2, v{VG}")
    e(f"v_sub_u32 v7, v{VT}, v7")
    e(f"s_lshr_b32 s4, s{S_MT}, 1")
    e(f"s_cmp_eq_u32 s4, 0")
    e("s_cselect_b64 s[4:5], 0, -1")
    for r in range(4):
        e(f"v_subrev_u32 v8, {r}, v7")
        e("v_cmp_gt_u32 vcc, 8, v8")
        e("v_cmp_gt_i32 s[22:23], -8, v8")
        e("s_nop 0")
        e(f"v_cndmask_b32 v{CCUR+r}, v3, 0, vcc")
        e(f"v_cndmask_b32 v{CPREV+r}, v3, 0, s[22:23]")
        e(f"v_cndmask_b32 v{9+r}, 0, v{5+(r&1)}, s[22:23]")
        e(f"v_cndmask_b32 v{CFIRST+r}, v3, v{CPREV+r}, s[4:5]")
    e(f"v_or_b32 v{MPREV}, v9, v10"); e(f"v_or_b32 v{MPREV+1}, v11, v12")
    e(f"s_mov_b32 s{S_SEG}, 0")

def attn_epilogue(cfg):
    L = []; E = L.append
    def rd4(j, b):
        return [f"ds_read_b128 {vr(R4+8*b,4)}, v251 offset:{64*j}",
                f"ds_read_b128 {vr(R4+8*b+4,4)}, v251 offset:{64*j+576}"]
    L += rd4(8, 0) + rd4(0, 1)
    E(f"s_mov_b32 s{S_C}, 0x{f2u(C_SM):x}"); E(f"s_mov_b32 s{S_C+1}, 0x{f2u(C_SM):x}")
    for r in range(4):
        E(f"v_mov_b32_dpp v{CSQ+r}, v{ACC(0,8)+r} row_newbcast:0 row_mask:0xf bank_mask:0xf")
        E(f"v_mov_b32_dpp v{CSK+r}, v{ACC(1,8)+r} row_newbcast:0 row_mask:0xf bank_mask:0xf")
    E(f"v_mov_b32 v{CSV}, v{ACC(2,8)}"); E(f"v_mov_b32 v{CSV+1}, v{ACC(2,8)}")
    def ln_qk(seg, j, cs):
        a = ACC(seg, j); rm = RM + 2 * j
        return [f"v_pk_mul_f32 {vr(TT,2)}, {vr(rm,2)}, {vr(cs,2)} op_sel:[1,0] op_sel_hi:[1,1]",
                f"v_pk_mul_f32 {vr(TT+2,2)}, {vr(rm,2)}, {vr(cs+2,2)} op_sel:[1,0] op_sel_hi:[1,1]",
                f"v_pk_fma_f32 {vr(TT,2)}, {vr(rm,2)}, {vr(a,2)}, {vr(TT,2)} op_sel:[0,0,0] op_sel_hi:[0,1,1]",
                f"v_pk_fma_f32 {vr(TT+2,2)}, {vr(rm,2)}, {vr(a+2,2)}, {vr(TT+2,2)} op_sel:[0,0,0] op_sel_hi:[0,1,1]",
                f"v_cvt_pk_bf16_f32 v{a}, v{TT}, v{TT+1}",
                f"v_cvt_pk_bf16_f32 v{a+1}, v{TT+2}, v{TT+3}"]
    def ln_v(j, b):
        a = ACC(2, j); r4 = R4 + 8 * b; m4 = r4 + 4; d = VHH + (0 if j == 8 else 2 + 2 * j)
        return [f"v_pk_mul_f32 {vr(TT,2)}, {vr(m4,2)}, {vr(CSV,2)} op_sel_hi:[1,0]",
                f"v_pk_mul_f32 {vr(TT+2,2)}, {vr(m4+2,2)}, {vr(CSV,2)} op_sel_hi:[1,0]",
                f"v_pk_fma_f32 {vr(TT,2)}, {vr(r4,2)}, {vr(a,2)}, {vr(TT,2)}",
                f"v_pk_fma_f32 {vr(TT+2,2)}, {vr(r4+2,2)}, {vr(a+2,2)}, {vr(TT+2,2)}",
                f"v_cvt_pk_bf16_f32 v{d}, v{TT}, v{TT+1}",
                f"v_cvt_pk_bf16_f32 v{d+1}, v{TT+2}, v{TT+3}"]
    order = [8] + list(range(8))
    for i, j in enumerate(order):
        L += ln_qk(1, j, CSK)
        if i == 0: E(f"v_permlane32_swap_b32 v{CSV}, v{CSV+1}")
        if j != 8: L += ln_qk(0, j, CSQ)
        L += ln_v(j, i & 1)
        if i + 2 < 9: L += rd4(order[i + 2], i & 1)
    E(lambda e: stamp(e, cfg, "e0"))
    second = [ACC(0, 8), ACC(2, 8), ST(0), ST(1), ST(2), ST(3), ST(4), R4]
    for j in range(8):
        kp = ACC(1, 8) if j == 0 else ACC(1, j - 1)
        cp = CFIRST if j == 0 else CPREV
        E(f"v_mfma_f32_16x16x16_bf16 {vr(ACC(2,j),4)}, {vr(kp,2)}, {vr(ACC(0,j),2)}, {vr(cp,4)}")
        E(f"v_mfma_f32_16x16x16_bf16 {vr(second[j],4)}, {vr(ACC(1,j),2)}, {vr(ACC(0,j),2)}, {vr(CCUR,4)}")
    for jp in range(4):
        if jp == 2: E(lambda e: stamp(e, cfg, "e1"))
        js = (2 * jp, 2 * jp + 1)
        X = {j: ACC(2, j) for j in js}
        Mx = {j: ACC(0, j) + 2 for j in js}
        P = {j: ACC(1, j) for j in js}
        for j in js:
            for r in range(4): E(f"v_max_f32 v{X[j]+r}, v{X[j]+r}, v{second[j]+r}")
        for j in js: E(f"v_max3_f32 v{Mx[j]}, v{X[j]}, v{X[j]+1}, v{X[j]+2}")
        for j in js: E(f"v_max_f32 v{Mx[j]}, v{Mx[j]}, v{X[j]+3}")
        for j in js: E(f"v_mov_b32 v{Mx[j]+1}, v{Mx[j]}")
        for j in js: E(f"v_permlane32_swap_b32 v{Mx[j]}, v{Mx[j]+1}")
        for j in js: E(f"v_max_f32 v{Mx[j]}, v{Mx[j]}, v{Mx[j]+1}")
        for j in js: E(f"v_mov_b32 v{Mx[j]+1}, v{Mx[j]}")
        for j in js: E(f"v_permlane16_swap_b32 v{Mx[j]}, v{Mx[j]+1}")
        for j in js: E(f"v_max_f32 v{Mx[j]}, v{Mx[j]}, v{Mx[j]+1}")
        for j in js: E(f"v_mul_f32 v{Mx[j]}, s{S_C}, v{Mx[j]}")
        for j in js:
            for h in range(2):
                E(f"v_pk_fma_f32 {vr(X[j]+2*h,2)}, {vr(X[j]+2*h,2)}, {sr(S_C,2)}, {vr(Mx[j],2)} op_sel_hi:[1,1,0] neg_lo:[0,0,1] neg_hi:[0,0,1]")
        for j in js:
            for r in range(4): E(f"v_exp_f32 v{X[j]+r}, v{X[j]+r}")
        for j in js:
            E(f"v_cvt_pk_bf16_f32 v{P[j]+2}, v{X[j]}, v{X[j]+1}")
            E(f"v_cvt_pk_bf16_f32 v{P[j]+3}, v{X[j]+2}, v{X[j]+3}")
        for j in js:
            E(f"v_and_b32 v{P[j]}, v{MPREV}, v{P[j]+2}")
            E(f"v_and_b32 v{P[j]+1}, v{MPREV+1}, v{P[j]+3}")
        for j in js:
            E(f"v_xor_b32 v{P[j]+2}, v{P[j]+2}, v{P[j]}")
            E(f"v_xor_b32 v{P[j]+3}, v{P[j]+3}, v{P[j]+1}")
        for j in js:
            E(f"v_mfma_f32_16x16x32_bf16 {vr(X[j],4)}, {vr(VHH+2*j,4)}, {vr(P[j],4)}, 0")
            E(f"v_mfma_f32_16x16x32_bf16 {vr(second[j],4)}, {vr(ONES,4)}, {vr(P[j],4)}, 0")
    E(lambda e: stamp(e, cfg, "e2"))
    for jp in range(4):
        js = (2 * jp, 2 * jp + 1)
        Q = TT + 4 * (jp & 1)
        for j in js: E(f"v_rcp_f32 v{second[j]}, v{second[j]}")
        for j in js:
            for h in range(2):
                E(f"v_pk_mul_f32 {vr(ACC(2,j)+2*h,2)}, {vr(ACC(2,j)+2*h,2)}, {vr(second[j],2)} op_sel_hi:[1,0]")
        for u, j in enumerate(js):
            E(f"v_cvt_pk_bf16_f32 v{Q+2*u}, v{ACC(2,j)}, v{ACC(2,j)+1}")
            E(f"v_cvt_pk_bf16_f32 v{Q+2*u+1}, v{ACC(2,j)+2}, v{ACC(2,j)+3}")
        st = hstore(Q, 0, jp)
        E(st[0]); E("s_nop 0")
        E(f"v_permlane16_swap_b32 v{Q}, v{Q+2}")
        E(f"v_permlane16_swap_b32 v{Q+1}, v{Q+3}")
        E(st[1])
    return L

def emit_epilogue(e, cfg, body, rest, gap):
    if "norest" in cfg.x: rest = []
    e(weave(body, rest, start=0, per=1.0 / gap))
    e.wait(lg=0)
    e.wait(vm_tag="epl")
    e.vm = [(set(), "hs")]

def ACC2(slot, nt): return 4 + (slot * 4 + nt) * 4
HREG = 68; NH = 44
V2H = 244

def hload(idx):
    ki, sl = idx >> 2, idx & 3
    reg = HREG + 4 * (idx % NH)
    so, off = ("0", 0) if ki == 0 else (f"s{S2_HS[ki]}", 1024)
    return f"buffer_load_dwordx4 {vr(reg,4)}, v{V2H+sl}, {sr(SH,4)}, {so} offen offset:{off} sc1"

def hs_setup():
    L = []
    for ki in range(1, 15):
        d = S2_HS[ki]
        L.append([f"s_lshr_b32 s{d}, s{S_ROT}, 5", f"s_add_u32 s{d}, s{d}, {(ki - 1) * 1024}",
                  f"s_sub_u32 s4, s{d}, {14 * 1024}", f"s_min_u32 s{d}, s{d}, s4"])
    return L

def phase2(e, cfg, late):
    stamp(e, cfg, "eend")
    e(f"s_lshr_b32 s69, s{S2_RB}, 1")
    e("s_mov_b32 s76, 40000")
    e(f"s_lshl_b32 s74, s{S_N}, 2"); e(f"s_add_u32 s74, s74, s{S_FLP}")
    e("v_lshlrev_b32 v90, 20, v0")
    e.flush()
    e("L_ep:")
    e(f"v_readlane_b32 s4, v{VEP}, s{S_MT}")
    e(f"v_readlane_b32 s5, v{VEP}, s69")
    e("s_nop 1")
    e("s_min_u32 s75, s4, s5")
    e("s_cmp_lg_u32 s75, 0")
    e("s_cbranch_scc1 L_epok")
    e(f"buffer_load_dword v{VEP}, v{VL4}, {sr(SD,4)}, 0 offen offset:{64 if 'dbg' in XOPT else 0} sc1")
    e("s_sub_u32 s76, s76, 1")
    e("s_waitcnt vmcnt(0)")
    e("s_cbranch_scc0 L_ep")
    e("L_epok:")
    e.vm = [(set(), "hs")]
    e("v_mov_b32 v91, s4")
    e.wait(vm_tag="hs")
    e("s_barrier")
    e(f"buffer_store_dword v91, v90, {sr(SF,4)}, s74 offen sc1")
    stamp(e, cfg, "flag")
    e(f"s_mul_i32 s71, s{S2_RB}, {4 * TILEB}")
    e(f"s_add_u32 s{SH}, s24, s71"); e(f"s_addc_u32 s{SH+1}, s25, 0")
    e(f"s_mov_b32 s{SH+2}, {4 * TILEB}")
    e(f"s_mul_i32 s72, s{S_W}, {15 * 1024}")
    e("v_lshlrev_b32 v3, 4, v2")
    e("v_add_u32 v3, s72, v3")
    for sl in range(4):
        e(f"s_add_u32 s73, s{S_W}, {sl}"); e("s_and_b32 s73, s73, 3"); e(f"s_mul_i32 s73, s73, {TILEB}")
        e(f"v_add_u32 v{V2H+sl}, s73, v3")
    e("s_mov_b32 s70, 0x078000ff"); e("s_mov_b32 s71, 0xf0001c00")
    e(f"s_lshl_b32 s72, s{S_W}, 4"); e("s_lshr_b64 s[70:71], s[70:71], s72"); e("s_and_b32 s70, s70, 0xffff")
    if "allmask" in cfg.x: e("s_mov_b32 s70, 0xffff")
    e("s_mov_b32 s76, 40000")
    e(late)
    e.flush()
    e("L_poll:")
    e(f"buffer_load_dword v92, v{VL4}, {sr(SF,4)}, s{S_FLC} offen sc1")
    e("s_sub_u32 s76, s76, 1")
    e("s_cbranch_scc1 L_go")
    e.wait(vm=0)
    e("v_cmp_ne_u32 vcc, s5, v92")
    e("s_nop 1")
    e("s_and_b32 s75, vcc_lo, s70")
    e("s_cbranch_scc1 L_poll")
    e("L_go:")
    e("s_waitcnt vmcnt(0)")
    stamp(e, cfg, "poll")
    for idx in range(NH): e(hload(idx))
    e(f"v_and_b32 v2, 1, v{VG}"); e("v_lshlrev_b32 v2, 5, v2")
    e(f"v_lshrrev_b32 v3, 1, v{VG}"); e("v_lshl_add_u32 v2, v3, 4, v2")
    e(f"v_lshl_add_u32 v1, v{VT}, 11, v2")
    for nt in range(4):
        a = ACC2(0, nt); t = ACC2(1, nt)
        for h in range(2):
            e(f"v_accvgpr_read_b32 v{a+2*h+1}, a{96+2*nt+h}"); e(f"v_accvgpr_read_b32 v{t+2*h+1}, a{104+2*nt+h}")
        for h in range(2):
            e(f"v_lshlrev_b32 v{a+2*h}, 16, v{a+2*h+1}"); e(f"v_and_b32 v{a+2*h+1}, 0xffff0000, v{a+2*h+1}")
            e(f"v_lshlrev_b32 v{t+2*h}, 16, v{t+2*h+1}"); e(f"v_and_b32 v{t+2*h+1}, 0xffff0000, v{t+2*h+1}")
        for h in range(2):
            e(f"v_pk_add_f32 {vr(a+2*h,2)}, {vr(a+2*h,2)}, {vr(t+2*h,2)}")
    for ki in range(15):
        for sl in range(4):
            idx = ki * 4 + sl
            reg = HREG + 4 * (idx % NH)
            for nt in range(4):
                c = vr(ACC2(sl, nt), 4) if (ki > 0 or sl == 0) else "0"
                e(f"v_mfma_f32_16x16x32_bf16 {vr(ACC2(sl,nt),4)}, {ar(W2F(ki)+4*nt,4)}, {vr(reg,4)}, {c}")
            if idx == 0: stamp(e, cfg, "hld")
            if idx + NH < 60: e(hload(idx + NH))
            if idx == 50:
                e("v_and_b32 v68, 63, v0"); e("v_lshlrev_b32 v68, 4, v68")
                e(f"v_add_u32 v69, s{S2_MW}, v68")
                for i in range(1, 4):
                    e(f"s_sub_u32 s69, s{S_W}, {i}"); e("s_and_b32 s69, s69, 3"); e(f"s_lshl_b32 s69, s69, 13")
                    e(f"v_add_u32 v{69+i}, s69, v68")
    stamp(e, cfg, "mm")
    for sl in range(1, 4):
        for nt in range(4):
            e(f"ds_write_b128 v69, {vr(ACC2(sl,nt),4)} offset:{REDO[sl-1]+nt*1024}")
    e.wait(lg=0)
    e("s_barrier")
    for i in range(1, 4):
        for nt in range(4):
            e(f"ds_read_b128 {vr(ACC2(i,nt),4)}, v{69+i} offset:{REDO[i-1]+nt*1024}")
    for i in range(1, 4):
        for nt in range(4):
            for h in range(2):
                a = ACC2(0, nt) + 2 * h
                e(f"v_pk_add_f32 {vr(a,2)}, {vr(a,2)}, {vr(ACC2(i,nt)+2*h,2)}")
    for P in range(2):
        Q = 76 + 4 * P
        for u in range(2):
            a = ACC2(0, 2 * P + u)
            e(f"v_cvt_pk_bf16_f32 v{Q+2*u}, v{a}, v{a+1}"); e(f"v_cvt_pk_bf16_f32 v{Q+2*u+1}, v{a+2}, v{a+3}")
        e(f"v_permlane16_swap_b32 v{Q}, v{Q+2}"); e(f"v_permlane16_swap_b32 v{Q+1}, v{Q+3}")
        e(f"buffer_store_dwordx4 {vr(Q,4)}, v1, {sr(SO,4)}, 0 offen offset:{64*P}")
    stamp(e, cfg, "end")
    if cfg.stamps and "drain" in cfg.stamps:
        e.wait(vm=0); stamp(e, cfg, "drain")

def kernel(cfg):
    e = Emitter()
    prologue1(e, cfg)
    st = e.save()
    attn_pre(e, cfg); rest, late = mainloop(e, cfg, True)
    emit_epilogue(e, cfg, attn_epilogue(cfg), rest, cfg.gap)
    e.flush()
    e("s_branch L_p2")
    e("L_ffn:"); e.restore(st)
    ffn_pre(e, cfg); rest, late = mainloop(e, cfg, False)
    emit_epilogue(e, cfg, ffn_epilogue(cfg), rest, cfg.gap)
    e.flush()
    e("L_p2:")
    phase2(e, cfg, late)
    write_stamps(e, cfg, len(cfg.stamps or []), 0x1000000)
    e("L_end:")
    e("s_endpgm")
    return e

def desc(name, vg, acc):
    return f""".section .rodata,"a"
.p2align 6
.amdhsa_kernel {name}
  .amdhsa_next_free_vgpr {vg}
  .amdhsa_next_free_sgpr 102
  .amdhsa_accum_offset {acc}
  .amdhsa_group_segment_fixed_size 0
  .amdhsa_kernarg_size 88
  .amdhsa_user_sgpr_count 2
  .amdhsa_user_sgpr_kernarg_segment_ptr 1
  .amdhsa_system_sgpr_workgroup_id_x 1
.end_amdhsa_kernel
"""
def head(name): return f".globl {name}\n.p2align 8\n.type {name},@function\n{name}:\n"

def main():
    ap = argparse.ArgumentParser()
    ap.add_argument("out"); ap.add_argument("--rot", type=int, default=0); ap.add_argument("--stamps", default="")
    ap.add_argument("--tsteps", type=int, default=13); ap.add_argument("--tstart", type=int, default=0); ap.add_argument("--mallat", type=int, default=11); ap.add_argument("--mall2", type=int, default=2); ap.add_argument("--swave", type=int, default=0); ap.add_argument("--gap", type=float, default=8); ap.add_argument("--pace", type=int, default=6); ap.add_argument("--tmod", default="")
    ap.add_argument("-x", default="")
    a = ap.parse_args()
    cfg = Cfg(); cfg.x = a.x.split(","); cfg.rot = a.rot; cfg.stamps = [x for x in a.stamps.split(',') if x]; cfg.pace = a.pace; cfg.swave = a.swave; cfg.mall2 = a.mall2; cfg.mallat = a.mallat; cfg.tsteps = a.tsteps; cfg.tstart = a.tstart; cfg.gap = a.gap; cfg.tmod = a.tmod
    XOPT.extend(cfg.x)
    k = kernel(cfg)
    s = "; hand-scheduled CDNA4 assembly (emitted by a macro script)\n"
    s += f"; stamps: {a.stamps} x: {a.x}\n" if a.stamps else ""
    s += f"; @launch grid=(256,1,1) block=(256,1,1) lds=163840\n"
    s += '.amdgcn_target "amdgcn-amd-amdhsa--gfx950"\n.text\n'
    s += head(NAME + "_kernel") + k.text()
    s += desc(NAME + "_kernel", 512, 256)
    open(a.out, "w").write(s)
    print("nops:", k.nops, "instrs:", len(k.out))
main()
```

```python
import sys, math, struct, argparse
sys.path.insert(0, "gen")
from asm import *

NAME = "parallel_sum__sliding_local_dilated__dense_activation_gelu__prompt"
STAGE = 43008
XH = 16384
WOFF = 18432
STW = 118784
PG = {"E0": 131072, "E1": 135168, "S2a": 86016, "S2b": 90112, "S0a": 0, "S0b": 4096}
TB2 = 81920
REDO = (0, 4096, 86016)
TILEB = 60 * 1024
FLAGOFF = 128 * TILEB
STOFF = FLAGOFF + 2048
CSOFF = STOFF + 32768
WSEND = CSOFF + 8 * 16 * 768
BIG = 0x40000000
NEG = 0xF149F2CA
def f2u(x): return struct.unpack("<I", struct.pack("<f", x))[0]
LOG2E = 1.4426950408889634
C_SM = 0.25 * LOG2E
G0 = -2.0 * math.sqrt(2.0 / math.pi) * LOG2E
G1 = G0 * 0.044715
ORD = [4, 5, 6, 7, 8, 9, 10, 11, 0, 1, 2, 3, 12, 13, 14]

def vr(b, n=1): return f"v{b}" if n == 1 else f"v[{b}:{b+n-1}]"
def ar(b, n=1): return f"a{b}" if n == 1 else f"a[{b}:{b+n-1}]"
def sr(b, n=1): return f"s{b}" if n == 1 else f"s[{b}:{b+n-1}]"

S_W, S_MT, S_N = 26, 27, 3
SX, SW, SH, SB, SWA, SWB, SO, SD = 28, 32, 36, 40, 44, 48, 52, 84
SB2, SF = 12, 16
S_XR, S_B2O, S_FLP = 8, 9, 20
S_TW = 82
S_KB, S_XBASE, S_KHBASE, S_KX, S_KH, S_KW = 56, 59, 60, 61, 62, 63
S_MX, S_MW, S_MH = 66, 67, 68
S_T = 69
S_SEG = 78
S_C = 82
S_STAMP = 88
S2_RB, S2_CB, S2_MW, S2_KW = 6, 7, 10, 11
S_STP, S_STC, S_STH, S_CSP, S_CSC, S_H14 = 21, 22, 23, 57, 58, 81
S_CNT, S_HT, S_HT2, S_STW = 70, 71, 72, 73
S_P = 77
def ACC(seg, j): return 4 + (seg * 9 + j) * 4
FL = CLR = 112
SXL = 116
STT = 124
CSP = 132
VXA, VWA, VX, VH_, VW = 144, 148, 150, 154, 155
LT = 157
V2T, V2W, V2H, ONES = 160, 168, 172, 176
VHS, VG, VT, VL4, VEP, VST, VST4, VTMP = 180, 181, 182, 183, 184, 185, 186, 187
RM = 192
HB = [4, 20, 112, 128, 40, 56, 144]
Q16 = [76 + 4 * i for i in range(9)] + [36, 72] + [192 + 4 * i for i in range(5)]
def ACC2(sl, nt): return Q16[sl * 4 + nt]
RESX, RESB, RESS = 212, 220, 228
CK = 254
VOUT, VRW, VRR = 248, 249, 251
def XF(b, j): return ar(48 * b + 4 * j, 4)
def WF(b, seg): return 48 * b + 36 + 4 * seg
def W2F(q): return 96 + 16 * q if q < 10 else 16 * (q - 10)

XOPT = []
class Cfg:
    stamps = False
    x = ()

def stamp(e, cfg, name):
    if cfg.stamps and name in cfg.stamps:
        i = cfg.stamps.index(name)
        e(f"{'s_memtime' if 'clk' in cfg.x else 's_memrealtime'} {sr(S_STAMP + 2 * i, 2)}")

def DBO(): return 64 if "dbg" in XOPT else 0

def write_stamps(e, cfg, n, off):
    if not cfg.stamps: return
    e.wait(vm=0, lg=0)
    e(f"v_subrev_u32 v1, {64 * cfg.swave}, v0"); e("v_lshlrev_b32 v1, 20, v1")
    if "dbg" in cfg.x:
        e(f"s_not_b32 s4, s{S_STAMP}"); e("v_mov_b32 v2, s4")
        e(f"buffer_atomic_umax v2, v1, {sr(SD,4)}, 0 offen offset:0 sc1")
        for i in range(n):
            e(f"v_mov_b32 v{3+i}, s{S_STAMP + 2 * i}")
            e(f"buffer_atomic_umax v{3+i}, v1, {sr(SD,4)}, 0 offen offset:{4 + 4 * i} sc1")
        e("s_cmp_eq_u32 s2, 100"); e(f"s_cselect_b32 s8, 0, {BIG}")
        for i in range(n):
            e(f"buffer_store_dword v{3+i}, v1, {sr(SD,4)}, s8 offen offset:{32 + 4 * i} sc1")
        e.wait(vm=0)
        return
    e(f"s_add_u32 s4, s24, {off}"); e("s_addc_u32 s5, s25, 0")
    e("s_mov_b32 s6, 0x10000"); e("s_mov_b32 s7, 0x20000")
    e(f"s_mul_i32 s8, s2, {n * 8}")
    for i in range(n):
        e(f"v_mov_b32 v2, s{S_STAMP + 2 * i}"); e(f"v_mov_b32 v3, s{S_STAMP + 2 * i + 1}")
        e(f"buffer_store_dwordx2 v[2:3], v1, s[4:7], s8 offen offset:{8 * i}")
        e.wait(vm=0)

def srd(d, lo, hi, nrec):
    return [f"s_mov_b32 s{d}, s{lo}", f"s_mov_b32 s{d+1}, s{hi}", f"s_mov_b32 s{d+2}, {nrec}", f"s_mov_b32 s{d+3}, 0x20000"]

def ldsaddr(pair, off, base2=65536):
    return (pair[0], off) if off <= 65535 else (pair[1], off - base2)

def dma_stage(st, attn):
    sb = (st % 3) * STAGE; tag = f"st{st}"
    str64 = 64 * (3072 if attn else 2752)
    X = lambda i: (f"buffer_load_dwordx4 v{VX+i}, {sr(SX,4)}, s{S_KX} offen offset:{1024*i} lds", tag)
    W = lambda seg, h: (f"buffer_load_dwordx4 v{VW+h}, {sr(SW,4)}, s{S_KW+seg} offen offset:{1024*h} lds", tag)
    G = [
        [f"s_lshl_b32 s{S_T}, s{S_KB}, 7", f"s_add_u32 m0, s{S_MX}, {sb}", f"s_add_u32 s{S_KX}, s{S_T}, s{S_XBASE}", X(0)],
        [f"s_mul_i32 s{S_KW}, s{S_KB}, {str64}", X(1)],
        ([f"s_add_u32 s{S_KH}, s{S_T}, s{S_KHBASE}"] if attn else []) + [X(2)],
        [f"s_add_u32 s{S_KW+1}, s{S_KW}, 1024", X(3)],
        [f"s_add_u32 m0, s{S_MW}, {sb}", f"s_add_u32 s{S_KW+2}, s{S_KW}, 2048", W(0, 0)],
        [W(0, 1)],
        [f"s_add_u32 m0, s{S_MW}, {sb + 8192}", f"s_add_u32 s{S_KB}, s{S_KB}, 1", W(1, 0)],
        [W(1, 1)],
        [f"s_add_u32 m0, s{S_MW}, {sb + 16384}", f"s_and_b32 s{S_KB}, s{S_KB}, 7", W(2, 0)],
        [W(2, 1)],
    ]
    if attn:
        G.append([f"s_add_u32 m0, s{S_MH}, {sb}", "s_nop 0", (f"buffer_load_dword v{VH_}, {sr(SX,4)}, s{S_KH} offen lds", tag)])
    return G

W2PAGE = ["E0", "E1", "E0", "E1", "E0", "E1", "E0", "S2a", "E1", "S2b", "S0a", "S0b", "E0", "S2a", "E1"]
def w2_dma(q):
    pg = PG[W2PAGE[q]]; j = ORD[q]
    first = []
    prev = [k for k in range(q) if W2PAGE[k] == W2PAGE[q]]
    if prev: first.append(lambda e, k=prev[-1]: (e.seen(f"w2r_{k}", 8), e.wait(lg_tag=f"w2r_{k}")))
    srdr = SWA if j < 4 else SWB
    off = (j if j < 4 else j - 4) * 131072
    G = []
    for pc in range(4):
        pre = [f"s_add_u32 m0, s{S2_MW}, {pg}", f"s_mov_b32 s{S2_KW}, {off}"]
        d = (f"buffer_load_dwordx4 v{V2W+pc}, {sr(srdr,4)}, s{S2_KW} offen offset:{1024*pc} lds", f"w2_{q}")
        G.append(((first if pc == 0 else []) + pre, d))
    return G

def w2_read(q):
    pg = PG[W2PAGE[q]]
    L = []
    for nt in range(4):
        for h in range(2):
            r, o = ldsaddr((V2T + nt, V2T + 4 + nt), pg + h * 512, TB2)
            L.append((f"ds_read_b64_tr_b16 {ar(W2F(q)+4*nt+2*h,2)}, v{r} offset:{o}", f"w2r_{q}"))
    L[0] = [lambda e: (e.seen(f"w2_{q}", 4), e.wait(vm_tag=f"w2_{q}")), L[0]]
    return L

def v2t_setup():
    a, b, c = V2T + 4, V2T + 5, V2T + 6
    L = [f"v_bfe_u32 v{a}, v2, 2, 2",
         f"v_lshl_add_u32 v{b}, v{VG}, 3, v{a}",
         f"v_bfe_u32 v{c}, v2, 1, 1",
         f"v_and_b32 v{a}, 2, v{a}", f"v_xor_b32 v{c}, v{c}, v{a}",
         f"v_and_b32 v{a}, 1, v{VG}", f"v_lshlrev_b32 v{a}, 2, v{a}", f"v_xor_b32 v{c}, v{c}, v{a}",
         f"v_and_b32 v{a}, 1, v2", f"v_lshl_add_u32 v{c}, v{c}, 1, v{a}", f"v_lshlrev_b32 v{c}, 3, v{c}",
         f"v_lshl_add_u32 v{c}, v{b}, 7, v{c}",
         f"v_add_u32 v{V2T}, s{S2_MW}, v{c}"]
    for nt in range(1, 4): L.append(f"v_xor_b32 v{V2T+nt}, {32*nt}, v{V2T}")
    for nt in range(4): L.append(f"v_add_u32 v{V2T+4+nt}, {TB2}, v{V2T+nt}")
    return L

def frag_reads(b, slot, ks, attn):
    sb = slot * STAGE
    xa = (VXA + ks, VXA + 2 + ks); wa = (VWA, VWA + 1)
    def X(j):
        r, o = ldsaddr(xa, sb + j * 2048); return f"ds_read_b128 {XF(b, j)}, v{r} offset:{o}"
    def W(seg, h):
        r, o = ldsaddr(wa, sb + WOFF + seg * 8192 + ks * 4096 + h * 512)
        return f"ds_read_b64_tr_b16 {ar(WF(b, seg) + 2 * h, 2)}, v{r} offset:{o}"
    return [W(0, 0), W(0, 1), X(0), W(1, 0), W(1, 1), W(2, 0), W(2, 1)] + [X(j) for j in range(1, 9 if attn else 8)]

def kstep_mfmas(b, k, attn):
    M = []
    first = k == 0
    def mf(d, a, bb): return f"v_mfma_f32_16x16x32_bf16 {vr(d,4)}, {a}, {bb}, {'0' if first else vr(d,4)}"
    for j in range(9 if attn else 8):
        for seg in range(3):
            w = ar(WF(b, seg), 4); x = XF(b, j)
            M.append(mf(ACC(seg, j), x, w) if (attn and seg == 2) else mf(ACC(seg, j), w, x))
    if not attn and k < 2:
        for seg in range(3): M.append(mf(CSP + 4 * seg, ar(WF(b, seg), 4), vr(ONES, 4)))
    return M

def common(e, cfg):
    stamp(e, cfg, "start")
    e("s_load_dwordx16 s[4:19], s[0:1], 0")
    e("s_load_dwordx4 s[20:23], s[0:1], 64")
    e("s_load_dwordx2 s[24:25], s[0:1], 80")
    e("s_cmp_ge_u32 s2, 256")
    e("s_cbranch_scc1 L_end")
    e("v_lshrrev_b32 v1, 6, v0")
    e("v_and_b32 v2, 63, v0")
    e("s_lshr_b32 s70, s2, 3")
    if "code" in cfg.x:
        e("s_getpc_b64 s[84:85]")
        e("L_pc:")
        e("s_lshl_b32 s71, s70, 8")
        e("v_lshlrev_b32 v3, 6, v1"); e("v_lshl_add_u32 v3, v2, 13, v3")
        e("s_mov_b32 s86, L_end-L_pc"); e("s_mov_b32 s87, 0x20000")
        e(f"buffer_load_dword v{VTMP}, v3, s[84:87], s71 offen", "code")
    e("s_and_b32 s71, s2, 1")
    e("s_lshl_b32 s71, s71, 3")
    e(f"v_readfirstlane_b32 s{S_W}, v1")
    e(f"s_and_b32 s{S_KB}, s70, 7")
    e(f"s_add_u32 s{S_MT}, s71, s{S_KB}")
    e(f"s_and_b32 s{S_P}, s2, 6")
    e("s_bfe_u32 s74, s2, 0x10006")
    e(f"s_add_u32 s{S_P}, s{S_P}, s74")
    e("v_lshrrev_b32 v3, 3, v2")
    e(f"v_lshrrev_b32 v{VG}, 4, v2")
    e("v_and_b32 v5, 7, v2")
    e(f"v_xor_b32 v6, v{VG}, v5")
    e("v_lshlrev_b32 v6, 4, v6")
    e("v_lshl_add_u32 v6, v3, 11, v6")
    e(f"v_lshl_add_u32 v{VX}, v1, 16, v6")
    e(f"v_xor_b32 v7, 64, v{VX}")
    e(f"v_add_u32 v{VX+1}, {16384 - 1024}, v7")
    e(f"v_add_u32 v{VX+2}, {32768 - 2048}, v{VX}")
    e(f"v_add_u32 v{VX+3}, {49152 - 3072}, v7")
    e(f"s_lshr_b32 s75, s{S_MT}, 1")
    e("s_lshl_b32 s76, s75, 18")
    e(f"s_and_b32 s74, s{S_MT}, 1")
    e("s_lshl_b32 s74, s74, 10")
    e(f"s_add_u32 s{S_XBASE}, s76, s74")
    e(f"s_lshl_b32 s{S_MX}, s{S_W}, 12")
    e(f"s_lshl_b32 s{S_MW}, s{S_W}, 11")
    e(f"s_add_u32 s{S_MW}, s{S_MW}, {WOFF}")
    e(f"s_lshl_b32 s73, s{S_P}, 7")
    e(f"s_mov_b32 s{SW+3}, 0x20000")
    e("v_lshl_add_u32 v8, v1, 4, v3")
    e(f"v_and_b32 v9, 1, v{VG}")
    e("v_lshlrev_b32 v9, 1, v9")
    e("v_xor_b32 v9, v9, v5")
    e("v_lshlrev_b32 v10, 4, v9")
    e("v_xor_b32 v9, 64, v10")
    e(f"s_mov_b32 s{SX+2}, 0x200000"); e(f"s_mov_b32 s{SX+3}, 0x20000")
    e("s_bitcmp1_b32 s2, 7")
    e.flush()
    e("s_cbranch_scc1 L_ffn")

def prologue(e, cfg, attn):
    stride = 3072 if attn else 2752
    e(f"v_mul_u32_u24 v8, {stride}, v8")
    e(f"s_sub_u32 s{SW+2}, {512 * stride}, s73")
    e(f"v_add_u32 v{VW}, v8, v10")
    e(f"v_add_u32 v9, {8 * stride - 1024}, v9")
    e(f"v_add_u32 v{VW+1}, v8, v9")
    if attn:
        e(f"s_sub_u32 s{S_KHBASE}, s{S_XBASE}, 16384")
        e("s_cmp_eq_u32 s75, 0")
        e(f"s_cmov_b32 s{S_KHBASE}, {BIG}")
        e(f"s_lshl_b32 s{S_MH}, s{S_W}, 8")
        e(f"s_add_u32 s{S_MH}, s{S_MH}, {XH + 1024}")
        e("v_lshrrev_b32 v8, 5, v2")
        e("v_lshl_add_u32 v8, v1, 1, v8")
        e("v_bfe_u32 v9, v2, 2, 3")
        e("v_xor_b32 v9, v9, v1")
        e("v_xor_b32 v9, 4, v9")
        e("v_and_b32 v11, 3, v2")
        e("v_lshl_add_u32 v9, v9, 2, v11")
        e("v_lshlrev_b32 v9, 2, v9")
        e(f"v_lshl_add_u32 v{VH_}, v8, 11, v9")
        e(f"s_mov_b32 s{S_N}, s{S_P}")
    else:
        e(f"s_add_u32 s{S_N}, s{S_P}, 8")
    e.wait(lg=0)
    e(f"s_mov_b32 s{SX}, s4"); e(f"s_mov_b32 s{SX+1}, s5")
    if cfg.wsoff: e(f"s_add_u32 s24, s24, {cfg.wsoff << 20}"); e("s_addc_u32 s25, s25, 0")
    w0 = 6 if attn else 12
    e(f"s_add_u32 s{SW}, s{w0}, s73"); e(f"s_addc_u32 s{SW+1}, s{w0+1}, 0")
    stamp(e, cfg, "karg")
    L = []
    A = L.append
    if "mall" in cfg.x:
        A("s_and_b32 s74, s2, 1"); A("s_lshl_b32 s74, s74, 7"); A("s_bfe_u32 s75, s2, 0x20001"); A("s_lshl_b32 s75, s75, 5")
        A("s_add_u32 s74, s74, s75"); A("s_add_u32 s74, s74, s70")
        A([f"s_cmp_eq_u32 s{S_W}, 3", f"s_cselect_b32 s{S_TW}, s16, s8", f"s_cselect_b32 s{S_TW+1}, s17, s9", "s_cselect_b32 s75, 43, 16"])
        A("s_mul_i32 s72, s74, s75"); A("s_sub_u32 s75, s75, 1")
        A("v_min_u32 v12, s75, v2"); A(f"v_add_lshl_u32 v{LT}, v12, s72, 7")
    A("s_and_b32 s4, s2, 7"); A("s_lshl_b32 s4, s4, 2"); A("s_and_b32 s5, s70, 3")
    A(f"s_add_u32 s{S2_RB}, s4, s5")
    A(f"s_lshr_b32 s{S2_CB}, s70, 2")
    A(f"s_lshl_b32 s72, s{S2_CB}, 7")
    A(f"s_lshl_b32 s75, s{S_W}, 15")
    A("s_add_u32 s75, s75, s72")
    A([f"s_add_u32 s{SWA}, s8, s75", f"s_addc_u32 s{SWA+1}, s9, 0"])
    A(f"s_sub_u32 s{SWA+2}, {512 * 1024}, s75"); A(f"s_mov_b32 s{SWA+3}, 0x20000")
    A([f"s_add_u32 s{SWB}, s16, s75", f"s_addc_u32 s{SWB+1}, s17, 0"])
    A(f"s_sub_u32 s{SWB+2}, {1376 * 1024}, s75"); A(f"s_mov_b32 s{SWB+3}, 0x20000")
    if not attn:
        for x in srd(SB, 14, 15, 2752): A(x)
    for x in srd(SB2, 18, 19, 1024): A(x)
    for x in srd(SF, 24, 25, WSEND): A(x)
    for x in srd(SD, 22, 23, 256): A(x)
    A(f"v_and_b32 v{VT}, 15, v2")
    A(f"v_lshlrev_b32 v{VL4}, 2, v{VT}")
    A(f"s_lshl_b32 s74, s{S_MT}, 7"); A(f"s_add_u32 s5, s74, {FLAGOFF}")
    A(f"s_mov_b32 s{S_B2O}, s72")
    A(f"s_lshr_b32 s74, s{S2_RB}, 2"); A("s_lshl_b32 s74, s74, 18")
    A(f"s_bfe_u32 s75, s{S2_RB}, 0x10001"); A("s_lshl_b32 s75, s75, 10"); A("s_add_u32 s74, s74, s75")
    A(f"s_and_b32 s75, s{S2_RB}, 1"); A("s_lshl_b32 s75, s75, 2"); A(f"s_add_u32 s75, s75, s{S_W}"); A("s_lshl_b32 s75, s75, 15")
    A("s_add_u32 s74, s74, s75")
    A(f"s_add_u32 s{S_XR}, s74, s72")
    A([f"s_add_u32 s{SO}, s20, s{S_XR}", f"s_addc_u32 s{SO+1}, s21, 0"])
    A(f"s_sub_u32 s{SO+2}, 0x200000, s{S_XR}"); A(f"s_mov_b32 s{SO+3}, 0x20000")
    A(f"s_lshl_b32 s74, s{S_N}, 2"); A(f"s_add_u32 s75, s74, s{S_W}"); A("s_lshl_b32 s75, s75, 12")
    A(f"s_add_u32 s76, s75, s{S_XBASE}")
    A("v_lshlrev_b32 v12, 4, v2")
    A(("M", [(f"buffer_load_dword v{LT+2}, v{VL4}, {sr(SF,4)}, s5 offen sc1", "stale"),
             (f"buffer_load_dwordx4 {vr(SXL,4)}, v12, {sr(SX,4)}, s76 offen", "sx"),
             (f"buffer_load_dwordx4 {vr(SXL+4,4)}, v12, {sr(SX,4)}, s76 offen offset:2048", "sx")]))
    A(f"s_add_u32 s{S_FLP}, s5, s74")
    A(f"s_lshl_b32 s{S_STC}, s{S_MT}, 11"); A(f"s_add_u32 s{S_STC}, s{S_STC}, {STOFF}")
    A(f"s_lshl_b32 s74, s{S_N}, 7"); A(f"s_add_u32 s{S_STP}, s{S_STC}, s74")
    if attn:
        A([f"s_add_u32 s{S_STH}, s{S_STC}, {15 * 128 - 4096}", f"s_add_u32 s74, s{S_STC}, {15 * 128}",
           f"s_cmp_lt_u32 s{S_MT}, 2", f"s_cselect_b32 s{S_STH}, s74, s{S_STH}"])
    else:
        A(f"s_mul_i32 s74, s{S_P}, {16 * 768}"); A(f"s_add_u32 s74, s74, {CSOFF}")
        A(f"s_mul_i32 s75, s{S_MT}, 768"); A(f"s_add_u32 s{S_CSP}, s74, s75")
        A(f"s_and_b32 s75, s{S_MT}, 8"); A("s_mul_i32 s75, s75, 768"); A(f"s_add_u32 s{S_CSC}, s74, s75")
    A(f"s_lshl_b32 s{S2_MW}, s{S_W}, 13")
    A(f"s_lshl_b32 s{S_STW}, s{S_W}, 11"); A(f"s_add_u32 s{S_STW}, s{S_STW}, {STW}")
    A([f"s_cmp_eq_u32 s{S_W}, 3", f"s_mov_b32 s{S_H14}, {14 * 4096}", f"s_cmov_b32 s{S_H14}, {13 * 4096}"])
    A(f"s_mov_b32 s{S_CNT}, 30000")
    A(f"v_lshl_add_u32 v{V2W}, v3, 10, v10")
    A(f"v_xor_b32 v12, 64, v{V2W}")
    A(f"v_add_u32 v{V2W+1}, 7168, v12"); A(f"v_add_u32 v{V2W+2}, {2*7168}, v{V2W}"); A(f"v_add_u32 v{V2W+3}, {3*7168}, v12")
    A(f"s_mul_i32 s75, s{S_MT}, {8 * TILEB}")
    A(f"s_lshl_b32 s76, s{S_P}, 11")
    A("s_add_u32 s74, s75, s76")
    if not attn: A("s_add_u32 s74, s74, 16384")
    A([f"s_add_u32 s{SH}, s24, s74", f"s_addc_u32 s{SH+1}, s25, 0"])
    A(f"s_mov_b32 s{SH+2}, {8 * TILEB}"); A(f"s_mov_b32 s{SH+3}, 0x20000")
    for i in range(4): A(f"v_mov_b32 v{ONES+i}, 0x3f803f80")
    if attn:
        A("v_lshlrev_b32 v8, 2, v0")
        A(f"v_add_u32 v9, {2 * STAGE}, v8")
        A(f"ds_write_b32 v8, v{ONES} offset:{XH}")
        A(f"ds_write_b32 v8, v{ONES} offset:{STAGE + XH}")
        A(f"ds_write_b32 v9, v{ONES} offset:{XH}")
    A("v_bfe_u32 v12, v2, 1, 3")
    A(f"v_xor_b32 v12, v12, v{VG}")
    A("v_lshlrev_b32 v12, 4, v12")
    A(f"v_lshl_add_u32 v{VXA}, v{VT}, 7, v12")
    A(f"v_xor_b32 v{VXA+1}, 64, v{VXA}")
    A(f"v_add_u32 v{VXA+2}, 0x10000, v{VXA}")
    A(f"v_add_u32 v{VXA+3}, 0x10000, v{VXA+1}")
    A("v_bfe_u32 v15, v2, 2, 2")
    A(f"v_lshl_add_u32 v12, v{VG}, 3, v15")
    A("v_bfe_u32 v13, v2, 1, 1")
    A("v_lshl_add_u32 v13, v1, 1, v13")
    A("v_and_b32 v14, 2, v15")
    A("v_xor_b32 v13, v13, v14")
    A(f"v_and_b32 v14, 1, v{VG}")
    A("v_lshlrev_b32 v14, 2, v14")
    A("v_xor_b32 v13, v13, v14")
    A("v_and_b32 v14, 1, v2")
    A("v_lshl_add_u32 v13, v13, 1, v14")
    A("v_lshlrev_b32 v13, 3, v13")
    A(f"v_lshl_add_u32 v{VWA}, v12, 7, v13")
    A(f"v_add_u32 v{VWA+1}, 0x10000, v{VWA}")
    A(f"v_and_b32 v16, 1, v{VG}")
    A(f"v_mul_u32_u24 v16, {TILEB}, v16")
    A("v_and_b32 v12, 1, v1")
    A("v_lshlrev_b32 v12, 1, v12")
    A(f"v_lshrrev_b32 v13, 1, v{VG}")
    A("v_add_u32 v12, v12, v13")
    A("v_lshl_add_u32 v16, v12, 8, v16")
    A(f"v_lshl_add_u32 v16, v{VT}, 4, v16")
    A("v_lshrrev_b32 v12, 1, v1")
    A(f"v_lshl_add_u32 v{VHS}, v12, 10, v16")
    for i in range(4): A(f"v_mov_b32 v{CLR+i}, -1")
    L += v2t_setup()
    A(f"s_mul_i32 s75, s{S2_RB}, {4 * TILEB}"); A(f"s_lshl_b32 s76, s{S_W}, 10"); A("s_add_u32 s75, s75, s76")
    A("v_lshlrev_b32 v12, 4, v2"); A("v_add_u32 v12, s75, v12")
    for sl in range(4):
        A(f"s_add_u32 s76, s{S_W}, {sl}"); A("s_and_b32 s76, s76, 3"); A(f"s_mul_i32 s76, s76, {TILEB}")
        A(f"v_add_u32 v{V2H+sl}, s76, v12")
    A(f"v_add_u32 v{VST}, s{S_STW}, v{VL4}")
    if attn:
        A(f"v_lshlrev_b32 v12, 4, v{VG}"); A(f"v_add_u32 v{VST4}, s{S_STW}, v12")
        L += attn_pre()
    else:
        L += ffn_pre()
    D = dma_stage(0, attn) + dma_stage(1, attn)
    mi = [i for i, x in enumerate(L) if isinstance(x, tuple) and x[0] == "M"][0]
    pre = L[:mi]; post = L[mi + 1:]
    at = min(cfg.sxat, len(D))
    e(weave(D[:at], pre, start=2, per=max(1, len(pre) / (at - 2))))
    e(L[mi][1])
    e(weave(D[at:], post, start=0, per=min(cfg.pper, len(post) / max(1, len(D) - at))))
    stamp(e, cfg, "pro")

def leader():
    a, b = LT + 2, LT + 1
    L = [f"v_lshlrev_b32 v{a}, v{a}, 1"]
    for r in (8, 4, 2, 1): L.append(f"v_or_b32_dpp v{a}, v{a}, v{a} row_ror:{r} row_mask:0xf bank_mask:0xf")
    L += [f"v_readfirstlane_b32 s4, v{a}", f"s_lshl_b32 s5, s{S_MT}, 2", f"v_lshlrev_b32 v{b}, 24, v0",
          "s_ff0_i32_b32 s4, s4", "s_or_b32 s4, s4, 0x100", f"v_mov_b32 v{a}, s4",
          [f"s_cmp_lg_u32 s{S_N}, 0", f"s_cmov_b32 s5, {BIG}"],
          (f"buffer_store_dword v{a}, v{b}, {sr(SD,4)}, s5 offen offset:{DBO()} sc1", "ep")]
    return L

def stats_make():
    s0, q0, s1, q1, t = STT, STT + 1, STT + 2, STT + 3, STT + 4
    L = []
    for i in range(4):
        c = lambda d: "0" if i == 0 else f"v{d}"
        L += [f"v_dot2_f32_bf16 v{s0}, v{SXL+i}, v{ONES}, {c(s0)}", f"v_dot2_f32_bf16 v{q0}, v{SXL+i}, v{SXL+i}, {c(q0)}",
              f"v_dot2_f32_bf16 v{s1}, v{SXL+4+i}, v{ONES}, {c(s1)}", f"v_dot2_f32_bf16 v{q1}, v{SXL+4+i}, v{SXL+4+i}, {c(q1)}"]
    L += [f"v_and_b32 v{t}, 0x2f, v2", f"v_lshlrev_b32 v{t}, 24, v{t}", f"v_lshl_add_u32 v{t+1}, v1, 1, v{VG}",
          f"v_permlane32_swap_b32 v{s0}, v{q0}", f"v_permlane32_swap_b32 v{s1}, v{q1}",
          f"v_lshl_add_u32 v{t}, v{t+1}, 2, v{t}",
          f"v_add_f32 v{s0}, v{s0}, v{q0}", f"v_add_f32 v{s1}, v{s1}, v{q1}",
          f"v_permlane16_swap_b32 v{s0}, v{s1}", f"v_add_f32 v{s0}, v{s0}, v{s1}"]
    for r in (8, 4, 2, 1): L.append(f"v_add_f32_dpp v{s0}, v{s0}, v{s0} row_ror:{r} row_mask:0xf bank_mask:0xf")
    inv = f2u(1.0 / 512)
    L += [f"v_mul_f32 v{s0}, 0x{inv:x}, v{s0}", f"v_mov_b32 v{q0}, v{s0}",
          f"v_permlane32_swap_b32 v{s0}, v{q0}",
          f"v_fma_f32 v{q0}, -v{s0}, v{s0}, v{q0}", f"v_max_f32 v{q0}, 0, v{q0}",
          f"v_cvt_pk_bf16_f32 v{q0}, v{s0}, v{q0}",
          f"v_lshlrev_b32 v{s0}, 16, v{q0}", f"v_and_b32 v{q0}, 0xffff0000, v{q0}",
          f"v_add_f32 v{q0}, 0x{f2u(1e-5):x}, v{q0}", f"v_cvt_pk_bf16_f32 v{q0}, v{q0}, v{q0}", f"v_and_b32 v{q0}, 0xffff0000, v{q0}",
          f"v_sqrt_f32 v{q0}, v{q0}", f"v_cvt_pk_bf16_f32 v{q0}, v{q0}, v{q0}", f"v_and_b32 v{q0}, 0xffff0000, v{q0}",
          f"v_rcp_f32 v{q0}, v{q0}", f"v_mul_f32 v{s0}, -v{s0}, v{q0}",
          (f"buffer_store_dword v{q0}, v{t}, {sr(SF,4)}, s{S_STP} offen sc1", "pub"),
          (f"buffer_store_dword v{s0}, v{t}, {sr(SF,4)}, s{S_STP} offen offset:32 sc1", "pub")]
    return L

def cs_store():
    t = STT + 6
    L = [f"v_lshlrev_b32 v{t}, 24, v{VT}", f"v_lshl_add_u32 v{t+1}, v1, 2, v{VG}", f"v_lshl_add_u32 v{t}, v{t+1}, 4, v{t}"]
    for seg in range(3):
        L.append((f"buffer_store_dwordx4 {vr(CSP+4*seg,4)}, v{t}, {sr(SF,4)}, s{S_CSP} offen offset:{256*seg} sc1", "pub"))
    return L

def hstore(quad, seg, jp, tag="hs"):
    return [f"s_add_u32 s{S_HT2}, s{S_SEG+seg}, {jp * 2 * TILEB}",
            (f"buffer_store_dwordx4 {vr(quad,4)}, v{VHS}, {sr(SH,4)}, s{S_HT2} offen sc1", tag)]

def epl(): return (f"buffer_load_dword v{VEP}, v{VL4}, {sr(SD,4)}, 0 offen offset:{DBO()} sc1", "epl")
def fll(): return (f"buffer_load_dwordx4 {vr(FL,4)}, v{STT}, {sr(SF,4)}, s{S_HT2} offen sc1", "fll")
def flcmp():
    return [f"v_cmp_ne_u32 vcc, v{FL}, v{VEP}", f"v_cmp_ne_u32 s[74:75], v{FL+1}, v{VEP}", f"v_cmp_ne_u32 s[4:5], v{FL+2}, v{VEP}",
            "s_or_b64 vcc, vcc, s[74:75]", f"v_cmp_ne_u32 s[74:75], v{FL+3}, v{VEP}", "s_or_b64 vcc, vcc, s[4:5]",
            f"v_cmp_eq_u32 s[4:5], 0, v{VEP}", "s_or_b64 vcc, vcc, s[74:75]", "s_nop 0"]

def kstep(e, M, reads=(), side=(), bar=None):
    n = len(M)
    slots = [[] for _ in range(n)]
    i0 = 0
    if bar: slots[1] += bar; i0 = 1
    for i, r in enumerate(reads): slots[min(i0 + i, n - 1)].append(r)
    def cnt(x):
        if isinstance(x, list): return sum(cnt(y) for y in x)
        if callable(x): return 0.5
        if isinstance(x, tuple): x = x[0]
        return 3 if x.startswith(("buffer_", "global_")) else 1
    tot = sum(cnt(x) for x in side)
    cap = [(1.0 if (i0 <= i < i0 + len(reads)) else 2.0) if i > i0 else 0 for i in range(n)]
    cap[n - 1] *= 0.5
    sc = tot / sum(cap) if tot else 0
    acc = 0.0; lim = 0.0; i = 0
    for x in side:
        while i < n - 1 and acc + 1e-9 >= lim + cap[i] * sc:
            lim += cap[i] * sc; i += 1
        slots[i].append(x); acc += cnt(x)
    for m, s in zip(M, slots):
        e(m); e(s)

def sets_m0(x):
    if isinstance(x, list): return any(sets_m0(y) for y in x)
    return isinstance(x, str) and " m0," in x
def needs_m0(x):
    if sets_m0(x): return False
    if isinstance(x, list): return any(needs_m0(y) for y in x)
    if isinstance(x, tuple): x = x[0]
    return isinstance(x, str) and x.endswith(" lds")

def merge(a, b):
    out = []; i = j = 0
    assert not (a and needs_m0(a[0]))
    while i < len(a) or j < len(b):
        if j >= len(b) or (i < len(a) and (i * len(b) <= j * len(a) or (sets_m0(b[j]) and needs_m0(a[i])))): out.append(a[i]); i += 1
        else: out.append(b[j]); j += 1
    return out

def w2groups(q, pair=True):
    g = w2_dma(q)
    if pair: return [g[0][0] + [g[0][1], g[1][1]], g[2][0] + [g[2][1], g[3][1]]]
    return [x[0] + [x[1]] for x in g]

def mainloop(e, cfg, attn, sfx):
    e.wait(vm_tag="st0", lg=0)
    e("s_barrier")
    stamp(e, cfg, "loop")
    e(frag_reads(0, 0, 0, attn))
    st = {s: dma_stage(s, attn) for s in range(2, 8)}
    dm = {0: st[2][:8], 1: st[2][8:] + st[3][:4], 2: st[3][4:]}
    for s in range(4, 8): dm[2 * s - 5] = st[s][:6]; dm[2 * s - 4] = st[s][6:]
    ex = {k: [] for k in range(16)}
    for k in range(11, 16): dm[k] = []
    ex[0] += leader()
    sm = stats_make()
    ex[1] += sm[:26]; ex[2] += sm[26:]
    if not attn: ex[2] += cs_store()
    clr = [hstore(CLR, seg, jp, "pub") for seg in range(1 if attn else 3) for jp in range(4)]
    ck = cfg.clrk
    if "noclr" in cfg.x: clr = []
    if "clr1" in cfg.x: clr = [[c[0], (c[1][0].replace("dwordx4 v[112:115]", "dword v112"), c[1][1])] for c in clr]
    if "clrn" in cfg.x: clr = [[c[0], (c[1][0].replace(" sc1", ""), c[1][1])] for c in clr]
    for i, c in enumerate(clr): ex[ck[i * len(ck) // len(clr)]].append(c)
    if "mall" in cfg.x:
        dm[cfg.mall2] = dm[cfg.mall2] + [[(f"global_load_dword v{VTMP}, v{LT}, {sr(S_TW,2)}", "touch")]]
    ex[cfg.epk].append(epl())
    fk = cfg.flk
    own = [[f"v_readlane_b32 s4, v{VEP}, s{S_MT}", "s_nop 0", "s_cmp_eq_u32 s4, 0", f"s_cbranch_scc1 L_ep{sfx}", f"L_epok{sfx}:"],
           f"v_mov_b32 v{LT+2}, s4",
           (f"buffer_store_dword v{LT+2}, v{LT+1}, {sr(SF,4)}, s{S_FLP} offen sc1", "flag")]
    ex[fk] = own + ex[fk]
    ex[cfg.chk - 2] += [f"v_lshlrev_b32 v{STT}, 7, v{VT}", f"v_lshl_add_u32 v{STT}, v{VG}, 4, v{STT}", epl(),
                        [f"s_mov_b32 s{S_HT2}, {FLAGOFF}", fll()]]
    t = STT + 1
    chk = flcmp() + [["s_or_b64 vcc, vcc, s[4:5]", f"s_cbranch_scc1 L_fl{sfx}", f"L_flok{sfx}:"]]
    chk += [f"v_bfe_u32 v{t}, v2, 1, 4", f"v_lshlrev_b32 v{t}, 7, v{t}", f"v_lshrrev_b32 v{t+1}, 5, v2", f"v_lshl_add_u32 v{t}, v{t+1}, 5, v{t}",
            f"v_and_b32 v{t+1}, 1, v2", f"v_lshl_add_u32 v{t}, v{t+1}, 4, v{t}",
            [f"s_mov_b32 m0, s{S_STW}", "s_nop 0", (f"buffer_load_dwordx4 v{t}, {sr(SF,4)}, s{S_STC} offen sc1 lds", "stl")]]
    if attn:
        chk += [f"v_and_b32 v{t+1}, 7, v2", f"v_lshlrev_b32 v{t+1}, 2, v{t+1}", f"v_and_b32 v{t+2}, 1, v{VG}", f"v_lshl_add_u32 v{t+1}, v{t+2}, 5, v{t+1}",
                [f"s_add_u32 m0, s{S_STW}, 1024", "s_nop 0", (f"buffer_load_dword v{t+1}, {sr(SF,4)}, s{S_STH} offen sc1 lds", "stl")]]
    else:
        chk += [f"v_and_b32 v{t+1}, 7, v2", f"v_mul_u32_u24 v{t+1}, 768, v{t+1}", f"v_lshl_add_u32 v{t+2}, v1, 2, v{VG}",
                f"v_lshl_add_u32 v{t+1}, v{t+2}, 4, v{t+1}"]
        for seg in range(3):
            chk.append((f"buffer_load_dwordx4 {vr(F_CS+4*seg,4)}, v{t+1}, {sr(SF,4)}, s{S_CSC} offen offset:{256*seg} sc1", "csl"))
    ex[cfg.chk] = chk + ex[cfg.chk]
    fin = [lambda e: e.wait(vm_tag="stl")]
    for j in range(8): fin.append(f"ds_read2_b32 {vr(RM+2*j,2)}, v{VST} offset0:{16*j} offset1:{128+16*j}")
    if attn:
        fin += [f"v_add_u32 v{t}, 1024, v{VST}", f"ds_read2_b32 {vr(RM+16,2)}, v{t} offset0:0 offset1:16"]
        fin[0] = [fin[0], fin[1]]; del fin[1]
        ex[15] += fin
    else:
        fin[0] = [fin[0], fin[1]]; del fin[1]
        red = []
        for r in (4, 2, 1):
            for i in range(12): red.append(f"v_add_f32_dpp v{F_CS+i}, v{F_CS+i}, v{F_CS+i} row_ror:{r} row_mask:0xf bank_mask:0xf")
        bb = []
        for seg in range(3):
            for hh in range(2):
                bb.append(f"v_lshlrev_b32 v{F_BB+4*seg+2*hh}, 16, v{F_B1+2*seg+hh}")
                bb.append(f"v_and_b32 v{F_BB+4*seg+2*hh+1}, 0xffff0000, v{F_B1+2*seg+hh}")
        ex[8] += bb
        ex[15] += red + fin
    w2x = {k: [] for k in range(16)}
    for q, (kd, kr) in enumerate(cfg.w2s):
        if kr is not None: w2x[kr] += w2_read(q)
    for q, (kd, kr) in enumerate(cfg.w2s):
        if kd is None: continue
        dep = [x for x in range(q) if W2PAGE[x] == W2PAGE[q] and cfg.w2s[x][1] == kd]
        g = w2groups(q, pair=kd < 11)
        w2x[kd] = w2x[kd] + g if dep else merge(g, w2x[kd])
    if "nodma" in cfg.x:
        for k in range(11): dm[k] = []
    for k in range(16):
        b = k & 1; s = k >> 1
        M = kstep_mfmas(b, k, attn)
        side = merge(dm[k], merge(w2x[k], ex[k]))
        if k == 15:
            kstep(e, M, side=side)
        elif b == 0:
            kstep(e, M, reads=frag_reads(1, s % 3, 1, attn), side=side)
        else:
            def bw(e, s=s, k=k):
                if k == fk: e.wait(vm_tag="pub")
                e.wait(vm_tag=f"st{s+1}", lg=0)
            bar = [bw, "s_barrier", lambda e, k=k: stamp(e, cfg, f"k{k}")]
            kstep(e, M, reads=frag_reads(0, (s + 1) % 3, 0, attn), side=side, bar=bar)
    stamp(e, cfg, "lend")

F_BB, F_CS, F_A, F_Q, F_G, F_B1 = 208, 220, 232, 240, 248, 250
def ffn_pre():
    L = []; A = L.append
    A("v_lshlrev_b32 v12, 5, v1")
    A(f"v_lshl_add_u32 v12, v{VG}, 3, v12")
    A(f"s_lshl_b32 s76, s{S_P}, 7")
    for seg in range(3):
        A(f"buffer_load_dwordx2 {vr(F_B1+2*seg,2)}, v12, {sr(SB,4)}, s76 offen offset:{1024*seg}")
    A(f"s_lshl_b32 s74, s{S_P}, 2"); A(f"s_add_u32 s74, s74, s{S_W}")
    A(f"s_mov_b32 s{S_SEG}, 0"); A(f"s_mov_b32 s{S_SEG+1}, 16384")
    A([f"s_mov_b32 s{S_SEG+2}, {BIG}", "s_cmp_lt_u32 s74, 22", f"s_cmov_b32 s{S_SEG+2}, 32768"])
    A(f"v_mov_b32 v{F_G}, 0x{f2u(G1):x}"); A(f"v_mov_b32 v{F_G+1}, 0x{f2u(G0):x}")
    return L

def hload(q, sl, so=None):
    j = ORD[q]
    return (f"buffer_load_dwordx4 {vr(HB[q % 7] + 4 * sl, 4)}, v{V2H+sl}, {sr(SF,4)}, s{so or S_HT} offen sc1", f"h{q}")
def hso(q, so=None):
    j = ORD[q]
    return f"s_mov_b32 s{so or S_HT}, " + (f"s{S_H14}" if j == 14 else f"{j * 4096}")
def hslot(q):
    return [[hso(q), hload(q, 0)]] + [hload(q, sl) for sl in range(1, 4)]

def ffn_epilogue(cfg):
    L = []; E = L.append
    BB, CS = F_BB, F_CS
    G = vr(F_G, 2)
    marks = []
    for seg in range(3):
        E(lambda e, seg=seg: stamp(e, cfg, f"e{seg}"))
        for jp in range(4):
            marks.append(len(L))
            A = F_A; Q = F_Q + 4 * ((seg * 4 + jp) & 1)
            P = []
            for u in range(2):
                j = 2 * jp + u
                for h in range(2):
                    P.append((ACC(seg, j) + 2 * h, RM + 2 * j, CS + 4 * seg + 2 * h, BB + 4 * seg + 2 * h, 2 * u + h))
            for a, rm, cs, bb, i in P:
                E(f"v_pk_fma_f32 {vr(A+2*i,2)}, {vr(rm,2)}, {vr(cs,2)}, {vr(bb,2)} op_sel:[1,0,0] op_sel_hi:[1,1,1]")
            for a, rm, cs, bb, i in P:
                E(f"v_pk_fma_f32 {vr(a,2)}, {vr(rm,2)}, {vr(a,2)}, {vr(A+2*i,2)} op_sel:[0,0,0] op_sel_hi:[0,1,1]")
            for a, rm, cs, bb, i in P:
                E(f"v_pk_mul_f32 {vr(A+2*i,2)}, {vr(a,2)}, {vr(a,2)}")
            for a, rm, cs, bb, i in P:
                E(f"v_pk_fma_f32 {vr(A+2*i,2)}, {vr(A+2*i,2)}, {G}, {G} op_sel:[0,0,1] op_sel_hi:[1,0,1]")
            for a, rm, cs, bb, i in P:
                E(f"v_pk_mul_f32 {vr(A+2*i,2)}, {vr(A+2*i,2)}, {vr(a,2)}")
            for i in range(8): E(f"v_exp_f32 v{A+i}, v{A+i}")
            for i in range(4): E(f"v_pk_add_f32 {vr(A+2*i,2)}, {vr(A+2*i,2)}, 1.0 op_sel_hi:[1,0]")
            for i in range(8): E(f"v_rcp_f32 v{A+i}, v{A+i}")
            for a, rm, cs, bb, i in P:
                E(f"v_pk_mul_f32 {vr(A+2*i,2)}, {vr(A+2*i,2)}, {vr(a,2)}")
            for i in range(4): E(f"v_cvt_pk_bf16_f32 v{Q+i}, v{A+2*i}, v{A+2*i+1}")
            st = hstore(Q, seg, jp)
            E(st[0]); E("s_nop 0")
            E(f"v_permlane16_swap_b32 v{Q}, v{Q+2}")
            E(f"v_permlane16_swap_b32 v{Q+1}, v{Q+3}")
            E(f"v_min_u32 v{Q+3}, -2, v{Q+3}")
            E(st[1])
    n = len(L); a = marks[cfg.pfg]
    pf = []
    for q in range(6): pf += hslot(q)
    return L[:a] + weave(L[a:], pf, start=0, per=len(pf) / (n - a - 8))

CCUR, CSQ, CSK, CSV, VHH, R4, TT = 188, 210, 214, 218, 220, 144, 238
CPREV, CFIRST, MPREV = 246, 250, 254
def attn_pre():
    L = []; A = L.append
    A(f"v_mov_b32 v13, 0x{NEG:x}")
    A("v_mov_b32 v5, 0xffff"); A("v_mov_b32 v6, 0xffff0000")
    A(f"v_lshlrev_b32 v7, 2, v{VG}")
    A(f"v_sub_u32 v7, v{VT}, v7")
    A([f"s_cmp_lt_u32 s{S_MT}, 2", "s_cselect_b64 s[4:5], 0, -1"])
    for r in range(4):
        A(f"v_subrev_u32 v8, {r}, v7")
        A("v_cmp_gt_u32 vcc, 8, v8")
        A("v_cmp_gt_i32 s[74:75], -8, v8")
        A(f"v_cndmask_b32 v{CCUR+r}, v13, 0, vcc")
        A(f"v_cndmask_b32 v{CPREV+r}, v13, 0, s[74:75]")
        A(f"v_cndmask_b32 v{14+r}, 0, v{5+(r&1)}, s[74:75]")
        A(f"v_cndmask_b32 v{CFIRST+r}, v13, v{CPREV+r}, s[4:5]")
    A(f"v_or_b32 v{MPREV}, v14, v15"); A(f"v_or_b32 v{MPREV+1}, v16, v17")
    A(f"s_mov_b32 s{S_SEG}, 0")
    return L

def attn_epilogue(cfg):
    L = []; E = L.append
    def rd4(j, b):
        o = (1024, 1024 + 64) if j == 8 else (64 * j, 512 + 64 * j)
        return [f"ds_read_b128 {vr(R4+8*b,4)}, v{VST4} offset:{o[0]}",
                f"ds_read_b128 {vr(R4+8*b+4,4)}, v{VST4} offset:{o[1]}"]
    L += rd4(8, 0) + rd4(0, 1)
    E(f"s_mov_b32 s{S_C}, 0x{f2u(C_SM):x}"); E(f"s_mov_b32 s{S_C+1}, 0x{f2u(C_SM):x}")
    for r in range(4):
        E(f"v_mov_b32_dpp v{CSQ+r}, v{ACC(0,8)+r} row_newbcast:0 row_mask:0xf bank_mask:0xf")
        E(f"v_mov_b32_dpp v{CSK+r}, v{ACC(1,8)+r} row_newbcast:0 row_mask:0xf bank_mask:0xf")
    E(f"v_mov_b32 v{CSV}, v{ACC(2,8)}"); E(f"v_mov_b32 v{CSV+1}, v{ACC(2,8)}")
    def ln_qk(seg, j, cs):
        a = ACC(seg, j); rm = RM + 2 * j
        return [f"v_pk_mul_f32 {vr(TT,2)}, {vr(rm,2)}, {vr(cs,2)} op_sel:[1,0] op_sel_hi:[1,1]",
                f"v_pk_mul_f32 {vr(TT+2,2)}, {vr(rm,2)}, {vr(cs+2,2)} op_sel:[1,0] op_sel_hi:[1,1]",
                f"v_pk_fma_f32 {vr(TT,2)}, {vr(rm,2)}, {vr(a,2)}, {vr(TT,2)} op_sel:[0,0,0] op_sel_hi:[0,1,1]",
                f"v_pk_fma_f32 {vr(TT+2,2)}, {vr(rm,2)}, {vr(a+2,2)}, {vr(TT+2,2)} op_sel:[0,0,0] op_sel_hi:[0,1,1]",
                f"v_cvt_pk_bf16_f32 v{a}, v{TT}, v{TT+1}",
                f"v_cvt_pk_bf16_f32 v{a+1}, v{TT+2}, v{TT+3}"]
    def ln_v(j, b):
        a = ACC(2, j); r4 = R4 + 8 * b; m4 = r4 + 4; d = VHH + (0 if j == 8 else 2 + 2 * j)
        return [f"v_pk_mul_f32 {vr(TT,2)}, {vr(m4,2)}, {vr(CSV,2)} op_sel_hi:[1,0]",
                f"v_pk_mul_f32 {vr(TT+2,2)}, {vr(m4+2,2)}, {vr(CSV,2)} op_sel_hi:[1,0]",
                f"v_pk_fma_f32 {vr(TT,2)}, {vr(r4,2)}, {vr(a,2)}, {vr(TT,2)}",
                f"v_pk_fma_f32 {vr(TT+2,2)}, {vr(r4+2,2)}, {vr(a+2,2)}, {vr(TT+2,2)}",
                f"v_cvt_pk_bf16_f32 v{d}, v{TT}, v{TT+1}",
                f"v_cvt_pk_bf16_f32 v{d+1}, v{TT+2}, v{TT+3}"]
    order = [8] + list(range(8))
    for i, j in enumerate(order):
        L += ln_qk(1, j, CSK)
        if i == 0: E(f"v_permlane32_swap_b32 v{CSV}, v{CSV+1}")
        if j != 8: L += ln_qk(0, j, CSQ)
        L += ln_v(j, i & 1)
        if i + 2 < 9: L += rd4(order[i + 2], i & 1)
    E(lambda e: stamp(e, cfg, "e0"))
    second = [ACC(0, 8), ACC(2, 8), RM, RM + 4, RM + 8, RM + 12, CSQ, CSK]
    for j in range(8):
        kp = ACC(1, 8) if j == 0 else ACC(1, j - 1)
        cp = CFIRST if j == 0 else CPREV
        E(f"v_mfma_f32_16x16x16_bf16 {vr(ACC(2,j),4)}, {vr(kp,2)}, {vr(ACC(0,j),2)}, {vr(cp,4)}")
        E(f"v_mfma_f32_16x16x16_bf16 {vr(second[j],4)}, {vr(ACC(1,j),2)}, {vr(ACC(0,j),2)}, {vr(CCUR,4)}")
    m1 = len(L)
    for jp in range(4):
        if jp == 2: E(lambda e: stamp(e, cfg, "e1"))
        js = (2 * jp, 2 * jp + 1)
        X = {j: ACC(2, j) for j in js}
        Mx = {j: R4 + 2 * j for j in js}
        P = {j: ACC(1, j) for j in js}
        for j in js:
            for r in range(4): E(f"v_max_f32 v{X[j]+r}, v{X[j]+r}, v{second[j]+r}")
        for j in js: E(f"v_max3_f32 v{Mx[j]}, v{X[j]}, v{X[j]+1}, v{X[j]+2}")
        for j in js: E(f"v_max_f32 v{Mx[j]}, v{Mx[j]}, v{X[j]+3}")
        for j in js: E(f"v_mov_b32 v{Mx[j]+1}, v{Mx[j]}")
        for j in js: E(f"v_permlane32_swap_b32 v{Mx[j]}, v{Mx[j]+1}")
        for j in js: E(f"v_max_f32 v{Mx[j]}, v{Mx[j]}, v{Mx[j]+1}")
        for j in js: E(f"v_mov_b32 v{Mx[j]+1}, v{Mx[j]}")
        for j in js: E(f"v_permlane16_swap_b32 v{Mx[j]}, v{Mx[j]+1}")
        for j in js: E(f"v_max_f32 v{Mx[j]}, v{Mx[j]}, v{Mx[j]+1}")
        for j in js: E(f"v_mul_f32 v{Mx[j]}, s{S_C}, v{Mx[j]}")
        for j in js:
            for h in range(2):
                E(f"v_pk_fma_f32 {vr(X[j]+2*h,2)}, {vr(X[j]+2*h,2)}, {sr(S_C,2)}, {vr(Mx[j],2)} op_sel_hi:[1,1,0] neg_lo:[0,0,1] neg_hi:[0,0,1]")
        for j in js:
            for r in range(4): E(f"v_exp_f32 v{X[j]+r}, v{X[j]+r}")
        for j in js:
            E(f"v_cvt_pk_bf16_f32 v{P[j]+2}, v{X[j]}, v{X[j]+1}")
            E(f"v_cvt_pk_bf16_f32 v{P[j]+3}, v{X[j]+2}, v{X[j]+3}")
        for j in js:
            E(f"v_and_b32 v{P[j]}, v{MPREV}, v{P[j]+2}")
            E(f"v_and_b32 v{P[j]+1}, v{MPREV+1}, v{P[j]+3}")
        for j in js:
            E(f"v_xor_b32 v{P[j]+2}, v{P[j]+2}, v{P[j]}")
            E(f"v_xor_b32 v{P[j]+3}, v{P[j]+3}, v{P[j]+1}")
        for j in js:
            E(f"v_mfma_f32_16x16x32_bf16 {vr(X[j],4)}, {vr(VHH+2*j,4)}, {vr(P[j],4)}, 0")
            E(f"v_mfma_f32_16x16x32_bf16 {vr(second[j],4)}, {vr(ONES,4)}, {vr(P[j],4)}, 0")
    E(lambda e: stamp(e, cfg, "e2"))
    m2 = len(L)
    for jp in range(4):
        js = (2 * jp, 2 * jp + 1)
        Q = TT + 4 * (jp & 1)
        for j in js: E(f"v_rcp_f32 v{second[j]}, v{second[j]}")
        for j in js:
            for h in range(2):
                E(f"v_pk_mul_f32 {vr(ACC(2,j)+2*h,2)}, {vr(ACC(2,j)+2*h,2)}, {vr(second[j],2)} op_sel_hi:[1,0]")
        for u, j in enumerate(js):
            E(f"v_cvt_pk_bf16_f32 v{Q+2*u}, v{ACC(2,j)}, v{ACC(2,j)+1}")
            E(f"v_cvt_pk_bf16_f32 v{Q+2*u+1}, v{ACC(2,j)+2}, v{ACC(2,j)+3}")
        st = hstore(Q, 0, jp)
        E(st[0]); E("s_nop 0")
        E(f"v_permlane16_swap_b32 v{Q}, v{Q+2}")
        E(f"v_permlane16_swap_b32 v{Q+1}, v{Q+3}")
        E(f"v_min_u32 v{Q+3}, -2, v{Q+3}")
        E(st[1])
    pa = []; pb = []
    for q in range(4): pa += hslot(q)
    for q in range(4, 6): pb += hslot(q)
    a = m1 + int((m2 - m1) * cfg.pfa)
    return L[:a] + weave(L[a:m2], pa, start=0, per=len(pa) / (m2 - a - 4)) + weave(L[m2:], pb, start=4, per=len(pb) / (len(L) - m2 - 8))

def hcheck(q):
    b = HB[q % 7]
    return [f"v_max3_u32 v{CK}, v{b+3}, v{b+7}, v{b+11}", f"v_max_u32 v{CK}, v{CK}, v{b+15}", f"v_cmp_eq_u32 vcc, -1, v{CK}"]

def phase2(e, cfg, sfx):
    stamp(e, cfg, "eend")
    W = 6
    side = {q: [] for q in range(15)}
    xr = [f"v_lshlrev_b32 v{VRR}, 3, v{VG}", f"v_lshl_add_u32 v{VRR+1}, v{VT}, 11, v{VRR}"]
    for nt in range(4): xr.append((f"buffer_load_dwordx2 {vr(RESX+2*nt,2)}, v{VRR+1}, {sr(SX,4)}, s{S_XR} offen offset:{32*nt}", "xr"))
    for nt in range(4): xr.append((f"buffer_load_dwordx2 {vr(RESB+2*nt,2)}, v{VRR}, {sr(SB2,4)}, s{S_B2O} offen offset:{32*nt}", "xr"))
    side[1] += xr
    un = []
    for i in range(8):
        un += [f"v_lshlrev_b32 v{RESS+2*i}, 16, v{RESX+i}", f"v_and_b32 v{RESS+2*i+1}, 0xffff0000, v{RESX+i}",
               f"v_lshlrev_b32 v{RESX+i}, 16, v{RESB+i}", f"v_and_b32 v{RESB+i}, 0xffff0000, v{RESB+i}",
               f"v_add_f32 v{RESS+2*i}, v{RESS+2*i}, v{RESX+i}", f"v_add_f32 v{RESS+2*i+1}, v{RESS+2*i+1}, v{RESB+i}"]
    side[9] += un[:24]; side[10] += un[24:]
    pend = [q for q, (kd, kr) in enumerate(cfg.w2s) if kr is None and kd is not None]
    late = [q for q, (kd, kr) in enumerate(cfg.w2s) if kd is None]
    pos = 0
    for q in pend:
        side[pos] += w2_read(q); pos += 1
        for l in list(late):
            if W2PAGE[l] == W2PAGE[q] and not [x for x in pend if x > q and W2PAGE[x] == W2PAGE[l]]:
                side[pos] += w2groups(l, pair=False); late.remove(l); side[min(l - 2, pos + 6)] += w2_read(l)
    assert not late
    oa = [f"v_and_b32 v{VRW}, 1, v{VG}", f"v_lshlrev_b32 v{VRW}, 5, v{VRW}", f"v_lshrrev_b32 v{VOUT}, 1, v{VG}",
          f"v_lshl_add_u32 v{VRW}, v{VOUT}, 4, v{VRW}", f"v_lshl_add_u32 v{VOUT}, v{VT}, 11, v{VRW}",
          f"v_lshlrev_b32 v{VRR+2}, 4, v2", f"v_add_u32 v{VRW}, s{S2_MW}, v{VRR+2}", f"v_add_u32 v{VRW+1}, {REDO[2]}, v{VRW}"]
    for i in (1, 2, 3):
        oa += [[f"s_sub_u32 s4, s{S_W}, {i}", "s_and_b32 s4, s4, 3", "s_lshl_b32 s4, s4, 13", f"s_add_u32 s4, s4, {REDO[i-1]}"],
               f"v_add_u32 v{VRR+i-1}, s4, v{VRR+2}"]
    side[12] += oa
    e(hcheck(0)); e("s_nop 0")
    e(f"s_cbranch_vccnz L_rt0{sfx}"); e(f"L_ok0{sfx}:")
    stamp(e, cfg, "poll")
    for q in range(15):
        M = []
        sls = (1, 2, 3, 0) if q == 11 else (0, 1, 2, 3)
        for sl in sls:
            for nt in range(4):
                c = vr(ACC2(sl, nt), 4) if q > 0 else "0"
                M.append(f"v_mfma_f32_16x16x32_bf16 {vr(ACC2(sl,nt),4)}, {ar(W2F(q)+4*nt,4)}, {vr(HB[q%7]+4*sl,4)}, {c}")
        slots = [[] for _ in range(16)]
        S = list(side[q])
        if q + W < 15: S = merge(hslot(q + W), S)
        if q == 11:
            inj = [f"v_pk_add_f32 {vr(ACC2(0,nt)+2*h,2)}, {vr(ACC2(0,nt)+2*h,2)}, {vr(RESS+4*nt+2*h,2)}" for nt in range(4) for h in range(2)]
            for i, x in enumerate(inj): slots[3 + i // 2].append(x)
        for i, x in enumerate(S): slots[min(int(i * 11 / max(len(S), 1)), 11)].append(x)
        if q < 14:
            c = hcheck(q + 1)
            slots[12] += c[:2]; slots[13].append(c[2])
            slots[14] += [f"s_cbranch_vccnz L_rt{q+1}{sfx}", f"L_ok{q+1}{sfx}:"]
        for i, (m, s) in enumerate(zip(M, slots)):
            e(m); e(s)
            if q == 0 and i == 0: stamp(e, cfg, "hld")
        if q == 7: stamp(e, cfg, "q7")
        if q == 11: stamp(e, cfg, "q11")
    stamp(e, cfg, "mm")
    for sl in range(1, 4):
        for nt in range(4):
            r, o = (VRW, REDO[sl-1]) if sl < 3 else (VRW + 1, 0)
            e(f"ds_write_b128 v{r}, {vr(ACC2(sl,nt),4)} offset:{o+nt*1024}")
    e.wait(lg=0)
    e("s_barrier")
    for i in range(1, 4):
        for nt in range(4):
            e(f"ds_read_b128 {vr(ACC2(i,nt),4)}, v{VRR+i-1} offset:{nt*1024}")
    for i in range(1, 4):
        for nt in range(4):
            for h in range(2):
                a = ACC2(0, nt) + 2 * h
                e(f"v_pk_add_f32 {vr(a,2)}, {vr(a,2)}, {vr(ACC2(i,nt)+2*h,2)}")
    for P in range(2):
        Q = 4 + 4 * P
        for u in range(2):
            a = ACC2(0, 2 * P + u)
            e(f"v_cvt_pk_bf16_f32 v{Q+2*u}, v{a}, v{a+1}"); e(f"v_cvt_pk_bf16_f32 v{Q+2*u+1}, v{a+2}, v{a+3}")
        e(f"v_permlane16_swap_b32 v{Q}, v{Q+2}"); e(f"v_permlane16_swap_b32 v{Q+1}, v{Q+3}")
        e(f"buffer_store_dwordx4 {vr(Q,4)}, v{VOUT}, {sr(SO,4)}, 0 offen offset:{64*P}")
    stamp(e, cfg, "end")
    if cfg.stamps and "drain" in cfg.stamps:
        e.wait(vm=0); stamp(e, cfg, "drain")
    write_stamps(e, cfg, len(cfg.stamps or []), 0x1000000)
    e("s_endpgm")

def slow_paths(e, cfg, sfx):
    def clean(): e.vm = []; e.lg = []; e._raw(Ins("; ---")); e.out[-1].kind = "flush"; e.out[-1].text = ""
    dec = [f"s_sub_u32 s{S_CNT}, s{S_CNT}, 1", f"s_cselect_b32 s{S_CNT}, 0, s{S_CNT}"]
    clean()
    e(f"L_ep{sfx}:")
    e(dec); e(f"s_cbranch_scc1 L_epok{sfx}")
    e([epl()]); e("s_waitcnt vmcnt(0)"); e.vm = []
    e(f"v_readlane_b32 s4, v{VEP}, s{S_MT}"); e("s_nop 1"); e("s_cmp_eq_u32 s4, 0")
    e(f"s_cbranch_scc1 L_ep{sfx}"); e(f"s_branch L_epok{sfx}")
    clean()
    e(f"L_fl{sfx}:")
    e(dec); e(f"s_cbranch_scc1 L_flok{sfx}")
    e([epl()]); e(f"s_mov_b32 s{S_HT2}, {FLAGOFF}"); e([fll()]); e("s_waitcnt vmcnt(0)"); e.vm = []
    e(flcmp()); e("s_or_b64 vcc, vcc, s[4:5]")
    e(f"s_cbranch_scc1 L_fl{sfx}"); e(f"s_branch L_flok{sfx}")
    for q in range(15):
        clean()
        e(f"L_rt{q}{sfx}:")
        e(dec); e(f"s_cbranch_scc1 L_ok{q}{sfx}")
        for r in range(q, min(q + cfg.rtw, 15, q + 6)):
            e(hso(r, S_HT2))
            for sl in range(4): e([hload(r, sl, S_HT2)])
        e("s_waitcnt vmcnt(0)"); e.vm = []
        e(hcheck(q)); e("s_nop 1")
        e(f"s_cbranch_vccnz L_rt{q}{sfx}"); e(f"s_branch L_ok{q}{sfx}")

def kernel(cfg):
    e = Emitter()
    common(e, cfg)
    st = e.save()
    for attn in (True, False):
        sfx = "a" if attn else "f"
        if not attn:
            e("L_ffn:"); e.restore(st)
        prologue(e, cfg, attn)
        mainloop(e, cfg, attn, sfx)
        e(attn_epilogue(cfg) if attn else ffn_epilogue(cfg))
        phase2(e, cfg, sfx)
        slow_paths(e, cfg, sfx)
    e("L_end:")
    e("s_endpgm")
    return e

def desc(name, vg, acc):
    return f""".section .rodata,"a"
.p2align 6
.amdhsa_kernel {name}
  .amdhsa_next_free_vgpr {vg}
  .amdhsa_next_free_sgpr 102
  .amdhsa_accum_offset {acc}
  .amdhsa_group_segment_fixed_size 0
  .amdhsa_kernarg_size 88
  .amdhsa_user_sgpr_count 2
  .amdhsa_user_sgpr_kernarg_segment_ptr 1
  .amdhsa_system_sgpr_workgroup_id_x 1
.end_amdhsa_kernel
"""
def head(name): return f".globl {name}\n.p2align 8\n.type {name},@function\n{name}:\n"

W2S = {
    "a": [(2, 5), (3, 6), (5, 8), (6, 9), (8, 11), (9, 12), (11, 14), (11, 14), (12, None), (12, None), (13, None), (13, None),
          (14, None), (15, None), (None, None)],
    "b": [(3, 6), (4, 7), (6, 9), (7, 10), (9, 12), (10, 13), (12, 15), (11, 14), (13, None), (11, None), (13, None), (14, None),
          (15, None), (14, None), (None, None)],
}

def main():
    ap = argparse.ArgumentParser()
    ap.add_argument("out"); ap.add_argument("--stamps", default="")
    ap.add_argument("--sxat", type=int, default=12); ap.add_argument("--mall2", type=int, default=0); ap.add_argument("--swave", type=int, default=0)
    ap.add_argument("--clrk", default="1,2,3,4"); ap.add_argument("--epk", type=int, default=4); ap.add_argument("--flk", type=int, default=7)
    ap.add_argument("--chk", type=int, default=12); ap.add_argument("--w2s", default="a"); ap.add_argument("--pfg", type=int, default=8)
    ap.add_argument("--pfa", type=float, default=0.2); ap.add_argument("--rtw", type=int, default=4); ap.add_argument("--pper", type=float, default=3)
    ap.add_argument("-x", default=""); ap.add_argument("--wsoff", type=int, default=0)
    a = ap.parse_args()
    cfg = Cfg(); cfg.x = a.x.split(","); cfg.stamps = [x for x in a.stamps.split(',') if x]
    for k in ("sxat", "mall2", "swave", "epk", "flk", "chk", "pfg", "pfa", "rtw", "pper"): setattr(cfg, k, getattr(a, k))
    cfg.clrk = [int(x) for x in a.clrk.split(",")]; cfg.w2s = W2S[a.w2s]
    XOPT.extend(cfg.x); cfg.wsoff = a.wsoff
    k = kernel(cfg)
    s = "; hand-scheduled CDNA4 assembly (emitted by a macro script)\n"
    s += f"; stamps: {a.stamps} x: {a.x}\n" if a.stamps else ""
    s += f"; @launch grid=(256,1,1) block=(256,1,1) lds=163840\n"
    s += '.amdgcn_target "amdgcn-amd-amdhsa--gfx950"\n.text\n'
    s += head(NAME + "_kernel") + k.text()
    s += desc(NAME + "_kernel", 512, 256)
    open(a.out, "w").write(s)
    print("nops:", k.nops, "instrs:", len(k.out))
main()
```

```python
import re

TRANS = ("v_exp_f32", "v_log_f32", "v_rcp_f32", "v_rsq_f32", "v_sqrt_f32", "v_sin_f32", "v_cos_f32", "v_rcp_iflag_f32")
NODST_S = ("s_cmp", "s_waitcnt", "s_barrier", "s_nop", "s_branch", "s_cbranch", "s_setprio", "s_sleep", "s_endpgm",
           "s_bitcmp", "s_sethalt", "s_setreg")

def split_ops(s):
    out, depth, cur = [], 0, ""
    for ch in s:
        if ch == "[": depth += 1
        if ch == "]": depth -= 1
        if ch == "," and depth == 0:
            out.append(cur.strip()); cur = ""
        else:
            cur += ch
    if cur.strip(): out.append(cur.strip())
    return out

REG = re.compile(r"^-?\|?(?:abs\()?([vas])(?:(\d+)|\[(\d+):(\d+)\])\)?\|?$")
def regs_of(tok):
    tok = tok.strip()
    if tok in ("vcc",): return {("s", 106), ("s", 107)}
    if tok == "vcc_lo": return {("s", 106)}
    if tok == "vcc_hi": return {("s", 107)}
    if tok == "exec": return {("x", 0)}
    if tok == "m0": return {("m", 0)}
    m = REG.match(tok)
    if not m: return set()
    k = m.group(1)
    if m.group(2) is not None: return {(k, int(m.group(2)))}
    return {(k, i) for i in range(int(m.group(3)), int(m.group(4)) + 1)}

class Ins:
    def __init__(self, text, tag=None):
        self.text = text; self.tag = tag
        t = text.split(";")[0].strip()
        self.label = t.endswith(":")
        self.dst = set(); self.src = set(); self.srcC = set(); self.srcAB = set()
        self.kind = "other"; self.op = ""; self.dpp = False; self.wide_store = set()
        if self.label or not t or t.startswith("."):
            self.kind = "label" if self.label else "dir"; return
        parts = t.split(None, 1)
        op = parts[0]; self.op = op
        rest = parts[1] if len(parts) > 1 else ""
        ops = split_ops(rest)
        mods = ""
        if ops:
            last = ops[-1].split(None, 1)
            if len(last) > 1 and not last[0].endswith("(") :
                ops[-1] = last[0]; mods = last[1]
        self.mods = mods
        R = [regs_of(o) for o in ops]
        allr = lambda lst: set().union(*lst) if lst else set()
        if op.startswith("v_mfma"):
            self.kind = "mfma"; self.dst = R[0]; self.srcAB = R[1] | R[2]; self.srcC = R[3]
            self.src = self.srcAB | self.srcC
            self.passes = 8 if "32x32" in op else 4
            self.dtok = ops[0]; self.ctok = ops[3]
        elif op.startswith("v_"):
            self.kind = "valu"
            self.dpp = ("_dpp" in op) or ("row_" in mods) or ("quad_perm" in mods)
            if op.startswith("v_permlane") and "swap" in op:
                self.dst = R[0] | R[1]; self.src = R[0] | R[1]
            elif op.startswith("v_cmp"):
                self.dst = R[0]; self.src = allr(R[1:])
            elif op.startswith("v_nop"):
                pass
            else:
                self.dst = R[0]; self.src = allr(R[1:])
                if op.startswith(("v_fmac", "v_pk_fmac", "v_dot2c", "v_writelane")) or self.dpp: self.src |= R[0]
                if op.startswith(("v_add_co", "v_addc_co", "v_sub_co", "v_subb_co")):
                    self.dst |= R[1]; self.src = allr(R[2:])
            self.trans = op.replace("_e32", "").replace("_e64", "") in TRANS
        elif op.startswith("ds_"):
            self.kind = "ds"
            if op.startswith(("ds_read", "ds_bpermute", "ds_permute", "ds_swizzle")) or "_rtn" in op:
                self.dst = R[0]; self.src = allr(R[1:])
            else:
                self.src = allr(R)
        elif op.startswith(("buffer_", "global_")):
            self.kind = "vm"
            lds = bool(re.search(r"\blds\b", mods)) or "_lds_" in op
            self.lds = lds
            if "load" in op and not lds:
                self.dst = R[0]; self.src = allr(R[1:])
            elif lds:
                self.src = allr(R) | {("m", 0)}
            else:
                self.src = allr(R)
                if "atomic" in op and "sc0" in mods:
                    self.dst = R[0] if op.startswith("buffer") else R[0]
                if "x3" in op or "x4" in op:
                    self.wide_store = R[0] if op.startswith("buffer") else R[1]
        elif op.startswith(("s_load", "s_memtime", "s_memrealtime", "s_buffer_load")):
            self.kind = "smem"; self.dst = R[0]; self.src = allr(R[1:])
        elif op.startswith("s_"):
            self.kind = "salu"
            if op.startswith(NODST_S):
                self.src = allr(R)
            else:
                self.dst = R[0]; self.src = allr(R[1:])
                if op.startswith(("s_cmov", "s_addk", "s_mulk")): self.src |= R[0]
                if "saveexec" in op: self.dst |= {("x", 0)}
        else:
            raise ValueError("unknown instr " + text)

    def states(self):
        if self.kind in ("label", "dir"): return 0
        if self.op == "s_nop": return int(self.text.split()[1], 0) + 1
        return 1

def only(regs, kinds): return {r for r in regs if r[0] in kinds}

class Emitter:
    notes = False
    hook = None
    def __init__(self):
        self.out = []
        self.vm = []
        self.lg = []
        self.nops = 0
        self.tags = {}
    def _wait(self, vm=None, lg=None):
        s = []; note = ""
        if vm is not None:
            vm = min(vm, 63)
            if vm < len(self.vm):
                gone = self.vm[:len(self.vm) - vm]; cm = []
                for x in gone:
                    if not cm or cm[-1][0] != x[1]: cm.append([x[1], 0])
                    cm[-1][1] += 1
                note = " ; " + " ".join(f"{a}*{b}" for a, b in cm) if Emitter.notes else ""
                s.append(f"vmcnt({vm})"); self.vm = self.vm[len(self.vm) - vm:] if vm else []
        if lg is not None:
            if any(x[2] for x in self.lg): lg = 0
            lg = min(lg, 15)
            if lg < len(self.lg):
                s.append(f"lgkmcnt({lg})"); self.lg = self.lg[len(self.lg) - lg:] if lg else []
        if s: self._raw(Ins("s_waitcnt " + " ".join(s) + note))
    def wait(self, vm_tag=None, lg_tag=None, vm=None, lg=None):
        if vm_tag is not None:
            idx = [i for i, x in enumerate(self.vm) if x[1] == vm_tag]
            if idx:
                n = len(self.vm) - 1 - idx[-1]; vm = n if vm is None else min(vm, n)
        if lg_tag is not None:
            idx = [i for i, x in enumerate(self.lg) if x[1] == lg_tag]
            if idx:
                n = len(self.lg) - 1 - idx[-1]; lg = n if lg is None else min(lg, n)
        self._wait(vm, lg)
    def _auto(self, ins):
        touch = ins.src | ins.dst
        vm = lg = None
        for i, x in enumerate(self.vm):
            if x[0] & touch: vm = len(self.vm) - 1 - i
        for i, x in enumerate(self.lg):
            if x[0] & touch: lg = len(self.lg) - 1 - i
        if vm is not None or lg is not None: self._wait(vm, lg)
    def _need(self, ins):
        need = 0; dist = 0
        for p in reversed(self.out):
            if dist >= 20: break
            if p.kind == "flush": break
            r = self._rule(p, ins) if ins is not None else self._worst(p)
            if r > dist: need = max(need, r - dist)
            dist += p.states()
        return need
    @staticmethod
    def _worst(p):
        if p.kind == "mfma": return 8 if p.passes == 4 else 12
        if p.kind == "valu": return 5 if only(p.dst, "s") else 2
        if p.kind == "salu" and ("m", 0) in p.dst: return 1
        if p.kind == "vm" and p.wide_store: return 2
        return 0
    @staticmethod
    def _rule(p, c):
        r = 0
        if p.kind == "valu":
            pv = only(p.dst, "va"); ps = only(p.dst, "s")
            if c.kind == "mfma" and pv & c.src: r = max(r, 2)
            if c.kind == "valu":
                if c.dpp and pv & c.src: r = max(r, 2)
                if c.op.startswith("v_permlane") and pv & c.src: r = max(r, 2)
                if c.op.startswith(("v_readlane", "v_readfirstlane")) and pv & c.src: r = max(r, 1)
                if p.trans and not c.trans and pv & c.src: r = max(r, 1)
                if p.trans and c.trans and pv & c.src: r = max(r, 1)
                if ps & c.src: r = max(r, 4 if c.op.startswith(("v_readlane", "v_writelane")) else 2)
                if p.op.startswith("v_dot") and pv & (c.src | c.dst): r = max(r, 3)
            if c.kind in ("vm", "ds") and ps & c.src: r = max(r, 5)
            if p.op.startswith("v_dot") and c.kind in ("vm", "ds", "mfma") and pv & (c.src | c.dst): r = max(r, 3)
            if ("x", 0) in p.dst: r = max(r, 5)
        elif p.kind == "mfma":
            n4 = p.passes == 4
            if c.kind == "mfma":
                if p.dst & c.srcAB: r = max(r, 8 if n4 else 12)
                if p.dst & c.srcC:
                    if not (p.dtok == c.ctok and p.passes == c.passes): r = max(r, 6 if n4 else 10)
                elif p.dst & c.dst: r = max(r, 8 if n4 else 12)
            elif c.kind in ("valu", "vm", "ds"):
                if p.dst & (c.src | c.dst): r = max(r, 8 if n4 else 12)
                if c.kind == "valu" and p.srcC & c.dst: r = max(r, 3 if n4 else 7)
        elif p.kind == "salu":
            if ("m", 0) in p.dst and c.kind == "vm" and c.lds: r = max(r, 1)
        elif p.kind == "vm":
            if p.wide_store & c.dst: r = max(r, 2)
        return r
    def _raw(self, ins):
        self.out.append(ins)
    def _pad(self, n):
        while n > 0:
            k = min(n, 16); self._raw(Ins(f"s_nop {k - 1}")); n -= k; self.nops += k
    def flush(self):
        self._pad(self._need(None))
    def __call__(self, text, tag=None):
        if isinstance(text, (list, tuple)):
            for t in text:
                if isinstance(t, tuple): self(*t)
                elif callable(t): t(self)
                else: self(t)
            return
        if callable(text):
            text(self); return
        ins = Ins(text, tag)
        if ins.kind in ("label", "dir"):
            self._raw(ins); return
        self._auto(ins)
        self._pad(self._need(ins))
        self._raw(ins)
        if tag: self.tags[tag] = self.tags.get(tag, 0) + 1
        if ins.kind == "vm": self.vm.append((set(ins.dst), tag))
        elif ins.kind == "ds": self.lg.append((set(ins.dst), tag, False))
        elif ins.kind == "smem": self.lg.append((set(ins.dst), tag, True))
        if tag and self.hook: self.hook(self, tag, self.tags[tag])
    def seen(self, tag, n=1):
        assert self.tags.get(tag, 0) >= n, f'{tag} not emitted yet'
    def save(self): return (list(self.vm), list(self.lg), dict(self.tags))
    def restore(self, st):
        self.vm, self.lg, self.tags = list(st[0]), list(st[1]), dict(st[2])
    def text(self):
        return "\n".join(("" if i.kind in ("label", "dir") else "  ") + i.text for i in self.out) + "\n"

def weave(main, side, start=0, per=2, end=None):
    out = []; k = 0; acc = 0.0
    for i, m in enumerate(main):
        out.append(m)
        if i >= start and (end is None or i < end):
            acc += per
            while acc >= 1 - 1e-9 and k < len(side):
                out.append(side[k]); k += 1; acc -= 1
    out.extend(side[k:])
    return out


class Delay:
    def __init__(self, n): self.n = n
class At:
    def __init__(self, item, lo=None, dl=None, tg=None): self.item, self.lo, self.dl, self.tg = item, lo, dl, tg

def flat(x):
    if isinstance(x, list):
        r = []
        for y in x: r += flat(y)
        return r
    return [x]
def kind(x):
    if callable(x): return ("z", 0) if getattr(x, "free", False) else ("s", 4)
    if isinstance(x, tuple): x = x[0]
    op = x.split()[0]
    if op.endswith(":"): return ("z", 0)
    if op.startswith("v_mfma"): return ("m", 16)
    if op.startswith("v_pk_"): return ("p", 4)
    if op == "s_nop": return ("s", 4 * (int(x.split()[1]) + 1))
    if op.startswith("s_"): return ("s", 4)
    if op.startswith("v_"):
        o = op.replace("_e32", "").replace("_e64", "")
        return ("v", 8 if (o in TRANS or o.startswith("v_permlane")) else 4)
    if op.startswith("ds_"): return ("d", 12 if "write_b128" in op else 8)
    return ("g", 8)
def simt(st, x):
    t, va, m0 = st
    k, c = kind(x)
    txt = x[0] if isinstance(x, tuple) else x if isinstance(x, str) else ""
    if k == "z": return st
    if k == "s": return (t + c, va, " m0," in txt)
    if k == "d": return (t + c + (8 if va else 0), va, False)
    if k == "g": return (max(t + (4 if m0 and txt.endswith(" lds") else 0), 8) + c + (8 if va else 0), va, False)
    if k == "v": return (max(t, 8) + c, True, False)
    if k == "p": return (max(t, 17) + c, True, False)
    return (max(t, 16) + 4, False, False)
RANK = {"z": 0, "s": 0, "d": 1, "g": 1, "v": 2, "p": 4, "m": 5}
class It:
    def __init__(self, ins):
        self.ins = ins; f = flat(ins); self.f = f
        ks = [kind(x)[0] for x in f]
        ns = [k for k in ks if k not in "sz"]
        self.k = ns[0] if ns else "s"; self.rank = RANK[self.k]
        self.cost = sum(kind(x)[1] for x in f)
        self.lo = -1; self.dl = None; self.tg = None; self.delay = 0
class Q:
    def __init__(self, items, lo, hi, slack=4, ahead=1.5, prio=0.0, per=None, name="", cad=0.0):
        self.slack, self.ahead, self.prio, self.name = slack, ahead, prio, name
        L = []; dly = 0
        for x in items:
            if isinstance(x, Delay): dly = x.n; continue
            a = x if isinstance(x, At) else At(x)
            it = It(a.item)
            if it.k == "p" and len(it.f) == 1 and L and L[-1].k == "p" and not dly and a.lo is None and all(kind(y)[0] == "p" for y in L[-1].f):
                L[-1] = It(L[-1].f + it.f); L[-1].delay = pd; continue
            it.lo = lo if a.lo is None else a.lo; it.dl = a.dl; it.tg = a.tg; it.delay = dly; pd = dly; dly = 0
            L.append(it)
        w = lambda it: 2 if it.k == "p" else it.cost
        if per is not None:
            nxt = lo
            for it in L:
                if it.lo < 0: it.lo = lo
                if it.k != "s": it.tg = max(nxt, it.lo, it.tg or 0); nxt = it.tg + per
            nx = None
            for it in reversed(L):
                if it.k == "s": it.tg = max(it.lo, (nx if nx is not None else nxt) - 2)
                else: nx = it.tg
        else:
            tot = sum(w(it) for it in L) or 1; acc = 0; prev = lo
            for it in L:
                if it.lo < 0: it.lo = lo
                if it.tg is None: it.tg = max(lo + (hi - lo) * acc / tot, it.lo, prev)
                prev = it.tg + cad * w(it) / 8; acc += w(it)
        for it in L:
            if it.dl is None: it.dl = it.tg + slack
        for i in range(len(L) - 2, -1, -1): L[i].dl = min(L[i].dl, L[i + 1].dl)
        self.L = L; self.i = 0; self.last = -99
    def head(self, k=0): return self.L[self.i + k] if self.i + k < len(self.L) else None

def pack(e, anchors, queues, fixed=None, tol=17, log=None):
    fixed = fixed or {}
    total = 0
    def order(sel): return sorted(sel, key=lambda z: z[0])
    def cost(pre, sel):
        st = pre
        for z in order(sel):
            for x in z[2].f: st = simt(st, x)
        return st
    n = len(anchors); g = 0; sub = 0
    while g < n:
        if not sub:
            if Emitter.notes: e._raw(Ins(f"; gap {g}"))
            e(anchors[g])
        st0 = (4, False, False)
        if not sub:
            for x in flat(fixed.get(g, [])): st0 = simt(st0, x)
            e(fixed.get(g, []))
        sel = []; taken = {id(q): 0 for q in queues}; lastr = {}
        def cands(force):
            C = []
            for q in queues:
                it = q.head(taken[id(q)])
                if it is None or it.lo > g: continue
                if it.delay and (taken[id(q)] or clock - q.last < it.delay): continue
                if force:
                    if it.dl > g: continue
                elif it.tg > g + q.ahead: continue
                C.append((g - it.tg + q.prio, q, it))
            return sorted(C, key=lambda z: -z[0])
        clock = getattr(pack, "clock", 0)
        def rk(q, it):
            r = it.rank
            if id(q) in lastr and r < lastr[id(q)]: r = 3 if it.k == "s" else None if lastr[id(q)] > 3 else lastr[id(q)]
            if r == 0 and any(z[0] == 0 for z in sel): r = 3
            return r
        def take(q, it, r):
            sel.append((r, q, it)); taken[id(q)] += 1; lastr[id(q)] = r
        extra = None
        prog = True
        while prog:
            prog = False
            for u, q, it in cands(False):
                if it.k in "pm": continue
                r = rk(q, it)
                if r is None: continue
                if cost(st0, sel + [(r, q, it)])[0] <= tol: take(q, it, r); prog = True; break
        prog = True
        while prog:
            prog = False
            for u, q, it in cands(True):
                if it.k in "pm": continue
                r = rk(q, it)
                if r is None: continue
                take(q, it, r); prog = True; break
        for u, q, it in cands(False):
            if it.k == "p" and it.tg <= g + 0.5 and not any(z[2].k == "p" for z in sel): take(q, it, 4)
        for u, q, it in cands(False):
            if it.k == "m" and it.tg <= g + 0.5 and extra is None and lastr.get(id(q), 0) <= 4: take(q, it, 5); extra = it
        c = cost(st0, [z for z in sel if z[2] is not extra])[0]
        total += max(16, c)
        if log is not None: log.append((g, max(16, c), "".join(z[2].k for z in order(sel))))
        for r, q, it in order(sel): e([it.ins])
        for q in queues:
            if taken[id(q)]: q.i += taken[id(q)]; q.last = clock
        pack.clock = clock + 1
        if extra is not None: sub = 1
        else: sub = 0; g += 1
    left = 0
    rest = True
    while rest:
        rest = False
        h = [(q.head().tg, i, q) for i, q in enumerate(queues) if q.head() is not None]
        if h:
            _, _, q = min(h); e([q.head().ins]); left += q.head().cost; q.i += 1; rest = True
    return total, left
```

```python
import re

TRANS = ("v_exp_f32", "v_log_f32", "v_rcp_f32", "v_rsq_f32", "v_sqrt_f32", "v_sin_f32", "v_cos_f32", "v_rcp_iflag_f32")
NODST_S = ("s_cmp", "s_waitcnt", "s_barrier", "s_nop", "s_branch", "s_cbranch", "s_setprio", "s_sleep", "s_endpgm",
           "s_bitcmp", "s_sethalt", "s_setreg")

def split_ops(s):
    out, depth, cur = [], 0, ""
    for ch in s:
        if ch == "[": depth += 1
        if ch == "]": depth -= 1
        if ch == "," and depth == 0:
            out.append(cur.strip()); cur = ""
        else:
            cur += ch
    if cur.strip(): out.append(cur.strip())
    return out

REG = re.compile(r"^-?\|?(?:abs\()?([vas])(?:(\d+)|\[(\d+):(\d+)\])\)?\|?$")
def regs_of(tok):
    tok = tok.strip()
    if tok in ("vcc",): return {("s", 106), ("s", 107)}
    if tok == "vcc_lo": return {("s", 106)}
    if tok == "vcc_hi": return {("s", 107)}
    if tok == "exec": return {("x", 0)}
    if tok == "m0": return {("m", 0)}
    m = REG.match(tok)
    if not m: return set()
    k = m.group(1)
    if m.group(2) is not None: return {(k, int(m.group(2)))}
    return {(k, i) for i in range(int(m.group(3)), int(m.group(4)) + 1)}

class Ins:
    def __init__(self, text, tag=None):
        self.text = text; self.tag = tag
        t = text.split(";")[0].strip()
        self.label = t.endswith(":")
        self.dst = set(); self.src = set(); self.srcC = set(); self.srcAB = set()
        self.kind = "other"; self.op = ""; self.dpp = False; self.wide_store = set()
        if self.label or not t or t.startswith("."):
            self.kind = "label" if self.label else "dir"; return
        parts = t.split(None, 1)
        op = parts[0]; self.op = op
        rest = parts[1] if len(parts) > 1 else ""
        ops = split_ops(rest)
        mods = ""
        if ops:
            last = ops[-1].split(None, 1)
            if len(last) > 1 and not last[0].endswith("(") :
                ops[-1] = last[0]; mods = last[1]
        self.mods = mods
        R = [regs_of(o) for o in ops]
        allr = lambda lst: set().union(*lst) if lst else set()
        if op.startswith("v_mfma"):
            self.kind = "mfma"; self.dst = R[0]; self.srcAB = R[1] | R[2]; self.srcC = R[3]
            self.src = self.srcAB | self.srcC
            self.passes = 8 if "32x32" in op else 4
            self.dtok = ops[0]; self.ctok = ops[3]
        elif op.startswith("v_"):
            self.kind = "valu"
            self.dpp = ("_dpp" in op) or ("row_" in mods) or ("quad_perm" in mods)
            if op.startswith("v_permlane") and "swap" in op:
                self.dst = R[0] | R[1]; self.src = R[0] | R[1]
            elif op.startswith("v_cmp"):
                self.dst = R[0]; self.src = allr(R[1:])
            elif op.startswith("v_nop"):
                pass
            else:
                self.dst = R[0]; self.src = allr(R[1:])
                if op.startswith(("v_fmac", "v_pk_fmac", "v_dot2c", "v_writelane")) or self.dpp: self.src |= R[0]
                if op.startswith(("v_add_co", "v_addc_co", "v_sub_co", "v_subb_co")):
                    self.dst |= R[1]; self.src = allr(R[2:])
            self.trans = op.replace("_e32", "").replace("_e64", "") in TRANS
        elif op.startswith("ds_"):
            self.kind = "ds"
            if op.startswith(("ds_read", "ds_bpermute", "ds_permute", "ds_swizzle")) or "_rtn" in op:
                self.dst = R[0]; self.src = allr(R[1:])
            else:
                self.src = allr(R)
        elif op.startswith(("buffer_", "global_")):
            self.kind = "vm"
            lds = bool(re.search(r"\blds\b", mods)) or "_lds_" in op
            self.lds = lds
            if "load" in op and not lds:
                self.dst = R[0]; self.src = allr(R[1:])
            elif lds:
                self.src = allr(R) | {("m", 0)}
            else:
                self.src = allr(R)
                if "atomic" in op and "sc0" in mods:
                    self.dst = R[0] if op.startswith("buffer") else R[0]
                if "x3" in op or "x4" in op:
                    self.wide_store = R[0] if op.startswith("buffer") else R[1]
        elif op.startswith(("s_load", "s_memtime", "s_memrealtime", "s_buffer_load")):
            self.kind = "smem"; self.dst = R[0]; self.src = allr(R[1:])
        elif op.startswith("s_"):
            self.kind = "salu"
            if op.startswith(NODST_S):
                self.src = allr(R)
            else:
                self.dst = R[0]; self.src = allr(R[1:])
                if op.startswith(("s_cmov", "s_addk", "s_mulk")): self.src |= R[0]
                if "saveexec" in op: self.dst |= {("x", 0)}
        else:
            raise ValueError("unknown instr " + text)

    def states(self):
        if self.kind in ("label", "dir"): return 0
        if self.op == "s_nop": return int(self.text.split()[1], 0) + 1
        return 1

def only(regs, kinds): return {r for r in regs if r[0] in kinds}

class Emitter:
    notes = False
    hook = None
    def __init__(self):
        self.out = []
        self.vm = []
        self.lg = []
        self.nops = 0
        self.tags = {}
    def _wait(self, vm=None, lg=None):
        s = []; note = ""
        if vm is not None:
            vm = min(vm, 63)
            if vm < len(self.vm):
                gone = self.vm[:len(self.vm) - vm]; cm = []
                for x in gone:
                    if not cm or cm[-1][0] != x[1]: cm.append([x[1], 0])
                    cm[-1][1] += 1
                note = " ; " + " ".join(f"{a}*{b}" for a, b in cm) if Emitter.notes else ""
                s.append(f"vmcnt({vm})"); self.vm = self.vm[len(self.vm) - vm:] if vm else []
        if lg is not None:
            if any(x[2] for x in self.lg): lg = 0
            lg = min(lg, 15)
            if lg < len(self.lg):
                s.append(f"lgkmcnt({lg})"); self.lg = self.lg[len(self.lg) - lg:] if lg else []
        if s: self._raw(Ins("s_waitcnt " + " ".join(s) + note))
    def wait(self, vm_tag=None, lg_tag=None, vm=None, lg=None):
        if vm_tag is not None:
            idx = [i for i, x in enumerate(self.vm) if x[1] == vm_tag]
            if idx:
                n = len(self.vm) - 1 - idx[-1]; vm = n if vm is None else min(vm, n)
        if lg_tag is not None:
            idx = [i for i, x in enumerate(self.lg) if x[1] == lg_tag]
            if idx:
                n = len(self.lg) - 1 - idx[-1]; lg = n if lg is None else min(lg, n)
        self._wait(vm, lg)
    def _auto(self, ins):
        touch = ins.src | ins.dst
        vm = lg = None
        for i, x in enumerate(self.vm):
            if ins.tag == "touch" and x[1] == "touch" and not (x[0] & ins.src): continue
            if x[0] & touch: vm = len(self.vm) - 1 - i
        for i, x in enumerate(self.lg):
            if x[0] & touch: lg = len(self.lg) - 1 - i
        if vm is not None or lg is not None: self._wait(vm, lg)
    def _need(self, ins):
        need = 0; dist = 0
        for p in reversed(self.out):
            if dist >= 20: break
            if p.kind == "flush": break
            r = self._rule(p, ins) if ins is not None else self._worst(p)
            if r > dist: need = max(need, r - dist)
            dist += p.states()
        return need
    @staticmethod
    def _worst(p):
        if p.kind == "mfma": return 8 if p.passes == 4 else 12
        if p.kind == "valu": return 5 if only(p.dst, "s") else 2
        if p.kind == "salu" and ("m", 0) in p.dst: return 1
        if p.kind == "vm" and p.wide_store: return 2
        return 0
    @staticmethod
    def _rule(p, c):
        r = 0
        if p.kind == "valu":
            pv = only(p.dst, "va"); ps = only(p.dst, "s")
            if c.kind == "mfma" and pv & c.src: r = max(r, 2)
            if c.kind == "valu":
                if c.dpp and pv & c.src: r = max(r, 2)
                if c.op.startswith("v_permlane") and pv & c.src: r = max(r, 2)
                if c.op.startswith(("v_readlane", "v_readfirstlane")) and pv & c.src: r = max(r, 1)
                if p.trans and not c.trans and pv & c.src: r = max(r, 1)
                if p.trans and c.trans and pv & c.src: r = max(r, 1)
                if ps & c.src: r = max(r, 4 if c.op.startswith(("v_readlane", "v_writelane")) else 2)
                if p.op.startswith("v_dot") and pv & (c.src | c.dst): r = max(r, 3)
            if c.kind in ("vm", "ds") and ps & c.src: r = max(r, 5)
            if p.op.startswith("v_dot") and c.kind in ("vm", "ds", "mfma") and pv & (c.src | c.dst): r = max(r, 3)
            if ("x", 0) in p.dst: r = max(r, 5)
        elif p.kind == "mfma":
            n4 = p.passes == 4
            if c.kind == "mfma":
                if p.dst & c.srcAB: r = max(r, 8 if n4 else 12)
                if p.dst & c.srcC:
                    if not (p.dtok == c.ctok and p.passes == c.passes): r = max(r, 6 if n4 else 10)
                elif p.dst & c.dst: r = max(r, 8 if n4 else 12)
            elif c.kind in ("valu", "vm", "ds"):
                if p.dst & (c.src | c.dst): r = max(r, 8 if n4 else 12)
                if c.kind == "valu" and p.srcC & c.dst: r = max(r, 3 if n4 else 7)
        elif p.kind == "salu":
            if ("m", 0) in p.dst and c.kind == "vm" and c.lds: r = max(r, 1)
        elif p.kind == "vm":
            if p.wide_store & c.dst: r = max(r, 2)
        return r
    def _raw(self, ins):
        self.out.append(ins)
    def _pad(self, n):
        while n > 0:
            k = min(n, 16); self._raw(Ins(f"s_nop {k - 1}")); n -= k; self.nops += k
    def flush(self):
        self._pad(self._need(None))
    def __call__(self, text, tag=None):
        if isinstance(text, (list, tuple)):
            for t in text:
                if isinstance(t, tuple): self(*t)
                elif callable(t): t(self)
                else: self(t)
            return
        if callable(text):
            text(self); return
        ins = Ins(text, tag)
        if ins.kind in ("label", "dir"):
            self._raw(ins); return
        self._auto(ins)
        self._pad(self._need(ins))
        self._raw(ins)
        if tag: self.tags[tag] = self.tags.get(tag, 0) + 1
        if ins.kind == "vm": self.vm.append((set(ins.dst), tag))
        elif ins.kind == "ds": self.lg.append((set(ins.dst), tag, False))
        elif ins.kind == "smem": self.lg.append((set(ins.dst), tag, True))
        if tag and self.hook: self.hook(self, tag, self.tags[tag])
    def seen(self, tag, n=1):
        assert self.tags.get(tag, 0) >= n, f'{tag} not emitted yet'
    def save(self): return (list(self.vm), list(self.lg), dict(self.tags))
    def restore(self, st):
        self.vm, self.lg, self.tags = list(st[0]), list(st[1]), dict(st[2])
    def text(self):
        return "\n".join(("" if i.kind in ("label", "dir") else "  ") + i.text for i in self.out) + "\n"

def weave(main, side, start=0, per=2, end=None):
    out = []; k = 0; acc = 0.0
    for i, m in enumerate(main):
        out.append(m)
        if i >= start and (end is None or i < end):
            acc += per
            while acc >= 1 - 1e-9 and k < len(side):
                out.append(side[k]); k += 1; acc -= 1
    out.extend(side[k:])
    return out


class Delay:
    def __init__(self, n): self.n = n
class At:
    def __init__(self, item, lo=None, dl=None, tg=None): self.item, self.lo, self.dl, self.tg = item, lo, dl, tg

def flat(x):
    if isinstance(x, list):
        r = []
        for y in x: r += flat(y)
        return r
    return [x]
def kind(x):
    if callable(x): return ("z", 0) if getattr(x, "free", False) else ("s", 4)
    if isinstance(x, tuple): x = x[0]
    op = x.split()[0]
    if op.endswith(":"): return ("z", 0)
    if op.startswith("v_mfma"): return ("m", 16)
    if op.startswith("v_pk_"): return ("p", 4)
    if op == "s_nop": return ("s", 4 * (int(x.split()[1]) + 1))
    if op.startswith("s_"): return ("s", 4)
    if op.startswith("v_"):
        o = op.replace("_e32", "").replace("_e64", "")
        return ("v", 8 if (o in TRANS or o.startswith("v_permlane")) else 4)
    if op.startswith("ds_"): return ("d", 12 if "write_b128" in op else 8)
    return ("g", 8)
def simt(st, x):
    t, va, m0 = st
    k, c = kind(x)
    txt = x[0] if isinstance(x, tuple) else x if isinstance(x, str) else ""
    if k == "z": return st
    if k == "s": return (t + c, va, " m0," in txt)
    if k == "d": return (t + c + (8 if va else 0), va, False)
    if k == "g": return (max(t + (4 if m0 and txt.endswith(" lds") else 0), 8) + c + (8 if va else 0), va, False)
    if k == "v": return (max(t, 8) + c, True, False)
    if k == "p": return (max(t, 17) + c, True, False)
    return (max(t, 16) + 4, False, False)
RANK = {"z": 0, "s": 0, "d": 1, "g": 1, "v": 2, "p": 4, "m": 5}
class It:
    def __init__(self, ins):
        self.ins = ins; f = flat(ins); self.f = f
        ks = [kind(x)[0] for x in f]
        ns = [k for k in ks if k not in "sz"]
        self.k = ns[0] if ns else "s"; self.rank = RANK[self.k]
        self.cost = sum(kind(x)[1] for x in f)
        self.lo = -1; self.dl = None; self.tg = None; self.delay = 0
        tx = [(x[0] if isinstance(x, tuple) else x) for x in f if not callable(x)]
        self.big = sum(1 for t in tx if t.startswith(("buffer_", "global_")) and "dwordx4" in t)
class Q:
    def __init__(self, items, lo, hi, slack=4, ahead=1.5, prio=0.0, per=None, name="", cad=0.0, hard=False):
        self.slack, self.ahead, self.prio, self.name = slack, ahead, prio, name
        L = []; dly = 0
        for x in items:
            if isinstance(x, Delay): dly = x.n; continue
            a = x if isinstance(x, At) else At(x)
            it = It(a.item)
            if it.k == "p" and len(it.f) == 1 and L and L[-1].k == "p" and not dly and a.lo is None and all(kind(y)[0] == "p" for y in L[-1].f):
                L[-1] = It(L[-1].f + it.f); L[-1].delay = pd; continue
            it.lo = lo if a.lo is None else a.lo; it.dl = a.dl; it.tg = a.tg; it.delay = dly; pd = dly; dly = 0
            L.append(it)
        w = lambda it: 2 if it.k == "p" else it.cost
        if per is not None:
            nxt = lo
            for it in L:
                if it.lo < 0: it.lo = lo
                if it.k != "s": it.tg = max(nxt, it.lo, it.tg or 0); nxt = it.tg + per
            nx = None
            for it in reversed(L):
                if it.k == "s": it.tg = max(it.lo, (nx if nx is not None else nxt) - 2)
                else: nx = it.tg
        else:
            tot = sum(w(it) for it in L) or 1; acc = 0; prev = lo
            for it in L:
                if it.lo < 0: it.lo = lo
                if it.tg is None: it.tg = max(lo + (hi - lo) * acc / tot, it.lo, prev)
                prev = it.tg + cad * w(it) / 8; acc += w(it)
        for it in L:
            if it.dl is None: it.dl = it.tg + slack
        for i in range(len(L) - 2, -1, -1): L[i].dl = min(L[i].dl, L[i + 1].dl)
        for it in L: it.hard = hard
        self.L = L; self.i = 0; self.last = -99
    def head(self, k=0): return self.L[self.i + k] if self.i + k < len(self.L) else None

def pack(e, anchors, queues, fixed=None, tol=17, log=None, gmin=0, gover=8):
    fixed = fixed or {}
    total = 0; lastg = [-999]
    def order(sel): return sorted(sel, key=lambda z: z[0])
    def cost(pre, sel):
        st = pre
        for z in order(sel):
            for x in z[2].f: st = simt(st, x)
        return st
    n = len(anchors); g = 0; sub = 0
    while g < n:
        if not sub:
            if Emitter.notes: e._raw(Ins(f"; gap {g}"))
            e(anchors[g])
        st0 = (4, False, False)
        if not sub:
            for x in flat(fixed.get(g, [])): st0 = simt(st0, x)
            e(fixed.get(g, []))
        sel = []; taken = {id(q): 0 for q in queues}; lastr = {}
        def cands(force):
            C = []
            for q in queues:
                it = q.head(taken[id(q)])
                if it is None or it.lo > g: continue
                if it.delay and (taken[id(q)] or clock - q.last < it.delay): continue
                if gmin and it.big and (total - lastg[0] < gmin or any(z[2].big for z in sel)) and it.dl + gover > g and not getattr(it, "hard", False): continue
                if force:
                    if it.dl > g: continue
                elif it.tg > g + q.ahead: continue
                C.append((g - it.tg + q.prio, q, it))
            return sorted(C, key=lambda z: -z[0])
        clock = getattr(pack, "clock", 0)
        def rk(q, it):
            r = it.rank
            if id(q) in lastr and r < lastr[id(q)]: r = 3 if it.k == "s" else None if lastr[id(q)] > 3 else lastr[id(q)]
            if r == 0 and any(z[0] == 0 for z in sel): r = 3
            return r
        def take(q, it, r):
            sel.append((r, q, it)); taken[id(q)] += 1; lastr[id(q)] = r
        extra = None
        prog = True
        while prog:
            prog = False
            for u, q, it in cands(False):
                if it.k in "pm": continue
                r = rk(q, it)
                if r is None: continue
                if cost(st0, sel + [(r, q, it)])[0] <= tol: take(q, it, r); prog = True; break
        prog = True
        while prog:
            prog = False
            for u, q, it in cands(True):
                if it.k in "pm": continue
                r = rk(q, it)
                if r is None: continue
                take(q, it, r); prog = True; break
        for u, q, it in cands(False):
            if it.k == "p" and it.tg <= g + 0.5 and not any(z[2].k == "p" for z in sel): take(q, it, 4)
        for u, q, it in cands(False):
            if it.k == "m" and it.tg <= g + 0.5 and extra is None and lastr.get(id(q), 0) <= 4: take(q, it, 5); extra = it
        c = cost(st0, [z for z in sel if z[2] is not extra])[0]
        if any(z[2].big for z in sel): lastg[0] = total
        total += max(16, c)
        if log is not None: log.append((g, max(16, c), "".join(z[2].k for z in order(sel))))
        for r, q, it in order(sel): e([it.ins])
        for q in queues:
            if taken[id(q)]: q.i += taken[id(q)]; q.last = clock
        pack.clock = clock + 1
        if extra is not None: sub = 1
        else: sub = 0; g += 1
    left = 0
    rest = True
    while rest:
        rest = False
        h = [(q.head().tg, i, q) for i, q in enumerate(queues) if q.head() is not None]
        if h:
            _, _, q = min(h); e([q.head().ins]); left += q.head().cost; q.i += 1; rest = True
    return total, left
```

```python
import sys, math, struct, argparse
sys.path.insert(0, "gen")
from asm import *

NAME = "parallel_sum__sliding_local_dilated__dense_activation_gelu__prompt"
STAGE = 32768
WOFF = 0
XOFF = 24576
HOFF = 131072
STAT = 139264
CNT = STAT + 1536
PG = {0: 147456, 1: 65536, 2: 81920, 3: 98304, 4: 114688, 5: 0, 6: 16384, 7: 32768, 8: 49152}
TILEB = 60 * 1024
FLAGOFF = 128 * TILEB
STOFF = FLAGOFF + 2048
WSEND = STOFF + 16384
H2OFF = 0x800000
BIG = 0x40000000
NEG = 0xF149F2CA
def f2u(x): return struct.unpack("<I", struct.pack("<f", x))[0]
LOG2E = 1.4426950408889634
C_SM = 0.25 * LOG2E
G0 = -2.0 * math.sqrt(2.0 / math.pi) * LOG2E
G1 = G0 * 0.044715

def vr(b, n=1): return f"v{b}" if n == 1 else f"v[{b}:{b+n-1}]"
def ar(b, n=1): return f"a{b}" if n == 1 else f"a[{b}:{b+n-1}]"
def sr(b, n=1): return f"s{b}" if n == 1 else f"s[{b}:{b+n-1}]"
def xr(b, n=1): return vr(b, n) if b < 256 else ar(b - 256, n)

S_W, S_MT, S_N = 26, 27, 3
SX, SW, SH, SB, SWA, SWB, SO, SD = 28, 32, 36, 40, 44, 48, 52, 84
SB2, SF = 12, 16
S_XR, S_B2O, S_FLP, S_FLC, S_FLO, S_ROT = 8, 9, 20, 21, 22, 23
S_TW = 82
S_TW2 = 0
S_XBASE, S_XC, S_KHD, S_KW, S_KH, S_KT = 59, 60, 61, 63, 64, 65
VWV = [[132, 133], [80, 81], [82, 83]]
S_MX, S_MW, S_MH, S_MP = 66, 67, 68, 62
S_T = 69
S_M1, S_M2, S_M3, S_MD = 70, 72, 74, 76
S_SEG = 78
S_C = 82
S_STAMP = 88
S2_RB, S2_CB, S2_MW, S2_KW = 6, 7, 10, 11
S_STP, S_STC, S_P = 56, 57, 58
S_CNT, S_EPO, S_EPC, S_MASK = 81, 24, 25, 77
S2_HS = [None] + [59, 60, 61, 62, 63, 64, 65, 66, 67, 68, 70, 71, 72, 73]
def ACC(seg, pos): return 4 + (seg * 5 + pos) * 4
def ST(i): return 64 + 4 * i
ONES = 76
VW2 = 80
VX, VXP, VH_, VW, VXA, VXS, VWA = 128, 130, 131, 132, 134, 140, 144
V2T, V2W, V2H = 146, 158, 162
VHS, VG, VT, VL4, VEP, VFL, VL24, VCN = 163, 164, 165, 166, 167, 168, 169, 170
VSA = 171
RM = 176
def RMJ(j): return RM + (8 if j == 8 else 2 * j if j < 4 else 2 * j + 2)
T0 = 194
def WF(k, seg): return 12 * k + 4 * seg
def XF(b, j): return ar(192 + 24 * b + 4 * j, 4)
def XP(k, u): return ar(192 + 8 * (k & 3) + 4 * u, 4)
SETX = [256 + 48 + 4 * i for i in range(15)]
SETY = [ST(0), ST(1), ST(2), 128, 136, ACC(0, 4), ACC(1, 4), ACC(2, 4), 132, ACC(2, 0), ACC(2, 1), ACC(0, 2), ACC(0, 3), ACC(1, 2), ACC(1, 3)]
W2R = [VW2, VW2 + 16, VW2 + 32, 256 + 240, 256 + 224] + [256 + 16 * i for i in range(3)] + [256 + 108 + 16 * i for i in range(5)] + [256 + 192, 256 + 208]
def wfree(r): return 96 + 6 * (-(-(r - 256) // 12))
def ACC2(s, i): return [ACC(0, 0), ACC(0, 1), ACC(1, 0), ACC(1, 1)][i] if s == 0 else T0 + 16 * (s - 1) + 4 * i
RESX, RESB, B2F = RM, RM + 8, VSA + 1
CMAX = 5
VOUT, VRW, VRR = 140, 141, 142
REDP = [1, 2, 3, 4]

XOPT = []
HSA = [None] + [59, 61, 63, 64, 65, 66, 67, 68, 40, 41, 42, 43, 0, 1]
class Cfg:
    stamps = False
    x = ()

def stamp(e, cfg, name):
    if cfg.stamps and name in cfg.stamps:
        i = cfg.stamps.index(name)
        e(f"{'s_memtime' if 'clk' in cfg.x else 's_memrealtime'} {sr(S_STAMP + 2 * i, 2)}")
def stp(cfg, name):
    f = lambda e: stamp(e, cfg, name)
    f.free = not (cfg.stamps and name in cfg.stamps)
    return f

def DBO(): return 64 if "dbg" in XOPT else 0

def write_stamps(e, cfg, n, off):
    if not cfg.stamps: return
    e.wait(vm=0, lg=0)
    if "cnt" in cfg.stamps:
        i = cfg.stamps.index("cnt")
        e(f"s_sub_u32 s4, 30000, s{S_CNT}"); e("s_mul_i32 s4, s4, 100")
        e(f"s_add_u32 s{S_STAMP+2*i}, s{S_STAMP+2*i-2}, s4"); e(f"s_addc_u32 s{S_STAMP+2*i+1}, s{S_STAMP+2*i-1}, 0")
    e(f"v_subrev_u32 v1, {64 * cfg.swave}, v0"); e("v_lshlrev_b32 v1, 20, v1")
    if "dbg" in cfg.x:
        e(f"s_not_b32 s4, s{S_STAMP}"); e("v_mov_b32 v2, s4")
        e(f"buffer_atomic_umax v2, v1, {sr(SD,4)}, 0 offen offset:0 sc1")
        for i in range(n):
            e(f"v_mov_b32 v{3+i}, s{S_STAMP + 2 * i}")
            e(f"buffer_atomic_umax v{3+i}, v1, {sr(SD,4)}, 0 offen offset:{4 + 4 * i} sc1")
        e("s_cmp_eq_u32 s2, 100"); e(f"s_cselect_b32 s8, 0, {BIG}")
        for i in range(n):
            e(f"buffer_store_dword v{3+i}, v1, {sr(SD,4)}, s8 offen offset:{32 + 4 * i} sc1")
        e.wait(vm=0)
        return
    e(f"s_add_u32 s4, s{SF}, {off}"); e(f"s_addc_u32 s5, s{SF+1}, 0")
    e("s_mov_b32 s6, 0x10000"); e("s_mov_b32 s7, 0x20000")
    e(f"s_mul_i32 s8, s2, {n * 8}")
    for i in range(n):
        e(f"v_mov_b32 v2, s{S_STAMP + 2 * i}"); e(f"v_mov_b32 v3, s{S_STAMP + 2 * i + 1}")
        e(f"buffer_store_dwordx2 v[2:3], v1, s[4:7], s8 offen offset:{8 * i}")
        e.wait(vm=0)

def srd(d, lo, hi, nrec):
    return [f"s_mov_b32 s{d}, s{lo}", f"s_mov_b32 s{d+1}, s{hi}", f"s_mov_b32 s{d+2}, {nrec}", f"s_mov_b32 s{d+3}, 0x20000"]

def m0set(base, c):
    return f"s_add_u32 m0, s{base}, {c}" if c >= 0 else f"s_sub_u32 m0, s{base}, {-c}"

def xadv(): return [f"s_add_u32 s{S_XC}, s{S_XC}, 128", f"s_bitset0_b32 s{S_XC}, 10"]
def W3(): return "w3" in XOPT
def dma_stage(st, attn):
    sb = (st % 4) * STAGE; tag = f"st{st}"
    stride = 3072 if attn else 2752
    X = lambda i: (f"buffer_load_dwordx4 v{VX+i}, {sr(SX,4)}, s{S_XC} offen offset:{1024*i} lds", tag)
    W = lambda seg, h: (f"buffer_load_dwordx4 v{VWV[seg][h]}, {sr(SW,4)}, s{S_KW} offen offset:{(3072 if W3() else 1024)*h} lds", tag)
    wa = [f"s_add_u32 s{S_KW}, s{S_KW}, {64 * stride}", f"s_sub_u32 s{S_KT}, s{S_KW}, {512 * stride}", f"s_min_u32 s{S_KW}, s{S_KW}, s{S_KT}"] if st else []
    xa = xadv() if st else []
    G = [
        [m0set(S_MW, sb)] + (wa or ["s_nop 0"]) + [W(0, 0)],
        [W(0, 1)],
        [m0set(S_MX, sb)] + (xa or ["s_nop 0"]) + [X(0)],
        [X(1)],
        [m0set(S_MW, sb + (1024 if W3() else 8192)), "s_nop 0", W(1, 0)],
        [W(1, 1)],
        [m0set(S_MW, sb + (2048 if W3() else 16384)), "s_nop 0", W(2, 0)],
        [W(2, 1)],
    ]
    if attn:
        G.append([m0set(S_MH, (st % 4) * 2048), f"s_add_u32 s{S_KH}, s{S_XC}, s{S_KHD}", (f"buffer_load_dword v{VH_}, {sr(SX,4)}, s{S_KH} offen lds", tag)])
    return G

def dma_pair(h):
    G = []
    for kb in range(8):
        G.append(([f"v_add_u32 v{VX}, 65536, v{VXP}"] if h and not kb else []) + [m0set(S_MP, h * 32768 + kb * 4096)] + xadv() +
                 [(f"buffer_load_dwordx4 v{VX if h else VXP}, {sr(SX,4)}, s{S_XC} offen lds", f"xp{h}")])
    return G

def w2_dma(cfg, q):
    pgn = cfg.w2pg[q]; pg = PG[pgn]
    first = []
    prev = [k for k in range(q) if cfg.w2pg[k] == pgn]
    if prev: first.append(lambda e, k=prev[-1]: (e.seen(f"w2r_{k}", 8), e.wait(lg_tag=f"w2r_{k}")))
    if q == 0: srdr, so = SWA, "0"
    else:
        srdr, so = SWB, f"s{S2_KW}"
        if "hsa" in XOPT: first += [[need("hss"), f"s_lshl_b32 s{S2_KW}, s{S2_HS[q]}, 5"]]
        else: first += [[f"s_add_u32 s{S2_KW}, s{S_ROT}, {(q - 1) * 32768}", f"s_sub_u32 s5, s{S2_KW}, {14 * 32768}",
                   f"s_min_u32 s{S2_KW}, s{S2_KW}, s5"]]
    d = lambda pc: (f"buffer_load_dwordx4 v{V2W+pc}, {sr(srdr,4)}, {so} offen offset:{1024*pc} lds", f"w2_{q}")
    if ("nod67" in cfg.x and q >= 10) or ("nod45" in cfg.x and 5 <= q < 10) or "now2" in cfg.x: d = lambda pc: ("s_nop 1", f"w2_{q}")
    m = f"s_add_u32 m0, s{S2_MW}, {pg}"
    return [first + [m, "s_nop 0", d(0)], [d(1)], [d(2)], [d(3)]]

def w2_read(cfg, q):
    pg = PG[cfg.w2pg[q]]
    L = []
    for i in range(4):
        for h in range(2):
            o = pg + h * 512
            b = o >> 16
            L.append((f"ds_read_b64_tr_b16 {xr(W2R[q]+4*i+2*h,2)}, v{V2T+4*b+i} offset:{o & 65535}", f"w2r_{q}"))
    L[0] = [stp(cfg, f"r{q}a"), lambda e: (e.seen(f"w2_{q}", 4), e.wait(vm_tag=f"w2_{q}")), stp(cfg, f"r{q}b"), L[0]]
    return L

def v2t_setup(cfg):
    a, b, c = V2T + 4, V2T + 5, V2T + 6
    L = [f"v_bfe_u32 v{a}, v2, 2, 2",
         f"v_lshl_add_u32 v{b}, v{VG}, 3, v{a}",
         f"v_bfe_u32 v{c}, v2, 1, 1",
         f"v_and_b32 v{a}, 2, v{a}", f"v_xor_b32 v{c}, v{c}, v{a}",
         f"v_and_b32 v{a}, 1, v{VG}", f"v_lshlrev_b32 v{a}, 2, v{a}", f"v_xor_b32 v{c}, v{c}, v{a}",
         f"v_and_b32 v{a}, 1, v2", f"v_lshl_add_u32 v{c}, v{c}, 1, v{a}", f"v_lshlrev_b32 v{c}, 3, v{c}",
         f"v_lshl_add_u32 v{c}, v{b}, 7, v{c}",
         f"v_add_u32 v{c}, s{S2_MW}, v{c}"]
    for i in range(4):
        L.append([f"s_add_u32 s4, s{S_W}, {i}", "s_and_b32 s4, s4, 3", "s_lshl_b32 s4, s4, 5"])
        L.append(f"v_xor_b32 v{V2T+i}, s4, v{c}")
    nb = 3 if 0 in cfg.w2pg else 2
    for bb in range(1, nb):
        for i in range(4): L.append(f"v_add_u32 v{V2T+4*bb+i}, {65536*bb}, v{V2T+i}")
    return L

def frag_reads(k, attn):
    s, ks, b = k >> 1, k & 1, k & 1
    hi = (s % 4) >> 1; sb = (s % 2) * STAGE
    def X(j): return f"ds_read_b128 {XF(b, j)}, v{VXA + 2*hi + ks} offset:{sb + XOFF + j * 2048}"
    def W(seg, h): return f"ds_read_b64_tr_b16 {ar(WF(k, seg) + 2 * h, 2)}, v{VWA + hi} offset:{sb + (seg * 128 + ks * 12288 + h * 1536 if W3() else seg * 8192 + ks * 4096 + h * 512)}"
    L = [(f"ds_read_b128 {XF(b, 5)}, v{VXS + 2*hi + ks} offset:{sb + XOFF}", f"fs{k}")]
    if attn: L.append((f"ds_read_b128 {XF(b, 4)}, v{VXA + 4 + ks} offset:{(s % 4) * 2048}", f"fs{k}"))
    L += [(x, f"fa{k}") for x in (W(0, 0), W(0, 1), X(0), W(1, 0), W(1, 1), W(2, 0), W(2, 1), X(1))]
    L += [(x, f"fb{k}") for x in (X(2), X(3))]
    return L

def mfa(first):
    return lambda d, a, bb: f"v_mfma_f32_16x16x32_bf16 {vr(d,4)}, {a}, {bb}, {'0' if first else vr(d,4)}"
def a_mfmas(k, attn):
    b = k & 1; mf = mfa(k == 0)
    M = []
    for j in ((4, 0, 1, 2, 3) if k == 15 else range(5)):
        for seg in range(3):
            w = ar(WF(k, seg), 4); x = XF(b, j) if (attn or j < 4) else vr(ONES, 4)
            M.append(mf(ACC(seg, j), x, w) if (attn and seg == 2) else mf(ACC(seg, j), w, x))
    return M
def s_mfmas(k, attn):
    b = k & 1; mf = mfa(k == 0)
    S = [mf(ST(0), vr(ONES, 4), XF(b, 5)), mf(ST(1), XF(b, 5), XF(b, 5))]
    if attn: S.append(mf(ST(2), XF(b, 4), XF(b, 4)))
    return S

def p_reads(h, k):
    kb, ks = k >> 1, k & 1
    return [(f"ds_read_b128 {XP(k, u)}, v{VXA + ks} offset:{h * 32768 + kb * 4096 + u * 2048}", f"p{h}_{k}") for u in range(2)]

def p_mfmas(h, k, attn):
    M = []
    for u in range(2):
        for seg in range(3):
            d = ACC(seg, 2 * h + u); w = ar(WF(k, seg), 4); x = XP(k, u)
            a, b = (x, w) if (attn and seg == 2) else (w, x)
            M.append(f"v_mfma_f32_16x16x32_bf16 {vr(d,4)}, {a}, {b}, {'0' if k == 0 else vr(d,4)}")
    return M

def common(e, cfg):
    stamp(e, cfg, "start")
    e("s_load_dwordx16 s[4:19], s[0:1], 0")
    e("s_load_dwordx4 s[20:23], s[0:1], 64")
    e("s_load_dwordx2 s[24:25], s[0:1], 80")
    e("s_cmp_ge_u32 s2, 256")
    e("s_cbranch_scc1 L_end")
    if cfg.idx: e(f"s_xor_b32 s2, s2, {cfg.idx}")
    e("v_lshrrev_b32 v1, 6, v0")
    e("v_and_b32 v2, 63, v0")
    e("s_lshr_b32 s70, s2, 3")
    if "code" in cfg.x:
        e("s_getpc_b64 s[84:85]")
        e("L_pc:")
        e("s_lshl_b32 s71, s70, 8")
        e("v_lshlrev_b32 v3, 6, v1"); e("v_lshl_add_u32 v3, v2, 13, v3")
        e("s_mov_b32 s86, L_end-L_pc"); e("s_mov_b32 s87, 0x20000")
        e(f"buffer_load_dword v{T0+14 if 'pf' in cfg.x else T0+12}, v3, s[84:87], s71 offen", "touch")
    e("s_and_b32 s71, s2, 1")
    e("s_lshl_b32 s71, s71, 3")
    e(f"v_readfirstlane_b32 s{S_W}, v1")
    e("s_and_b32 s72, s70, 7")
    e(f"s_add_u32 s{S_MT}, s71, s72")
    if cfg.mtx: e(f"s_xor_b32 s{S_MT}, s{S_MT}, {cfg.mtx}")
    e(f"s_and_b32 s{S_P}, s2, 6")
    e("s_bfe_u32 s74, s2, 0x10006")
    e(f"s_add_u32 s{S_P}, s{S_P}, s74")
    e("v_lshrrev_b32 v3, 3, v2")
    e(f"v_lshrrev_b32 v{VG}, 4, v2")
    e("v_and_b32 v5, 7, v2")
    e(f"v_xor_b32 v6, v{VG}, v5")
    e("v_lshlrev_b32 v6, 4, v6")
    e("v_lshl_add_u32 v6, v3, 11, v6")
    e(f"s_and_b32 s74, s{S_MT}, 1")
    e("s_lshl_b32 s74, s74, 10")
    e("v_add_u32 v6, s74, v6")
    e(f"v_lshl_add_u32 v{VX}, v1, 15, v6")
    e(f"v_xor_b32 v7, 64, v{VX}")
    e(f"v_add_u32 v{VX+1}, {16384 - 1024}, v7")
    e(f"s_lshr_b32 s75, s{S_MT}, 1")
    e("s_lshl_b32 s76, s75, 18")
    e(f"s_add_u32 s{S_XBASE}, s76, s74")
    e("s_lshr_b32 s77, s2, 6"); e("s_lshl_b32 s77, s77, 1")
    if cfg.krn < 0: e(f"s_add_u32 s77, s77, s{S_MT}")
    elif cfg.krn & 6:
        e(f"s_and_b32 s72, s{S_MT}, {(cfg.krn >> 1) & 3 if cfg.krn & 6 != 4 else 4}"); e("s_add_u32 s77, s77, s72")
    if cfg.krn < 0 or cfg.krn & 1: e("s_bfe_u32 s72, s2, 0x10001"); e("s_add_u32 s77, s77, s72")
    pass; e(f"s_and_b32 s77, s77, {0 if 'nokrot' in cfg.x else 6 if 'krot4' in cfg.x else 4 if 'krot2' in cfg.x else 7}")
    e("s_lshl_b32 s72, s77, 7"); e(f"s_add_u32 s{S_XC}, s76, s72")
    e(f"s_lshl_b32 s{S_MW}, s{S_W}, 11")
    e(f"s_add_u32 s{S_MX}, s{S_MW}, {XOFF}")
    if W3(): e(f"s_mul_i32 s{S_MW}, s{S_W}, 6144")
    e(f"s_mov_b32 s{SW+3}, 0x20000")
    if not W3(): e("v_lshl_add_u32 v8, v1, 4, v3")
    e(f"v_and_b32 v9, 1, v{VG}")
    e("v_lshlrev_b32 v9, 1, v9")
    e("v_xor_b32 v9, v9, v5")
    e("v_lshlrev_b32 v10, 4, v9")
    if not W3(): e("v_xor_b32 v9, 64, v10")
    e(f"s_mov_b32 s{SX+2}, 0x200000"); e(f"s_mov_b32 s{SX+3}, 0x20000")
    e("s_bitcmp1_b32 s2, 7")
    if "pre" in cfg.x:
        e("s_movk_i32 s78, 3072"); e("s_cmov_b32 s78, 2752")
        e("s_movk_i32 s79, 1024"); e("s_cmov_b32 s79, 128")
        e("s_movk_i32 s73, 128"); e("s_cmov_b32 s73, 384")
        e(f"s_mul_i32 s73, s{S_P}, s73")
        if W3():
            e("s_lshl_b32 s80, s78, 9"); e(f"s_sub_u32 s{SW+2}, s80, s73")
            e("s_lshl_b32 s80, s78, 6"); e(f"s_mul_i32 s{S_KW}, s77, s80")
            e("s_lshl_b32 s80, s78, 3"); e("s_sub_u32 s80, s80, 3072"); e("s_sub_u32 s79, s79, 128"); e("s_movk_i32 s81, -24")
            for c in range(3):
                n = "v2" if c == 0 else "v11"
                if c: e(f"v_add_u32 v11, {64 * c}, v2")
                e(f"v_mul_u32_u24 v8, 171, {n}"); e("v_lshrrev_b32 v8, 12, v8")
                e(f"v_mad_i32_i24 v9, v8, s81, {n}")
                e("v_and_b32 v11, 2, v8"); e("v_xor_b32 v11, v11, v9")
                e("v_lshrrev_b32 v9, 3, v9"); e("v_mul_u32_u24 v9, s79, v9"); e("v_lshl_add_u32 v9, v11, 4, v9")
                e("v_lshl_add_u32 v8, v1, 4, v8")
                e(f"v_mad_u32_u24 v{VWV[c][0]}, v8, s78, v9")
                e("v_xad_u32 v9, v9, 64, s80")
                e(f"v_mad_u32_u24 v{VWV[c][1]}, v8, s78, v9")
        else:
            e("v_mul_u32_u24 v8, s78, v8")
            e("s_lshl_b32 s80, s78, 3"); e("s_sub_u32 s80, s80, 1024")
            e(f"v_add_u32 v{VW}, v8, v10")
            e("v_add_u32 v9, s80, v9")
            e("s_lshl_b32 s80, s78, 9"); e(f"s_sub_u32 s{SW+2}, s80, s73")
            e(f"v_add_u32 v{VW+1}, v8, v9")
            e("s_lshl_b32 s80, s78, 6"); e(f"s_mul_i32 s{S_KW}, s77, s80")
            for h in range(2): e(f"v_add_u32 v{VWV[1][h]}, s79, v{VW+h}")
            for h in range(2): e(f"v_lshl_add_u32 v{VWV[2][h]}, s79, 1, v{VW+h}")
        e("s_bitcmp1_b32 s2, 7")
        stamp(e, cfg, "pk")
        e.wait(lg=0)
        e(f"s_cselect_b64 {sr(SW,2)}, s[12:13], s[6:7]")
        e(f"s_mov_b64 {sr(SX,2)}, s[4:5]")
        e(f"s_add_u32 s{SW}, s{SW}, s73"); e(f"s_addc_u32 s{SW+1}, s{SW+1}, 0")
        stamp(e, cfg, "karg")
        e(dma_stage(0, False))
        if "l2e" in cfg.x:
            e(f"s_and_b32 s80, s{S_MT}, 7"); e("v_lshl_add_u32 v12, s80, 6, v2"); e("v_mul_u32_u24 v12, s78, v12")
            e(f"s_mul_i32 s80, s{S_W}, s79"); e("s_mul_i32 s81, s79, 3"); e("s_sub_u32 s81, s81, 4"); e("s_min_u32 s80, s80, s81")
            e(f"buffer_load_dword v{T0+13}, v12, {sr(SW,4)}, s80 offen", "touch")
            if cfg.l2x:
                e("s_lshr_b32 s80, s2, 6"); e("s_lshl_b32 s80, s80, 2"); e(f"s_add_u32 s80, s80, s{S_W}"); e(f"s_lshl_b32 s80, s80, {15 - cfg.l2x}")
                e(f"s_add_u32 s80, s80, s{S_XBASE}")
                e("v_lshlrev_b32 v13, 7, v5"); e("v_lshl_add_u32 v13, v3, 11, v13")
                if cfg.l2x == 2: e("v_and_b32 v12, 32, v2"); e("v_lshl_add_u32 v13, v12, 24, v13")
                e(f"buffer_load_dword v{T0+14}, v13, {sr(SX,4)}, s80 offen", "touch")
        e("s_bitcmp1_b32 s2, 7")
    e.flush()
    e("s_cbranch_scc1 L_ffn")

SXL = T0 + 16
STT = T0 + 20
LT = T0 + 26
def mall1(A, n1, n2, kb0):
    A([f"s_cmp_eq_u32 s{S_W}, 0", "s_cselect_b32 s76, s4, s6", "s_cselect_b32 s77, s5, s7", f"s_cselect_b32 s75, 64, {n1}",
       f"s_cselect_b32 s72, 0, {kb0 * 64 * 24}", "s_mov_b32 s71, 16383"])
    A([f"s_cmp_ge_u32 s{S_W}, 2", "s_cselect_b32 s76, s12, s76", "s_cselect_b32 s77, s13, s77", f"s_cselect_b32 s75, {n2}, s75",
       f"s_cselect_b32 s72, {kb0 * 64 * 43 // 2}, s72", "s_cselect_b32 s71, 11007, s71"])
    A("s_mul_i32 s78, s74, s75"); A("s_add_u32 s72, s72, s78"); A("s_sub_u32 s75, s75, 1")
    A("v_min_u32 v12, s75, v2"); A("v_add_u32 v12, s72, v12"); A("v_min_u32 v12, s71, v12"); A("v_lshlrev_b32 v12, 7, v12")
    A(("M", "mall", [(f"global_load_dword v{LT}, v12, s[76:77]", "touch")]))

def prologue(e, cfg, attn):
    stride = 3072 if attn else 2752
    pre = "pre" in cfg.x
    if not pre:
        e(f"s_mul_i32 s73, s{S_P}, {128 if attn else 384}")
        e(f"v_mul_u32_u24 v8, {stride}, v8")
        e(f"s_sub_u32 s{SW+2}, {512 * stride}, s73")
        e(f"v_add_u32 v{VW}, v8, v10")
        e(f"v_add_u32 v9, {8 * stride - 1024}, v9")
        e(f"v_add_u32 v{VW+1}, v8, v9")
        e(f"s_mul_i32 s{S_KW}, s77, {64 * stride}")
        for seg in (1, 2):
            for h in range(2): e(f"v_add_u32 v{VWV[seg][h]}, {seg * (1024 if attn else 128)}, v{VW+h}")
    if attn:
        e(f"s_mov_b32 s{S_KHD}, -16384")
        e("s_cmp_eq_u32 s75, 0")
        e(f"s_cmov_b32 s{S_KHD}, {BIG}")
        e(f"s_lshl_b32 s{S_MH}, s{S_W}, 8")
        e(f"s_add_u32 s{S_MH}, s{S_MH}, {HOFF + 1024}")
        e("v_lshrrev_b32 v8, 5, v2")
        e("v_lshl_add_u32 v8, v1, 1, v8")
        e("v_bfe_u32 v9, v2, 2, 3")
        e("v_xor_b32 v9, v9, v1")
        e("v_xor_b32 v9, 4, v9")
        e("v_and_b32 v11, 3, v2")
        e("v_lshl_add_u32 v9, v9, 2, v11")
        e("v_lshlrev_b32 v9, 2, v9")
        e(f"v_lshl_add_u32 v{VH_}, v8, 11, v9")
        e(f"v_add_u32 v{VH_}, s74, v{VH_}")
        e(f"s_mov_b32 s{S_N}, s{S_P}")
    else:
        e(f"s_add_u32 s{S_N}, s{S_P}, 8")
    if not pre:
        e.wait(lg=0)
        e(f"s_mov_b32 s{SX}, s4"); e(f"s_mov_b32 s{SX+1}, s5")
        w0 = 6 if attn else 12
        e(f"s_add_u32 s{SW}, s{w0}, s73"); e(f"s_addc_u32 s{SW+1}, s{w0+1}, 0")
        stamp(e, cfg, "karg")
    stamp(e, cfg, "br")
    L = []
    A = L.append
    if "mall" in cfg.x:
        kb0 = cfg.mallkb
        n1 = (8 - kb0) * 64 * 24 // 256; n2 = -(-((8 - kb0) * 64 * 43 // 2) // 256)
        A("s_and_b32 s74, s2, 1"); A("s_lshl_b32 s74, s74, 7"); A("s_bfe_u32 s75, s2, 0x20001"); A("s_lshl_b32 s75, s75, 5")
        A("s_add_u32 s74, s74, s75"); A("s_add_u32 s74, s74, s70")
        if "mall1" in cfg.x: mall1(A, n1, n2, kb0)
        if "c31" in cfg.x:
            A([f"s_cmp_eq_u32 s{S_W}, 0", "s_cselect_b32 s78, s4, s6", "s_cselect_b32 s79, s5, s7", "s_cselect_b32 s75, 8, 6", "s_mov_b32 s71, 2047"])
            A([f"s_cmp_ge_u32 s{S_W}, 2", "s_cselect_b32 s78, s12, s78", "s_cselect_b32 s79, s13, s79", "s_cselect_b32 s71, 1375, s71"])
            A("s_mul_i32 s72, s74, s75"); A("s_sub_u32 s75, s75, 1")
            A("v_min_u32 v12, s75, v2"); A("v_add_u32 v12, s72, v12"); A("v_min_u32 v12, s71, v12"); A(f"v_lshlrev_b32 v{T0+14}, 10, v12")
            A([(f"global_load_dword v{T0+14}, v{T0+14}, s[78:79] offset:384", "touch")])
        A([f"s_cmp_eq_u32 s{S_W}, 3", f"s_cselect_b32 s{S_TW}, s16, s8", f"s_cselect_b32 s{S_TW+1}, s17, s9", "s_cselect_b32 s75, 43, 16"])
        A("s_mul_i32 s72, s74, s75"); A("s_sub_u32 s75, s75, 1")
        A("v_min_u32 v12, s75, v2"); A(f"v_add_lshl_u32 v{LT+1}, v12, s72, 7")
    if "c3t" in cfg.x and attn:
        A(["s_and_b32 s74, s70, 7", "s_sub_u32 s75, s74, 2", "s_cmp_lt_u32 s74, 2", f"s_cselect_b32 s{SB}, s8, s16", f"s_cselect_b32 s{SB+1}, s9, s17",
           "s_cselect_b32 s74, s74, s75", f"s_mov_b32 s{SB+2}, {1376 * 1024}", f"s_cmov_b32 s{SB+2}, {512 * 1024}"])
        A(["s_bitcmp1_b32 s2, 6", f"s_cmov_b32 s{SB+2}, 0"] if cfg.c3j == 0 else ["s_bitcmp0_b32 s2, 6", f"s_cmov_b32 s{SB+2}, 0"])
        A(f"s_mov_b32 s{SB+3}, 0x20000")
        A("s_lshl_b32 s74, s74, 18"); A("s_add_u32 s74, s74, 384")
        A(f"v_lshl_add_u32 v{T0+13}, v0, 10, s74")
        if cfg.c3k < 0: A(("M", "c3t", [c3t()]))
    if "l2t" in cfg.x:
        A(f"s_and_b32 s74, s{S_MT}, 7"); A("v_lshl_add_u32 v12, s74, 6, v2"); A(f"v_mul_u32_u24 v12, {stride}, v12")
        if attn: A(f"s_lshl_b32 s75, s{S_W}, 10")
        else: A(f"s_lshl_b32 s75, s{S_W}, 7"); A("s_min_u32 s75, s75, 380")
        A("s_lshr_b32 s74, s2, 6"); A("s_lshl_b32 s74, s74, 2"); A(f"s_add_u32 s74, s74, s{S_W}"); A("s_lshl_b32 s74, s74, 14")
        A(f"s_add_u32 s74, s74, s{S_XBASE}")
        A("v_lshlrev_b32 v13, 7, v5"); A("v_lshl_add_u32 v13, v3, 11, v13")
        A(("M", "l2t", [(f"buffer_load_dword v{T0+13}, v12, {sr(SW,4)}, s75 offen", "touch"),
                        (f"buffer_load_dword v{T0+14}, v13, {sr(SX,4)}, s74 offen", "touch")]))
    if "pf" in cfg.x:
        A("s_lshl_b32 s74, s70, 2"); A(f"s_add_u32 s74, s74, s{S_W}"); A("s_lshl_b32 s74, s74, 14")
        A(f"s_sub_u32 s75, s74, {512 * 1024}")
        A(["s_cmp_lt_u32 s70, 8", f"s_cselect_b32 s{S_TW}, s8, s16", f"s_cselect_b32 s{S_TW+1}, s9, s17", "s_cselect_b32 s74, s74, s75",
           f"s_mov_b32 s{S_TW2}, {1376 * 1024}", f"s_cmov_b32 s{S_TW2}, {512 * 1024}"])
        A(f"s_min_u32 s74, s74, s{S_TW2}")
        A([f"s_add_u32 s{S_TW}, s{S_TW}, s74", f"s_addc_u32 s{S_TW+1}, s{S_TW+1}, 0"])
        A(f"s_sub_u32 s{S_TW2}, s{S_TW2}, s74")
        A(f"v_lshlrev_b32 v{VPF}, 7, v2")
        if cfg.pfn > 2:
            A(f"v_and_b32 v12, {64 - 128 // cfg.pfn}, v2"); A(f"v_lshl_add_u32 v{VPF}, v12, 24, v{VPF}")
        A("s_lshr_b32 s74, s2, 6"); A("s_lshl_b32 s74, s74, 2"); A(f"s_add_u32 s74, s74, s{S_W}"); A("s_lshl_b32 s74, s74, 13")
        A(f"s_add_u32 s74, s74, s{S_XBASE}"); A(f"s_add_u32 s{S_TW2+1}, s74, {64 * 2048}")
        A(f"v_lshlrev_b32 v{VPF+1}, 7, v5"); A(f"v_lshl_add_u32 v{VPF+1}, v3, 11, v{VPF+1}")
        A("v_and_b32 v12, 32, v2"); A(f"v_lshl_add_u32 v{VPF+1}, v12, 24, v{VPF+1}")
    if "rbx" in cfg.x or "rbs" in cfg.x:
        A("s_bfe_u32 s4, s2, 0x20001"); A("s_lshl_b32 s4, s4, 2"); A("s_and_b32 s5, s2, 1")
        if "rbx" in cfg.x: A("s_xor_b32 s5, s5, 1")
        A("s_lshl_b32 s5, s5, 4"); A("s_add_u32 s4, s4, s5"); A("s_and_b32 s5, s70, 3")
    else:
        A("s_and_b32 s4, s2, 7"); A("s_lshl_b32 s4, s4, 2"); A("s_and_b32 s5, s70, 3")
    A(f"s_add_u32 s{S2_RB}, s4, s5")
    A(f"s_lshr_b32 s{S2_CB}, s70, 2")
    if cfg.cbx: A(f"s_xor_b32 s{S2_CB}, s{S2_CB}, {cfg.cbx}")
    A(f"s_lshl_b32 s72, s{S2_CB}, 7")
    if "l2w" in cfg.x:
        A(f"s_lshl_b32 s74, s5, 1"); A(f"s_add_u32 s74, s74, s{S_W}"); A("s_lshl_b32 s74, s74, 6")
        A("s_mul_i32 s75, s5, 344"); A(f"s_mul_i32 s76, s{S_W}, 58"); A("s_add_u32 s75, s75, s76"); A("s_sub_u32 s76, s75, 116")
        A([f"s_cmp_lt_u32 s{S_W}, 2", f"s_cselect_b32 s{S_TW}, s8, s16", f"s_cselect_b32 s{S_TW+1}, s9, s17", "s_cselect_b32 s74, s74, s76",
           "s_cselect_b32 s76, 63, 57"])
        A("v_min_u32 v12, s76, v2"); A("v_add_u32 v12, s74, v12"); A(f"v_lshl_add_u32 v{LT+1}, v12, 10, s72")
        A("v_min_u32 v12, 57, v2"); A("v_add_u32 v12, s75, v12"); A("v_add_u32 v12, 116, v12"); A("v_min_u32 v12, 1375, v12")
        A(f"v_lshl_add_u32 v{VFL}, v12, 10, s72")
        A(f"s_mov_b32 s{S_TW2}, s16"); A(f"s_mov_b32 s{S_TW2+1}, s17")
    A(f"s_mul_i32 s12, s{S_W}, {15 * 32768}")
    A("s_add_u32 s12, s12, s72")
    A(f"s_sub_u32 s13, s12, {16 * 32768}")
    A([f"s_cmp_lt_u32 s{S_W}, 2", f"s_cselect_b32 s{SWA}, s8, s16", f"s_cselect_b32 s{SWA+1}, s9, s17",
       "s_cselect_b32 s75, s12, s13", f"s_mov_b32 s76, {1376 * 1024}", f"s_cmov_b32 s76, {512 * 1024}"])
    A([f"s_add_u32 s{SWA}, s{SWA}, s75", f"s_addc_u32 s{SWA+1}, s{SWA+1}, 0"])
    A(f"s_sub_u32 s{SWA+2}, s76, s75"); A(f"s_mov_b32 s{SWA+3}, 0x20000")
    A("s_add_u32 s12, s12, 32768"); A("s_add_u32 s13, s13, 32768")
    A([f"s_cmp_lt_u32 s{S_W}, 1", f"s_cselect_b32 s{SWB}, s8, s16", f"s_cselect_b32 s{SWB+1}, s9, s17",
       "s_cselect_b32 s75, s12, s13", f"s_mov_b32 s76, {1376 * 1024}", f"s_cmov_b32 s76, {512 * 1024}"])
    A([f"s_add_u32 s{SWB}, s{SWB}, s75", f"s_addc_u32 s{SWB+1}, s{SWB+1}, 0"])
    A(f"s_sub_u32 s{SWB+2}, s76, s75"); A(f"s_mov_b32 s{SWB+3}, 0x20000")
    if not attn:
        for x in srd(SB, 14, 15, 2752): A(x)
    for x in srd(SB2, 18, 19, 1024): A(x)
    for x in srd(SF, 24, 25, H2OFF + FLAGOFF + 1024 if "hc3" in cfg.x else WSEND): A(x)
    for x in srd(SD, 22, 23, 256): A(x)
    A(f"v_and_b32 v{VT}, 15, v2")
    A(f"v_lshlrev_b32 v{VL4}, 2, v{VT}")
    A(f"s_lshl_b32 s74, s{S_MT}, 7"); A(f"s_add_u32 s{S_FLO}, s74, {FLAGOFF}")
    A(f"s_lshl_b32 s75, s{S_W}, 5"); A(f"s_add_u32 s{S_B2O}, s72, s75")
    A(f"s_lshr_b32 s74, s{S2_RB}, 2"); A("s_lshl_b32 s74, s74, 18")
    A(f"s_bfe_u32 s75, s{S2_RB}, 0x10001"); A("s_lshl_b32 s75, s75, 10"); A("s_add_u32 s74, s74, s75")
    A(f"s_and_b32 s75, s{S2_RB}, 1"); A("s_lshl_b32 s75, s75, 15")
    A("s_add_u32 s74, s74, s75")
    A(f"s_add_u32 s{S_XR}, s74, s{S_B2O}")
    A([f"s_add_u32 s{SO}, s20, s{S_XR}", f"s_addc_u32 s{SO+1}, s21, 0"])
    A(f"s_sub_u32 s{SO+2}, 0x200000, s{S_XR}"); A(f"s_mov_b32 s{SO+3}, 0x20000")
    A(f"s_lshl_b32 s74, s{S_N}, 2"); A(f"s_add_u32 s75, s74, s{S_W}"); A("s_lshl_b32 s76, s75, 11")
    A(f"s_add_u32 s76, s76, s{S_XBASE}"); A(f"s_add_u32 s{S_T}, s76, {64 * 2048}")
    A("v_lshlrev_b32 v20, 4, v2")
    A(("M", "sx", [(f"buffer_load_dword v{LT+2}, v{VL4}, {sr(SF,4)}, s{S_FLO} offen sc1", "stale"),
                   (f"buffer_load_dwordx4 {vr(SXL,4)}, v20, {sr(SX,4)}, s{S_T} offen", "sx")] + ([epl()] if "dw" in cfg.x else [])))
    A(f"s_add_u32 s{S_FLP}, s{S_FLO}, s74")
    A(f"s_lshl_b32 s{S_STC}, s{S_MT}, 10"); A(f"s_add_u32 s{S_STC}, s{S_STC}, {STOFF}")
    A("s_lshl_b32 s75, s75, 2"); A(f"s_add_u32 s{S_STP}, s{S_STC}, s75")
    A(f"s_lshr_b32 s75, s{S2_RB}, 1"); A(f"s_lshl_b32 s{S_FLC}, s75, 7"); A(f"s_add_u32 s{S_FLC}, s{S_FLC}, {FLAGOFF}")
    A(f"s_lshl_b32 s{S2_MW}, s{S_W}, 12")
    A(f"s_lshl_b32 s{S_MP}, s{S_W}, 10")
    A(f"s_mov_b32 s{S_CNT}, 30000")
    if "rot2" in cfg.x:
        A(f"s_and_b32 s74, s{S2_RB}, 3"); A("s_lshl_b32 s74, s74, 1"); A(f"s_add_u32 s74, s74, s{S2_CB}")
        A(f"s_mul_i32 s{S_ROT}, s74, 7"); A(f"s_lshr_b32 s{S_ROT}, s{S_ROT}, 2")
        A(f"s_sub_u32 s74, s{S_ROT}, 14"); A(f"s_min_u32 s{S_ROT}, s{S_ROT}, s74")
    else:
        A(f"s_and_b32 s74, s{S2_RB}, 3"); A("s_lshl_b32 s74, s74, 1"); A(f"s_add_u32 s74, s74, s{S2_CB}"); A("s_lshl_b32 s74, s74, 2")
        A("s_and_b32 s75, s2, 7"); A("s_add_u32 s74, s74, s75"); A("s_and_b32 s74, s74, 31")
        A("s_mul_i32 s74, s74, 7"); A(f"s_lshr_b32 s{S_ROT}, s74, 4")
    A(f"s_lshl_b32 s{S_ROT}, s{S_ROT}, 15")
    if "norot" in cfg.x: A(f"s_mov_b32 s{S_ROT}, 0")
    A("v_and_b32 v12, 1, v1"); A("v_lshlrev_b32 v12, 6, v12"); A("v_xor_b32 v12, v12, v6")
    A("v_lshl_add_u32 v12, v1, 14, v12"); A(f"v_add_u32 v{VXP}, {64 * 2048}, v12")
    A(f"v_lshl_add_u32 v{V2W}, v3, 10, v10")
    A(f"v_xor_b32 v12, 64, v{V2W}")
    A(f"v_add_u32 v{V2W+1}, 7168, v12"); A(f"v_add_u32 v{V2W+2}, {2*7168}, v{V2W}"); A(f"v_add_u32 v{V2W+3}, {3*7168}, v12")
    A(f"s_mul_i32 s75, s{S_MT}, {8 * TILEB}")
    A(f"s_mul_i32 s76, s{S_P}, {2048 if attn else 6144}")
    A("s_add_u32 s74, s75, s76")
    if not attn: A("s_add_u32 s74, s74, 16384")
    A([f"s_add_u32 s{SH}, s24, s74", f"s_addc_u32 s{SH+1}, s25, 0"])
    A(f"s_mov_b32 s{SH+2}, {8 * TILEB + (H2OFF + 1024 if 'hc3' in cfg.x else 0)}"); A(f"s_mov_b32 s{SH+3}, 0x20000")
    for i in range(4): A(f"v_mov_b32 v{ONES+i}, 0x3f803f80")
    A("v_lshlrev_b32 v8, 2, v0")
    A(f"v_add_u32 v8, {HOFF}, v8")
    if attn:
        for i in range(4): A(f"ds_write_b32 v8, v{ONES} offset:{2048 * i}")
    A("v_mov_b32 v9, 0")
    A(f"ds_write_b32 v8, v9 offset:{CNT - HOFF}")
    A("v_bfe_u32 v12, v2, 1, 3")
    A(f"v_xor_b32 v12, v12, v{VG}")
    A("v_lshlrev_b32 v12, 4, v12")
    A(f"v_lshl_add_u32 v{VXA}, v{VT}, 7, v12")
    A(f"v_xor_b32 v{VXA+1}, 64, v{VXA}")
    A(f"v_add_u32 v{VXA+2}, 0x10000, v{VXA}")
    A(f"v_add_u32 v{VXA+3}, 0x10000, v{VXA+1}")
    if attn:
        A(f"v_add_u32 v{VXA+4}, {HOFF}, v{VXA}"); A(f"v_add_u32 v{VXA+5}, {HOFF}, v{VXA+1}")
    for i in range(4): A(f"v_lshl_add_u32 v{VXS+i}, v1, 11, v{VXA+i}")
    A("v_bfe_u32 v15, v2, 2, 2")
    A(f"v_lshl_add_u32 v12, v{VG}, 3, v15")
    A("v_bfe_u32 v13, v2, 1, 1")
    A("v_lshl_add_u32 v13, v1, 1, v13")
    A("v_and_b32 v14, 2, v15")
    A("v_xor_b32 v13, v13, v14")
    A(f"v_and_b32 v14, 1, v{VG}")
    A("v_lshlrev_b32 v14, 2, v14")
    A("v_xor_b32 v13, v13, v14")
    A("v_and_b32 v14, 1, v2")
    A("v_lshl_add_u32 v13, v13, 1, v14")
    A("v_lshlrev_b32 v13, 3, v13")
    if W3(): A("v_mul_u32_u24 v12, 3, v12")
    A("v_lshl_add_u32 v13, v12, 7, v13")
    A(f"v_add_u32 v{VWA}, {WOFF}, v13")
    A(f"v_add_u32 v{VWA+1}, {WOFF + 0x10000}, v13")
    A(f"v_and_b32 v16, 1, v{VG}")
    A(f"v_mul_u32_u24 v16, {TILEB}, v16")
    A("v_and_b32 v12, 1, v1")
    A("v_lshlrev_b32 v12, 1, v12")
    A(f"v_lshrrev_b32 v13, 1, v{VG}")
    A("v_add_u32 v12, v12, v13")
    A("v_lshl_add_u32 v16, v12, 8, v16")
    A(f"v_lshl_add_u32 v16, v{VT}, 4, v16")
    A("v_lshrrev_b32 v12, 1, v1")
    A(f"v_lshl_add_u32 v{VHS}, v12, 10, v16")
    def away(d, c):
        A(f"v_xor_b32 v12, 3, v{c}"); A("v_min_u32 v12, 1, v12"); A("v_xor_b32 v12, 1, v12")
        A(f"v_mul_u32_u24 v12, {H2OFF + 128 * cfg.hcl - 384}, v12"); A(f"v_add_u32 v{d}, v{d}, v12")
    if "hc3" in cfg.x: A(f"v_bfe_u32 v13, v{VHS}, 7, 3"); away(VHS, 13)
    A(f"v_lshlrev_b32 v{VL24}, 24, v2")
    A(f"v_mov_b32 v{VCN}, {CNT}")
    A(f"s_lshr_b32 s75, s{S2_RB}, 1"); A("s_lshl_b32 s75, s75, 3"); A(f"s_and_b32 s76, s{S2_RB}, 1"); A("s_add_u32 s75, s75, s76")
    A(f"s_mul_i32 s75, s75, {TILEB}"); A(f"s_mul_i32 s76, s{S_W}, {15 * 1024}"); A("s_add_u32 s75, s75, s76")
    A("v_lshlrev_b32 v12, 4, v2"); A(f"v_add_u32 v{V2H}, s75, v12")
    if "hc3" in cfg.x: away(V2H, 3)
    if "tlb" in cfg.x:
        A(f"v_lshlrev_b32 v{T0+13}, 16, v2"); A(f"v_and_b32 v{T0+14}, 0x70000, v{T0+13}"); A(f"v_add_u32 v{T0+14}, s75, v{T0+14}")
        A(f"v_and_b32 v{T0+15}, 0x30000, v{T0+13}")
        A(("M", "tlb", [(f"buffer_load_dword v{T0+12}, v{T0+13}, {sr(SWA,4)}, 0 offen", "touch"), (f"buffer_load_dword v{T0+12}, v{T0+13}, {sr(SWB,4)}, 0 offen", "touch"),
                        (f"buffer_load_dword v{T0+12}, v{T0+13}, {sr(SH,4)}, 0 offen sc1", "touch"), (f"buffer_load_dword v{T0+12}, v{T0+14}, {sr(SF,4)}, 0 offen sc1", "touch"),
                        (f"buffer_load_dword v{T0+12}, v{T0+15}, {sr(SO,4)}, 0 offen sc1", "touch")][:cfg.ntlb]))
    L += v2t_setup(cfg)
    L += attn_pre() if attn else ffn_pre()
    A("v_and_b32 v11, 3, v2"); A("v_bfe_u32 v15, v2, 2, 2")
    A(f"v_cmp_eq_u32 {sr(S_M1,2)}, 1, v11")
    A(f"v_cmp_eq_u32 {sr(S_M2,2)}, 2, v11")
    A(f"v_cmp_eq_u32 {sr(S_M3,2)}, 3, v11")
    A(f"v_cmp_eq_u32 {sr(S_MD,2)}, v15, v{VG}")
    A(f"v_lshl_add_u32 v12, v1, 4, v{VT}")
    A(f"v_lshlrev_b32 v13, 3, v12")
    A(f"v_add_u32 v13, {STAT}, v13")
    A(f"v_lshlrev_b32 v14, 2, v12")
    A(f"v_add_u32 v14, {STAT + 640}, v14")
    A(f"v_lshlrev_b32 v{VSA+4}, 3, v{VT}")
    A(f"v_add_u32 v15, {STAT + 512}, v{VSA+4}")
    A(f"v_add_u32 v16, {STAT + 640 + 256}, v{VL4}")
    A(f"v_mov_b32 v17, {STAT + 1280}")
    for i in range(4): A(f"v_cndmask_b32 v{VSA+i}, v17, v{13+i}, {sr(S_MD,2)}")
    A(f"v_add_u32 v{VSA+4}, {STAT}, v{VSA+4}")
    D = []
    for s in range(cfg.pst): D += dma_stage(s, attn)
    for nm in cfg.stamps or []:
        if nm[0] == "p" and nm[1:].isdigit(): D[int(nm[1:])] = D[int(nm[1:])] + [stp(cfg, nm)]
    X = [x[2] for x in L if isinstance(x, tuple) and x[0] == "M"]
    L = [x for x in L if not (isinstance(x, tuple) and x[0] == "M")]
    e(D[8 if pre else 0:cfg.p0]); e(weave(D[cfg.p0:cfg.p1], L, start=0, per=cfg.pper)); stamp(e, cfg, "set")
    e(D[cfg.p1:cfg.p2]); e(X); e(D[cfg.p2:])
    if "pf" in cfg.x:
        e(pf_srd())
        if cfg.pfx < 0: e([pf_x()])
    stamp(e, cfg, "pro")

def c3t(): return (f"buffer_load_dword v{T0+13}, v{T0+13}, {sr(SB,4)}, 0 offen", "touch")
VPF = T0 + 12
def pf_srd(): return [f"s_mov_b32 s{SB}, s{S_TW}", f"s_mov_b32 s{SB+1}, s{S_TW+1}", f"s_mov_b32 s{SB+2}, s{S_TW2}", f"s_mov_b32 s{SB+3}, 0x20000"]
def pf_w(cfg, t): return [f"s_mov_b32 s{S_TW}, {t * 16384 // cfg.pfn}", (f"buffer_load_dword a255, v{VPF}, {sr(SB,4)}, s{S_TW} offen", "touch")]
def pf_x(): return (f"buffer_load_dword a255, v{VPF+1}, {sr(SX,4)}, s{S_TW2+1} offen", "touch")
def l2w_loads():
    return [(f"global_load_dword v{T0+12}, v{LT+1}, {sr(S_TW,2)}", "touch"), (f"global_load_dword v{T0+15}, v{VFL}, {sr(S_TW2,2)}", "touch")]

def leader():
    a = LT + 2
    L = [f"v_lshrrev_b32 v{a}, 3, v{a}", f"v_lshlrev_b32 v{a}, v{a}, 1"]
    for r in (8, 4, 2, 1): L.append(f"v_or_b32_dpp v{a}, v{a}, v{a} row_ror:{r} row_mask:0xf bank_mask:0xf")
    L += [f"v_lshlrev_b32 v{LT+3}, 24, v0", f"v_readfirstlane_b32 s4, v{a}", f"s_lshl_b32 s5, s{S_MT}, 2",
          "s_ff0_i32_b32 s4, s4", "s_or_b32 s4, s4, 32", "s_lshl_b32 s4, s4, 3", f"v_mov_b32 v{a}, s4",
          [f"s_cmp_lg_u32 s{S_N}, 0", f"s_cmov_b32 s5, {BIG}"],
          (f"buffer_store_dword v{a}, v{LT+3}, {sr(SD,4)}, s5 offen offset:{DBO()} sc1", "ep")]
    return L

def fin_stats(m, q):
    return [f"v_fma_f32 v{q}, -v{m}, v{m}, v{q}", f"v_max_f32 v{q}, 0, v{q}",
            f"v_cvt_pk_bf16_f32 v{q}, v{m}, v{q}",
            f"v_lshlrev_b32 v{m}, 16, v{q}", f"v_and_b32 v{q}, 0xffff0000, v{q}",
            f"v_add_f32 v{q}, 0x{f2u(1e-5):x}, v{q}", f"v_cvt_pk_bf16_f32 v{q}, v{q}, v{q}", f"v_and_b32 v{q}, 0xffff0000, v{q}",
            f"v_sqrt_f32 v{q}, v{q}", f"v_cvt_pk_bf16_f32 v{q}, v{q}, v{q}", f"v_and_b32 v{q}, 0xffff0000, v{q}",
            f"v_rcp_f32 v{q}, v{q}", f"v_mul_f32 v{m}, -v{m}, v{q}"]

def stats_make():
    q0, s0, t = STT, STT + 1, STT + 2
    L = []
    for i in range(4):
        c = lambda d: "0" if i == 0 else f"v{d}"
        L += [f"v_dot2_f32_bf16 v{s0}, v{SXL+i}, v{ONES}, {c(s0)}", f"v_dot2_f32_bf16 v{q0}, v{SXL+i}, v{SXL+i}, {c(q0)}"]
    L += [f"v_permlane32_swap_b32 v{s0}, v{q0}", f"v_add_f32 v{s0}, v{s0}, v{q0}", f"v_mov_b32 v{q0}, v{s0}",
          f"v_permlane16_swap_b32 v{s0}, v{q0}", f"v_add_f32 v{s0}, v{s0}, v{q0}"]
    for r in (8, 4, 2, 1): L.append(f"v_add_f32_dpp v{s0}, v{s0}, v{s0} row_ror:{r} row_mask:0xf bank_mask:0xf")
    inv = f2u(1.0 / 512)
    L += [f"v_mul_f32 v{s0}, 0x{inv:x}, v{s0}", f"v_mov_b32 v{q0}, v{s0}",
          f"v_permlane32_swap_b32 v{s0}, v{q0}"]
    L += fin_stats(s0, q0)
    L += [[f"s_lshl_b32 s4, s{S_STP}, 1", f"s_sub_u32 s4, s4, s{S_STC}"],
          (f"buffer_store_dwordx2 {vr(q0,2)}, v{VL24}, {sr(SF,4)}, s4 offen sc1", "pub1"),
          (f"buffer_store_dword v{q0}, v{VL24}, {sr(SF,4)}, s{S_STP} offen offset:512 sc1", "pub1"),
          (f"buffer_store_dword v{s0}, v{VL24}, {sr(SF,4)}, s{S_STP} offen offset:768 sc1", "pub1")]
    return L

def stats_side(attn):
    L = []
    t = T0 + 16
    n = 2 if attn else 1
    for i, sq in enumerate((1, 2)[:n]):
        d = t + 2 * i
        L.append(f"v_cndmask_b32 v{d}, v{ST(sq)}, v{ST(sq)+1}, {sr(S_M1,2)}")
        L.append(f"v_cndmask_b32 v{d}, v{d}, v{ST(sq)+2}, {sr(S_M2,2)}")
        L.append(f"v_cndmask_b32 v{d}, v{d}, v{ST(sq)+3}, {sr(S_M3,2)}")
    if attn: L.append(f"v_permlane32_swap_b32 v{ST(2)}, v{ST(2)+1}")
    sums = (ST(0), ST(2))
    inv = f2u(1.0 / 512)
    for i in range(n): L.append(f"v_mul_f32 v{t+2*i+1}, 0x{inv:x}, v{sums[i]}")
    for i in range(n): L.append(f"v_mul_f32 v{t+2*i}, 0x{inv:x}, v{t+2*i}")
    F = [fin_stats(t + 2 * i + 1, t + 2 * i) for i in range(n)]
    for x in zip(*F): L += list(x)
    L.append(f"ds_write_b64 v{VSA}, {vr(t,2)}")
    if attn:
        L.append(f"ds_write_b64 v{VSA+2}, {vr(t+2,2)}")
        L.append(f"ds_write2_b32 v{VSA+1}, v{t}, v{t+1} offset0:0 offset1:80")
        L.append(f"ds_write2_b32 v{VSA+3}, v{t+2}, v{t+3} offset0:0 offset1:80")
    return L

SENT = T0
def SNT(): return "snt" in XOPT
def SN(): return () if not SNT() else (3,) if "f3" in XOPT else (2, 3) if "f23" in XOPT else (1, 2, 3)
def fills(attn, SENT=SENT):
    L = [f"v_mov_b32 v{SENT+i}, -1" for i in range(4)]
    for jp in SN():
        for seg in range(1 if attn else 3):
            L.append([f"s_add_u32 s{S_T}, s{S_SEG+seg}, {jp * 2 * TILEB}",
                      (f"buffer_store_dwordx4 {vr(SENT,4)}, v{VHS}, {sr(SH,4)}, s{S_T} offen {'' if 'fpl' in XOPT else 'sc1'}", "fill")])
    return L
def clamp(Q, jp): return [f"v_min_u32 v{Q}, -2, v{Q}", f"v_min_u32 v{Q+2}, -2, v{Q+2}"] if jp in SN() else []
def nofill(e): assert not any(x[1] == "fill" for x in e.vm), "fill still open"
nofill.free = True
def hstore(quad, seg, jp):
    if f"nost{jp}" in XOPT: return ["s_nop 1"]
    return ([nofill] if jp in SN() else []) + [f"s_add_u32 s{S_T}, s{S_SEG+seg}, {jp * 2 * TILEB}",
            (f"buffer_store_dwordx4 {vr(quad,4)}, v{VHS}, {sr(SH,4)}, s{S_T} offen sc1", f"hs{jp}")]

def epl(): return (f"buffer_load_dword v{VEP}, v{VL4}, {sr(SD,4)}, 0 offen offset:{DBO()} sc1", "epl")
def poll(own): return (f"buffer_load_dword v{VFL}, v{VL4}, {sr(SF,4)}, s{S_FLO if own else S_FLC} offen sc1", "poll")

def pub(c, tag):
    def done(e):
        if SNT() and c == min(SN()) + 1:
            assert e.tags.get("fill", 0) == e.nfill, (e.tags.get("fill", 0), e.nfill)
            nofill(e)
    done.free = True
    a = [[lambda e: e.wait(vm_tag=tag), done, "s_mov_b64 exec, 1", f"ds_add_rtn_u32 v3, v{VCN}, v{VCN} offset:{4*c}", "s_mov_b64 exec, -1"]]
    b = [[f"s_add_u32 s5, s{S_EPO}, {c}", f"v_readfirstlane_b32 s4, v3", f"v_mov_b32 v3, s5", f"s_cmp_eq_u32 s4, {3 * CNT}", f"s_cselect_b32 s4, s{S_FLP}, {BIG}",
          (f"buffer_store_dword v3, v{VL24}, {sr(SF,4)}, s4 offen sc1", "flag")]]
    return a, b

def chk(c, own, lab):
    return [[mark2(f"chk{c}"), f"s_add_u32 s4, s{S_EPO if own else S_EPC}, {c}", f"v_subrev_u32 v1, s4, v{VFL}", f"v_cmp_lt_u32 vcc, {CMAX - c}, v1", "s_nop 0",
             f"s_and_b32 s4, vcc_lo, " + ("0xffff" if own else f"s{S_MASK}"), ("s_nop 0" if ("nochk" in XOPT and not own) else f"s_cbranch_scc1 L_{lab}"), f"L_{lab}ok:"]]

def mark2(tag):
    f = lambda e: e.tags.__setitem__(tag, 1)
    f.free = True
    return f

def cnt(x):
    if isinstance(x, list): return sum(cnt(y) for y in x)
    if callable(x): return 0.5
    if isinstance(x, tuple): x = x[0]
    return 3 if x.startswith(("buffer_", "global_")) else 1

def kstep(e, M, reads=(), side=(), bar=None, sstart=0):
    n = len(M)
    slots = [[] for _ in range(n)]
    i0 = 0
    if bar: slots[1] += bar; i0 = 1
    for i, r in enumerate(reads): slots[min(i0 + i, n - 1)].append(r)
    tot = sum(cnt(x) for x in side)
    cap = [(1.0 if (i0 <= i < i0 + len(reads)) else 2.0) if ((i > i0 or not bar) and i >= sstart) else 0 for i in range(n)]
    sc = tot / sum(cap) if tot else 0
    acc = 0.0; lim = 0.0; i = 0
    for x in side:
        while i < n - 1 and acc + 1e-9 >= lim + cap[i] * sc:
            lim += cap[i] * sc; i += 1
        slots[i].append(x); acc += cnt(x)
    for m, s in zip(M, slots):
        e(m); e(s)

def sets_m0(x):
    if isinstance(x, list): return any(sets_m0(y) for y in x)
    return isinstance(x, str) and " m0," in x
def needs_m0(x):
    if sets_m0(x): return False
    if isinstance(x, list): return any(needs_m0(y) for y in x)
    if isinstance(x, tuple): x = x[0]
    return isinstance(x, str) and x.endswith(" lds")

def merge(a, b):
    out = []; i = j = 0
    while i < len(a) or j < len(b):
        if j >= len(b) or (i < len(a) and (i * len(b) <= j * len(a) or (sets_m0(b[j]) and needs_m0(a[i])))): out.append(a[i]); i += 1
        else: out.append(b[j]); j += 1
    return out

def spread(main, side, lo=0.0, hi=1.0):
    n = len(main); a = int(n * lo); b = max(a + 1, int(n * hi))
    if not side: return list(main)
    return main[:a] + weave(main[a:b], side, start=0, per=len(side) / (b - a)) + main[b:]

def single(G, lo=None):
    out = []
    for g in G:
        for x in g:
            if x != "s_nop 0": out.append(At(x, lo=lo))
    return out
def mark(tag):
    f = lambda e: e.tags.__setitem__(tag, 1)
    f.free = True
    return f
def need(tag, n=1):
    f = lambda e: e.seen(tag, n)
    f.free = True
    return f
def wlg(tag): return lambda e: e.wait(lg_tag=tag)
def report(cfg, nm, r, log):
    if cfg.verbose > 2:
        acc = {}
        for g, c, k in log: acc[g // 16] = acc.get(g // 16, 0) + c
        print(nm, "per 16 gaps:", " ".join(str(v) for v in acc.values())); return
    if cfg.verbose: print(f"{nm}: {r[0]} + {r[1]}  ({len(log)} gaps)", " ".join(f"{k or '-'}{'' if c <= 17 else c}" for g, c, k in log) if cfg.verbose > 1 else "")

def phase_a(e, cfg, attn, sfx):
    e.wait(vm_tag="st0", lg=0)
    e("s_barrier")
    stamp(e, cfg, "loop")
    e(frag_reads(0, attn))
    A = []; S = []
    for k in range(16):
        S.append(len(A))
        M = a_mfmas(k, attn)
        if k == 0: M = M + s_mfmas(0, attn)
        if k < 14: M = M + s_mfmas(k + 1, attn)
        if k == 14: M = M[:cfg.s15] + s_mfmas(15, attn) + M[cfg.s15:]
        A += M
    S.append(len(A))
    fx = {}; QS = []
    bar = {}
    for k in range(1, 15, 2):
        bar[k] = S[k] + 1
        fx[bar[k]] = [lambda e, s=k >> 1: e.wait(vm_tag=f"st{s+1}", lg=0), "s_barrier", stp(cfg, f"k{k}")]
    for k in range(15):
        QS.append(Q(frag_reads(k + 1, attn), bar.get(k, S[k]), S[k + 1] - cfg.rend, slack=2, ahead=1, prio=2))
        w = [At(wlg(f"fa{k+1}"), lo=S[k + 1] - 2, dl=S[k + 1] - 1)]
        if k & 1: w.append(At(wlg(f"fb{k+1}"), lo=S[k + 1] + 3, dl=S[k + 1] + 4))
        QS.append(Q(w, S[k], S[k], prio=5))
    dm = []
    for s in range(cfg.pst, 8): dm += single(dma_stage(s, attn), bar[2 * (s - 4) + 1] if s >= 4 else 0)
    if "nodma" in cfg.x: dm = []
    dm += single(dma_pair(0), bar[9]) + single(dma_pair(1)[:cfg.xp1a], bar[11])
    for q in cfg.wa: dm += single(w2_dma(cfg, q), 0 if cfg.w2pg[q] == 0 else bar[13])
    QS.append(Q(dm, 0, 0, per=cfg.dper, slack=3, ahead=1, prio=1))
    def side(items, k0, k1, **kw): QS.append(Q(items, S[k0], S[k1], slack=6, **kw))
    side(leader(), cfg.ldk, cfg.ldk + 1)
    side(stats_make(), cfg.smk, cfg.smk + 3)
    if SNT() and cfg.fg1 == 0: side(fills(attn), cfg.fk0, cfg.fk1)
    if "mall" in cfg.x: side([(f"global_load_dword v{LT}, v{LT+1}, {sr(S_TW,2)}", "touch")], cfg.mall2, cfg.mall2)
    if "c3t" in cfg.x and attn and cfg.c3k >= 0: side([c3t()], cfg.c3k, cfg.c3k)
    if "l2w" in cfg.x: side(l2w_loads(), cfg.l2wk, cfg.l2wk + 1)
    if "pf" in cfg.x:
        if cfg.pfx >= 0: side([At(pf_x(), lo=S[cfg.pfx] + 4)], cfg.pfx, cfg.pfx)
        g0, g1 = S[cfg.pfk0] + 4, S[cfg.pfk1] + 4
        side([At(pf_w(cfg, t), lo=int(g0 + (g1 - g0) * t / max(1, cfg.pfn - 1))) for t in range(cfg.pfw)], cfg.pfk0, cfg.pfk0)
    pa, pb = pub(1, "pub1")
    side([epl(), At(pa[0], lo=S[cfg.flk]),
          At([f"s_lshr_b32 s5, s{S2_RB}, 1", f"v_readlane_b32 s{S_EPO}, v{VEP}, s{S_MT}", f"v_readlane_b32 s{S_EPC}, v{VEP}, s5", "s_nop 0",
              f"s_min_u32 s4, s{S_EPO}, s{S_EPC}", "s_cmp_eq_u32 s4, 0", f"s_cbranch_scc1 L_ep{sfx}", f"L_ep{sfx}ok:"], lo=S[cfg.flk] + 6),
          At(pb[0], lo=S[cfg.flk + 1])], cfg.epk, cfg.epk)
    if "hsa" in cfg.x: side([need("st7", 9 if attn else 8)] + hs_early(), cfg.hsk, cfg.hsk + 2)
    if not attn:
        bb = []
        for seg in range(3):
            for hh in range(2):
                bb.append(f"v_lshlrev_b32 v{F_BB+4*seg+2*hh}, 16, v{F_B1+2*seg+hh}")
                bb.append(f"v_and_b32 v{F_BB+4*seg+2*hh+1}, 0xffff0000, v{F_B1+2*seg+hh}")
        side(bb, 11, 13)
    lb = S[15] + cfg.lb
    QS.append(Q(stats_side(attn), S[14] + cfg.s15 + 5, lb - 2, slack=1, ahead=3, prio=3))
    for it in QS[-1].L: it.dl = min(it.dl, lb - 1)
    fx[lb] = [lambda e: e.wait(vm_tag="xp0", lg=0), "s_barrier", stp(cfg, "lbar")]
    rm = [f"ds_read_b64 {vr(RMJ(j),2)}, v{VSA+4} offset:{128*(4 if j == 8 else j)}" for j in ((8, 0, 1, 2, 3) if attn else range(4))]
    QS.append(Q(rm, lb, lb + 2, slack=1, ahead=3))
    log = []
    report(cfg, "A" + sfx, pack(e, A, QS, fx, log=log, gmin=cfg.ga), log)
    stamp(e, cfg, "lend")

F_BB, F_A, F_G, F_B1 = T0 + 30, T0, T0 + 42, T0 + 44
def ffn_pre():
    L = []; A = L.append
    A("v_lshlrev_b32 v21, 5, v1")
    A(f"v_lshl_add_u32 v21, v{VG}, 3, v21")
    A(f"s_mul_i32 s76, s{S_P}, 384"); A("v_add_u32 v21, s76, v21")
    A(("M", "b1", [f"buffer_load_dwordx2 {vr(F_B1+2*seg,2)}, v21, {sr(SB,4)}, 0 offen offset:{128*seg}" for seg in range(3)]))
    A(f"s_mul_i32 s74, s{S_P}, 12"); A(f"s_add_u32 s74, s74, s{S_W}")
    for seg in range(3):
        A([f"s_mov_b32 s{S_SEG+seg}, {BIG}", f"s_cmp_lt_u32 s74, {88 - 4*seg}", f"s_cmov_b32 s{S_SEG+seg}, {2048*seg}"])
    A(f"v_mov_b32 v{F_G}, 0x{f2u(G1):x}"); A(f"v_mov_b32 v{F_G+1}, 0x{f2u(G0):x}")
    return L

F_CS = T0 + 50
def ffn_ep(cfg, jp, plain=False):
    LL = []
    BB = F_BB
    G = vr(F_G, 2)
    for seg in range(3):
        L = []; E = L.append
        CS = ACC(seg, 4) if jp < 2 else F_CS + 4 * seg
        A = F_A + 8 * seg; Q = ACC(seg, (2 * jp) & 3)
        P = []
        for u in range(2):
            j = 2 * jp + u
            for h in range(2):
                P.append((ACC(seg, j & 3) + 2 * h, RMJ(j), CS + 2 * h, BB + 4 * seg + 2 * h, 2 * u + h))
        for a, rm, cs, bb, i in P:
            E(f"v_pk_fma_f32 {vr(A+2*i,2)}, {vr(rm,2)}, {vr(cs,2)}, {vr(bb,2)} op_sel:[1,0,0] op_sel_hi:[1,1,1]")
        for a, rm, cs, bb, i in P:
            E(f"v_pk_fma_f32 {vr(a,2)}, {vr(rm,2)}, {vr(a,2)}, {vr(A+2*i,2)} op_sel:[0,0,0] op_sel_hi:[0,1,1]")
        for a, rm, cs, bb, i in P:
            E(f"v_pk_mul_f32 {vr(A+2*i,2)}, {vr(a,2)}, {vr(a,2)}")
        for a, rm, cs, bb, i in P:
            E(f"v_pk_fma_f32 {vr(A+2*i,2)}, {vr(A+2*i,2)}, {G}, {G} op_sel:[0,0,1] op_sel_hi:[1,0,1]")
        for a, rm, cs, bb, i in P:
            E(f"v_pk_mul_f32 {vr(A+2*i,2)}, {vr(A+2*i,2)}, {vr(a,2)}")
        for i in range(8): E(f"v_exp_f32 v{A+i}, v{A+i}")
        if plain:
            for i in range(8): E(f"v_add_f32 v{A+i}, 1.0, v{A+i}")
        else:
            for i in range(4): E(f"v_pk_add_f32 {vr(A+2*i,2)}, {vr(A+2*i,2)}, 1.0 op_sel_hi:[1,0]")
        for i in range(8): E(f"v_rcp_f32 v{A+i}, v{A+i}")
        for a, rm, cs, bb, i in P:
            E(f"v_pk_mul_f32 {vr(A+2*i,2)}, {vr(A+2*i,2)}, {vr(a,2)}")
        st = hstore(Q, seg, jp)
        for i in (0, 2): E(f"v_cvt_pk_bf16_f32 v{Q+i}, v{A+2*i}, v{A+2*i+1}")
        L += clamp(Q, jp)
        for i in (1, 3): E(f"v_cvt_pk_bf16_f32 v{Q+i}, v{A+2*i}, v{A+2*i+1}")
        E(f"v_permlane16_swap_b32 v{Q}, v{Q+2}")
        E(f"v_permlane16_swap_b32 v{Q+1}, v{Q+3}")
        E(Delay(1))
        E(st)
        LL.append(L)
    return LL

TT, SEC, R4, CSQ, CSK, CSV, KP, VHH = T0, T0 + 8, T0 + 16, T0 + 32, T0 + 36, T0 + 40, T0 + 42, T0 + 46
CCUR, CPREV, MPREV, CFIRST, VR4 = T0 + 52, T0 + 56, T0 + 60, RM + 10, 3
def attn_pre():
    L = []; A = L.append
    A(f"v_mov_b32 v13, 0x{NEG:x}")
    A("v_mov_b32 v5, 0xffff"); A("v_mov_b32 v18, 0xffff0000")
    A(f"v_lshlrev_b32 v7, 2, v{VG}")
    A(f"v_sub_u32 v7, v{VT}, v7")
    A([f"s_cmp_lt_u32 s{S_MT}, 2", "s_cselect_b64 s[4:5], 0, -1"])
    for r in range(4):
        A(f"v_subrev_u32 v8, {r}, v7")
        A("v_cmp_gt_u32 vcc, 8, v8")
        A("v_cmp_gt_i32 s[74:75], -8, v8")
        A(f"v_cndmask_b32 v{CCUR+r}, v13, 0, vcc")
        A(f"v_cndmask_b32 v{CPREV+r}, v13, 0, s[74:75]")
        A(f"v_cndmask_b32 v{14+r}, 0, v{18 if r & 1 else 5}, s[74:75]")
        A(f"v_cndmask_b32 v{CFIRST+r}, v13, v{CPREV+r}, s[4:5]")
    A(f"v_or_b32 v{MPREV}, v14, v15"); A(f"v_or_b32 v{MPREV+1}, v16, v17")
    A(f"s_mov_b32 s{S_SEG}, 0")
    return L

def rd4(j, b):
    o = 64 * (4 if j == 8 else j)
    return [f"ds_read_b128 {vr(R4+8*b,4)}, v{VSA} offset:{o}", f"ds_read_b128 {vr(R4+8*b+4,4)}, v{VSA} offset:{o+320}"]

def attn_ep(cfg, jp, mid=()):
    L = []; E = L.append
    def ln_qk(a, j, cs, d):
        rm = RMJ(j)
        return [f"v_pk_mul_f32 {vr(TT,2)}, {vr(rm,2)}, {vr(cs,2)} op_sel:[1,0] op_sel_hi:[1,1]",
                f"v_pk_mul_f32 {vr(TT+2,2)}, {vr(rm,2)}, {vr(cs+2,2)} op_sel:[1,0] op_sel_hi:[1,1]",
                f"v_pk_fma_f32 {vr(TT,2)}, {vr(rm,2)}, {vr(a,2)}, {vr(TT,2)} op_sel:[0,0,0] op_sel_hi:[0,1,1]",
                f"v_pk_fma_f32 {vr(TT+2,2)}, {vr(rm,2)}, {vr(a+2,2)}, {vr(TT+2,2)} op_sel:[0,0,0] op_sel_hi:[0,1,1]",
                f"v_cvt_pk_bf16_f32 v{d}, v{TT}, v{TT+1}",
                f"v_cvt_pk_bf16_f32 v{d+1}, v{TT+2}, v{TT+3}"]
    def ln_v(a, b, d):
        r4 = R4 + 8 * b; m4 = r4 + 4; t = TT + 4
        return [f"v_pk_mul_f32 {vr(t,2)}, {vr(m4,2)}, {vr(CSV,2)} op_sel_hi:[1,0]",
                f"v_pk_mul_f32 {vr(t+2,2)}, {vr(m4+2,2)}, {vr(CSV,2)} op_sel_hi:[1,0]",
                f"v_pk_fma_f32 {vr(t,2)}, {vr(r4,2)}, {vr(a,2)}, {vr(t,2)}",
                f"v_pk_fma_f32 {vr(t+2,2)}, {vr(r4+2,2)}, {vr(a+2,2)}, {vr(t+2,2)}",
                f"v_cvt_pk_bf16_f32 v{d}, v{t}, v{t+1}",
                f"v_cvt_pk_bf16_f32 v{d+1}, v{t+2}, v{t+3}"]
    js = (2 * jp, 2 * jp + 1); ps = {j: j & 3 for j in js}
    kprev = KP + 2 * (jp & 1); knext = KP + 2 * ((jp + 1) & 1)
    if jp == 0:
        E(f"v_lshlrev_b32 v{VSA}, 4, v{VG}"); E(f"v_add_u32 v{VSA}, {STAT + 640}, v{VSA}")
        L += rd4(8, 0) + rd4(0, 1)
        E(f"s_mov_b32 s{S_C}, 0x{f2u(C_SM):x}"); E(f"s_mov_b32 s{S_C+1}, 0x{f2u(C_SM):x}")
        for r in range(4):
            E(f"v_mov_b32_dpp v{CSQ+r}, v{ACC(0,4)+r} row_newbcast:0 row_mask:0xf bank_mask:0xf")
            E(f"v_mov_b32_dpp v{CSK+r}, v{ACC(1,4)+r} row_newbcast:0 row_mask:0xf bank_mask:0xf")
        E(f"v_mov_b32 v{CSV}, v{ACC(2,4)}"); E(f"v_mov_b32 v{CSV+1}, v{ACC(2,4)}")
        L += ln_qk(ACC(1, 4), 8, CSK, kprev)
        E(f"v_permlane32_swap_b32 v{CSV}, v{CSV+1}")
        L += interleave(ln_qk(ACC(1, 0), 0, CSK, ACC(1, 0)), ln_v(ACC(2, 4), 0, VHH))
        L += rd4(1, 0)
        L += interleave(ln_qk(ACC(0, 0), 0, CSQ, ACC(0, 0)), ln_v(ACC(2, 0), 1, VHH + 2))
        L += rd4(2, 1)
        L += interleave(ln_qk(ACC(1, 1), 1, CSK, knext), ln_v(ACC(2, 1), 0, VHH + 4))
        L += rd4(3, 0)
        L += ln_qk(ACC(0, 1), 1, CSQ, ACC(0, 1))
    else:
        b0, b1 = (1, 0) if jp == 1 else (0, 1)
        E(f"v_mov_b32 v{VHH}, v{VHH+4}"); E(f"v_mov_b32 v{VHH+1}, v{VHH+5}")
        p0, p1 = ps[js[0]], ps[js[1]]
        L += interleave(ln_qk(ACC(1, p0), js[0], CSK, ACC(1, p0)), ln_v(ACC(2, p0), b0, VHH + 2))
        L += ln_qk(ACC(0, p0), js[0], CSQ, ACC(0, p0))
        L += interleave(ln_qk(ACC(1, p1), js[1], CSK, knext), ln_v(ACC(2, p1), b1, VHH + 4))
        L += ln_qk(ACC(0, p1), js[1], CSQ, ACC(0, p1))
    sec = {j: SEC + 4 * (j & 1) for j in js}
    E(Delay(1))
    for j in js:
        kp = kprev if j == js[0] else ACC(1, ps[js[0]])
        kc = ACC(1, ps[j]) if j == js[0] else knext
        cp = CFIRST if j == 0 else CPREV
        E(f"v_mfma_f32_16x16x16_bf16 {vr(ACC(2,ps[j]),4)}, {vr(kp,2)}, {vr(ACC(0,ps[j]),2)}, {vr(cp,4)}")
        E(f"v_mfma_f32_16x16x16_bf16 {vr(sec[j],4)}, {vr(kc,2)}, {vr(ACC(0,ps[j]),2)}, {vr(CCUR,4)}")
    L += list(mid)
    E(Delay(2))
    X = {j: ACC(2, ps[j]) for j in js}
    Mx = {j: ACC(0, ps[j]) + 2 for j in js}
    P = {j: ACC(1, ps[j]) for j in js}
    for j in js:
        for r in range(4): E(f"v_max_f32 v{X[j]+r}, v{X[j]+r}, v{sec[j]+r}")
    for j in js: E(f"v_max3_f32 v{Mx[j]}, v{X[j]}, v{X[j]+1}, v{X[j]+2}")
    for j in js: E(f"v_max_f32 v{Mx[j]}, v{Mx[j]}, v{X[j]+3}")
    for j in js: E(f"v_mov_b32 v{Mx[j]+1}, v{Mx[j]}")
    for j in js: E(f"v_permlane32_swap_b32 v{Mx[j]}, v{Mx[j]+1}")
    for j in js: E(f"v_max_f32 v{Mx[j]}, v{Mx[j]}, v{Mx[j]+1}")
    for j in js: E(f"v_mov_b32 v{Mx[j]+1}, v{Mx[j]}")
    for j in js: E(f"v_permlane16_swap_b32 v{Mx[j]}, v{Mx[j]+1}")
    for j in js: E(f"v_max_f32 v{Mx[j]}, v{Mx[j]}, v{Mx[j]+1}")
    for j in js: E(f"v_mul_f32 v{Mx[j]}, s{S_C}, v{Mx[j]}")
    for j in js:
        for h in range(2):
            E(f"v_pk_fma_f32 {vr(X[j]+2*h,2)}, {vr(X[j]+2*h,2)}, {sr(S_C,2)}, {vr(Mx[j],2)} op_sel_hi:[1,1,0] neg_lo:[0,0,1] neg_hi:[0,0,1]")
    for j in js:
        for r in range(4): E(f"v_exp_f32 v{X[j]+r}, v{X[j]+r}")
    for j in js:
        E(f"v_cvt_pk_bf16_f32 v{P[j]+2}, v{X[j]}, v{X[j]+1}")
        E(f"v_cvt_pk_bf16_f32 v{P[j]+3}, v{X[j]+2}, v{X[j]+3}")
    for j in js:
        E(f"v_and_b32 v{P[j]}, v{MPREV}, v{P[j]+2}")
        E(f"v_and_b32 v{P[j]+1}, v{MPREV+1}, v{P[j]+3}")
    for j in js:
        E(f"v_xor_b32 v{P[j]+2}, v{P[j]+2}, v{P[j]}")
        E(f"v_xor_b32 v{P[j]+3}, v{P[j]+3}, v{P[j]+1}")
    E(Delay(1))
    for j in js:
        E(f"v_mfma_f32_16x16x32_bf16 {vr(sec[j],4)}, {vr(ONES,4)}, {vr(P[j],4)}, 0")
        E(f"v_mfma_f32_16x16x32_bf16 {vr(X[j],4)}, {vr(VHH+2*(j&1),4)}, {vr(P[j],4)}, 0")
    Q = TT + 4 * (jp & 1)
    st = hstore(Q, 0, jp)
    E(Delay(2))
    for j in js: E(f"v_rcp_f32 v{sec[j]}, v{sec[j]}")
    for j in js:
        for h in range(2):
            E(f"v_pk_mul_f32 {vr(X[j]+2*h,2)}, {vr(X[j]+2*h,2)}, {vr(sec[j],2)} op_sel_hi:[1,0]")
    for u, j in enumerate(js): E(f"v_cvt_pk_bf16_f32 v{Q+2*u}, v{X[j]}, v{X[j]+1}")
    L += clamp(Q, jp)
    for u, j in enumerate(js): E(f"v_cvt_pk_bf16_f32 v{Q+2*u+1}, v{X[j]+2}, v{X[j]+3}")
    E(f"v_permlane16_swap_b32 v{Q}, v{Q+2}")
    E(f"v_permlane16_swap_b32 v{Q+1}, v{Q+3}")
    E(Delay(1))
    E(st)
    return [L]

def interleave(a, b):
    out = []
    for x, y in zip(a, b): out += [x, y]
    return out

def hload(s, q, va=None):
    reg = (SETX if s % 2 == 0 else SETY)[q]
    so, off = ("0", 0) if q == 0 else (f"s{S2_HS[q]}", 1024)
    if f"noh{s}" in XOPT: return ("s_nop 1", f"h{s}")
    ld = (f"buffer_load_dwordx4 {xr(reg,4)}, v{va or V2H}, {sr(SF,4)}, {so} offen offset:{off} sc1", f"h{s}")
    return [need(f"chk{min(SN()) + 1}" if s in SN() else f"chk{s + 2}"), ld] if va is None else ld
def hnext(): return (f"v_add_u32 v{V2H}, {2 * TILEB}, v{V2H}", "hn")
SLOW = []
VM_ = VFL
def smax(s, q, first):
    r = (SETX if s % 2 == 0 else SETY)[q]; L = []
    a, b = r, r + 2
    if r >= 256:
        L = [f"v_accvgpr_read_b32 v1, a{r-256}", f"v_accvgpr_read_b32 v3, a{r-254}"]; a, b = 1, 3
    return L + [f"v_max_u32 v{VM_}, v{a}, v{b}" if first else f"v_max3_u32 v{VM_}, v{a}, v{b}, v{VM_}"]
def sck(s, qs, lab):
    L = []
    for q in qs: L += smax(s, q, q == qs[0])
    def rec(e):
        e.seen(f"h{s}", qs[-1] + 1)
        SLOW.append((lab, s, qs, e.tags[f"h{s}"], e.tags.get("hn", 0)))
    rec.free = True
    L.append([rec, f"v_cmp_eq_u32 vcc, -1, v{VM_}", "s_nop 0" if "nochk" in XOPT else f"s_cbranch_vccnz L_{lab}", f"L_{lab}ok:"])
    return L

def hs_early():
    L = [f"s_lshr_b32 s{S2_HS[1]}, s{S_ROT}, 5"]
    for q in range(2, 15): L.append([f"s_add_u32 s{S2_HS[q]}, s{S2_HS[q-1]}, 1024", f"s_cmp_eq_u32 s{S2_HS[q]}, {14 * 1024}", f"s_cmov_b32 s{S2_HS[q]}, 0"])
    return L + [mark("hss")]
def hs_setup():
    if "hsa" in XOPT: return hs_setup0()[-1:]
    return hs_setup0()
def hs_setup0():
    L = [f"s_lshr_b32 s{S_MASK}, s{S_ROT}, 5"]
    for q in range(1, 15):
        d = S2_HS[q]; t = S2_HS[q + 1] if q < 14 else S_MASK
        L += [f"s_add_u32 s{d}, s{S_MASK}, {(q - 1) * 1024}", f"s_sub_u32 s{t}, s{d}, {14 * 1024}", f"s_min_u32 s{d}, s{d}, s{t}"]
    L.append(["s_mov_b32 s4, 0x078000ff", "s_mov_b32 s5, 0xf0001c00", f"s_lshl_b32 s{S_MASK}, s{S_W}, 4",
              f"s_lshr_b64 s[4:5], s[4:5], s{S_MASK}", f"s_and_b32 s{S_MASK}, s4, 0xffff"])
    return L

def nodelay(L): return [x for x in L if not isinstance(x, Delay)]
def wseq(cfg, spec, lo=None):
    out = []
    for t in spec.split():
        t, _, at = t.partition("@")
        q = int(t[1:])
        l = lo and lo(t)
        if at: l = max(l or 0, int(at))
        out += single(w2_dma(cfg, q), l) if t[0] == "D" else [At(x, lo=l) for x in w2_read(cfg, q)]
    return out
def unat(L): return [x.item if isinstance(x, At) else x for x in L]

def equeues(cfg, LL, lo, hi, **kw):
    kw["hard"] = True
    if len(LL) == 1: return [Q(LL[0], lo, hi, **kw)]
    n = hi - lo; w = n * cfg.ew; st = (n - w) / 2
    return [Q(L, lo + int(st * i), lo + st * i + w, **kw) for i, L in enumerate(LL)]

def middle(e, cfg, attn, sfx):
    def ld4(j, b):
        return [(f"buffer_load_dwordx4 {vr(R4+8*b+4*i,4)}, v{VSA+2}, {sr(SF,4)}, s{S_STC} offen offset:{512+256*i+64*(j-4)} sc1", "stl") for i in range(2)]
    def ep(jp, plain=False):
        if not attn: return ffn_ep(cfg, jp, plain)
        mid = ld4(2 * jp + 2, 0) + ld4(2 * jp + 3, 1) if jp in (1, 2) else []
        if jp == 1: mid = [mark("lnv1")]
        return attn_ep(cfg, jp, mid)
    pre = []
    for k in range(3): pre += p_reads(0, k)
    m = []
    for L in ep(0): m += nodelay(L)
    w = wseq(cfg, cfg.we01)
    G = []
    for x in unat(w):
        if G and (sets_m0(G[-1][-1]) or kind(flat([x])[0])[0] == "s" and kind(flat(G[-1])[-1])[0] == "s"): G[-1].append(x)
        else: G.append([x])
    G = [[unat(single([g]))] for g in dma_pair(1)[cfg.xp1a:]] + G
    e(spread(m, ([poll(True)] if cfg.c1p < 0 else []) + G + pre, 0.05, 0.95))
    stamp(e, cfg, "e01")
    A = []
    for h in range(2):
        for k in range(16): A += p_mfmas(h, k, attn)
    QS = []; fx = {}
    rd = []
    for kk in range(3, 32):
        g = 6 * (kk - 3)
        rd += [At(x, lo=g, tg=g + 3 * u, dl=min(g + 8, 75) if kk < 16 else g + 8) for u, x in enumerate(p_reads(kk >> 4, kk & 15))]
    QS.append(Q(rd, 0, 0, ahead=2, prio=0))
    QS.append(Q([At(wlg(f"p{kk>>4}_{kk&15}"), lo=6 * kk - 3, tg=6 * kk - 3, dl=6 * kk - 1) for kk in range(1, 32)], 0, 0, prio=5))
    fx[77] = [lambda e: e.wait(vm_tag="xp1", lg_tag="p0_15"), "s_barrier"]
    fx[95] = [stp(cfg, "m45")]
    for nm in cfg.stamps or []:
        if nm[0] == "g" and nm[1:].isdigit(): fx.setdefault(int(nm[1:]), []).append(stp(cfg, nm))
    QS += equeues(cfg, ep(1, True), cfg.e0, 96 - cfg.e1, slack=cfg.eslack)
    QS += equeues(cfg, ep(2, True), 96 + cfg.e0, 192 - cfg.e1, slack=cfg.eslack)
    stl = chk(1, True, f"st{sfx}") + [f"v_lshlrev_b32 v{VSA+1}, 1, v{VL4}"]
    if attn: stl += [f"v_lshlrev_b32 v{VSA+2}, 4, v{VG}"]
    for j in range(4, 8):
        stl.append((f"buffer_load_dwordx2 {vr(RMJ(j),2)}, v{VSA+1}, {sr(SF,4)}, s{S_STC} offen offset:{128*(j-4)} sc1", "stl"))
    if attn: stl += [[need("lnv1")] + ld4(4, 0)[:1]] + ld4(4, 0)[1:] + ld4(5, 1)
    stl[0] = At(stl[0], lo=cfg.c1k, dl=cfg.c1k + 1)
    if attn: stl[2] = At(stl[2], dl=cfg.c1k + 2)
    if cfg.c1p >= 0: QS.append(Q([poll(True)], cfg.c1p, cfg.c1p, slack=1, prio=1))
    QS.append(Q(stl, cfg.c1k, cfg.c1k + 12, slack=2, prio=1, hard=True))
    def wlo(t):
        q = int(t[1:])
        if t[0] == "R" and 5 <= q <= 12: return wfree(W2R[q] + 16)
        if t[0] == "D" and cfg.w2pg[q] in (5, 6): return 78
        return None
    QS.append(Q(wseq(cfg, cfg.wm, wlo), cfg.w0, cfg.w0, slack=cfg.wslack, cad=cfg.wcad))
    pa, pb = pub(2, "hs0"); QS.append(Q([At(pa[0], lo=cfg.pk2), At(pb[0], lo=cfg.pk2 + 4)], 0, 0, slack=1))
    pa, pb = pub(3, "hs1")
    if 1 not in SN(): QS.append(Q([At(pa[0], lo=96 + cfg.pk3), At(pb[0], lo=96 + cfg.pk3 + 4)], 0, 0, slack=1))
    if SNT() and cfg.fg1: QS.append(Q(fills(attn, ST(0)), cfg.fg0, cfg.fg1, slack=4))
    QS.append(Q(hs_setup(), 4, 90, slack=20, ahead=10))
    if not attn: QS.append(Q([f"v_mov_b32 v{F_CS+4*seg+r}, v{ACC(seg,4)+r}" for seg in range(3) for r in range(4)], 4, 80, slack=10, ahead=20))
    xrl = [f"v_lshlrev_b32 v{VSA+3}, 3, v{VG}", f"v_lshl_add_u32 v{VSA+4}, v{VT}, 11, v{VSA+3}"]
    for s in range(4):
        xrl.append([f"s_add_u32 s4, s{S_XR}, {65536 * s}", (f"buffer_load_dwordx2 {vr(RESX+2*s,2)}, v{VSA+4}, {sr(SX,4)}, s4 offen", "xr")])
    xrl.append((f"buffer_load_dwordx2 {vr(RESB,2)}, v{VSA+3}, {sr(SB2,4)}, s{S_B2O} offen", "xr"))
    if cfg.xt >= 0:
        QS.append(Q([f"v_lshlrev_b32 v{VSA+3}, 16, v{VG}", f"v_lshl_add_u32 v{VSA+3}, v{VT}, 11, v{VSA+3}",
                     (f"buffer_load_dword v{VSA+4}, v{VSA+3}, {sr(SX,4)}, s{S_XR} offen", "xt")], cfg.xt, cfg.xt + 4, slack=4))
    QS.append(Q(xrl, cfg.xk0, cfg.xk1, slack=6))
    h0 = [At(poll(False), lo=cfg.hk - cfg.pld, tg=cfg.hk - cfg.pld), At(chk(2, False, f"c2{sfx}")[0], lo=cfg.hk)]
    h0 += [At(hload(0, q), lo=wfree(SETX[q] + 4)) for q in range(15)] + [hnext()]
    if 1 in SN(): h0 += [At(hload(1, q), lo=cfg.h1k) for q in range(min(cfg.n1, 8))]
    elif SNT() and not cfg.n1: QS.append(Q([poll(False)], cfg.pl3, cfg.pl3, slack=1, prio=1))
    elif cfg.n1:
        h0 += [At(poll(False), lo=cfg.h1k - cfg.pld, tg=cfg.h1k - cfg.pld), At(chk(3, False, f"c3{sfx}")[0], lo=cfg.h1k)]
        h0 += [hload(1, q) for q in range(min(cfg.n1, 8))]
        h0.sort(key=lambda x: 0)
    QS.append(Q(h0, cfg.hk, cfg.hk, slack=4, cad=cfg.hcad))
    log = []
    report(cfg, "M" + sfx, pack(e, A, QS, fx, log=log, gmin=cfg.gm, gover=cfg.gov), log)
    stamp(e, cfg, "m67")
    return ep(3, True)

def phase_d(e, cfg, sfx, E67):
    def resinit(s):
        a = ACC2(s, 0)
        L = [f"v_lshlrev_b32 v{a}, 16, v{RESX+2*s}", f"v_and_b32 v{a+1}, 0xffff0000, v{RESX+2*s}",
             f"v_lshlrev_b32 v{a+2}, 16, v{RESX+2*s+1}", f"v_and_b32 v{a+3}, 0xffff0000, v{RESX+2*s+1}"]
        return L + [f"v_add_f32 v{a+r}, v{a+r}, v{B2F+r}" for r in range(4)]
    def mf(s, late=0):
        o = [(q, i) for q in range(late) for i in (1, 2, 3)] + [(q, 0) for q in range(late)] + [(q, i) for q in range(late, 15) for i in range(4)]
        M = []
        for q, i in o:
            reg = (SETX if s % 2 == 0 else SETY)[q]
            c = vr(ACC2(s, i), 4) if (q > 0 or i == 0) else "0"
            M.append(f"v_mfma_f32_16x16x32_bf16 {vr(ACC2(s,i),4)}, {xr(W2R[q]+4*i,4)}, {xr(reg,4)}, {c}")
        return M
    def wr(s): return [f"ds_write_b128 v{VRW}, {vr(ACC2(s,i),4)} offset:{PG[REDP[s]] - 65536 + (i-1)*1024}" for i in (1, 2, 3)]
    def rd(s): return [f"ds_read_b128 {vr(ACC2(s,i),4)}, v{VRR+i-1} offset:{PG[REDP[s]] - 65536}" for i in (1, 2, 3)]
    def fin(s):
        a = ACC2(s, 0); L = []
        for h in range(2): L.append(f"v_pk_add_f32 {vr(ACC2(s,1)+2*h,2)}, {vr(ACC2(s,1)+2*h,2)}, {vr(ACC2(s,2)+2*h,2)}")
        for h in range(2): L.append(f"v_pk_add_f32 {vr(a+2*h,2)}, {vr(a+2*h,2)}, {vr(ACC2(s,3)+2*h,2)}")
        for h in range(2): L.append(f"v_pk_add_f32 {vr(a+2*h,2)}, {vr(a+2*h,2)}, {vr(ACC2(s,1)+2*h,2)}")
        L += [f"v_cvt_pk_bf16_f32 v{a}, v{a}, v{a+1}", f"v_cvt_pk_bf16_f32 v{a+1}, v{a+2}, v{a+3}",
              [f"s_mov_b32 s4, {65536 * s}", f"buffer_store_dwordx2 {vr(a,2)}, v{VOUT}, {sr(SO,4)}, s4 offen {cfg.omod}"]]
        return L
    nq = cfg.nq
    M0 = mf(0, 4)
    b2 = [f"v_lshlrev_b32 v{B2F}, 16, v{RESB}", f"v_and_b32 v{B2F+1}, 0xffff0000, v{RESB}",
          f"v_lshlrev_b32 v{B2F+2}, 16, v{RESB+1}", f"v_and_b32 v{B2F+3}, 0xffff0000, v{RESB+1}"] + resinit(0)
    QS = equeues(cfg, E67, 0, 4 * nq - 1, slack=2, prio=1)
    QS.append(Q([At(x, dl=10) for x in b2], 0, 9, slack=2, ahead=4))
    n1 = min(cfg.n1, 8)
    ad = cfg.ad if sfx == "a" else 0
    if SNT():
        h1 = [] if (n1 or 1 in SN()) else [chk(3, False, f"c3{sfx}")[0]]
        QS.append(Q(h1 + [hload(1, q) for q in range(n1, 11)], cfg.h1d, cfg.h1d, slack=2, cad=cfg.hc1))
        if 2 not in SN():
            pa, pb = pub(4, "hs2"); QS.append(Q([At(pa[0], lo=cfg.pk4), At(pb[0], lo=cfg.pk4 + 3)], 0, 0, slack=1))
    else:
        h1 = [] if n1 else [At(poll(False), lo=cfg.pl3, tg=cfg.pl3), At(chk(3, False, f"c3{sfx}")[0], lo=cfg.h1d)]
        QS.append(Q(h1 + [hload(1, q) for q in range(n1, 11)], 0 if n1 else cfg.h1d, 0, slack=2, cad=1.5))
        pa, pb = pub(4, "hs2"); QS.append(Q([At(pa[0], lo=cfg.pk4), At(pb[0], lo=cfg.pk4 + 3)], 0, 0, slack=1))
    log = []
    report(cfg, "D0a" + sfx, pack(e, M0[:4 * nq], QS, log=log, gmin=cfg.gm, gover=2), log)
    stamp(e, cfg, "eend")
    rr = []
    for q in range(nq, 15): rr += [At(x, tg=4 * (q - nq - 1) + i / 2 - cfg.rlead, dl=4 * (q - nq - 1) + i / 2 - cfg.rlead) for i, x in enumerate(w2_read(cfg, q))]
    e(unat(rr[:8])); rr = rr[8:]
    n = 60 - 4 * nq
    fx = {n - 1: [stp(cfg, "d0")], n + 59: [stp(cfg, "d1")]}
    frx = lambda q: max(0, 4 * (q - nq) + 4)
    fry = lambda q: n + (13 + q if q < 4 else 4 * q + 4)
    if SNT():
        def fin2(s):
            a = ACC2(s, 0); L = []
            for r in range(4): L.append(f"v_add_f32 v{ACC2(s,1)+r}, v{ACC2(s,1)+r}, v{ACC2(s,2)+r}")
            for r in range(4): L.append(f"v_add_f32 v{a+r}, v{a+r}, v{ACC2(s,3)+r}")
            for r in range(4): L.append(f"v_add_f32 v{a+r}, v{a+r}, v{ACC2(s,1)+r}")
            return L + fin(s)[6:]
        H = [hload(1, q) for q in range(11, 15)] + [hnext()]
        if 2 not in SN(): H += [At(poll(False), lo=cfg.pl4, tg=cfg.pl4), At(chk(4, False, f"c4{sfx}")[0], lo=cfg.h2k + ad)]
        H += [At(hload(2, q), lo=max(frx(q), int(cfg.h2k + ad + q * cfg.hc2))) for q in range(15)] + [hnext()]
        H += [At(hload(3, q), lo=max(fry(q), int(cfg.h3k + ad + q * cfg.hc3))) for q in range(15)]
        QS = [Q(rr, 0, n - 8, slack=1, prio=2, ahead=3), Q(H, 0, 0, slack=1, ahead=1, cad=cfg.hcm, prio=1)]
        oa = [f"v_lshlrev_b32 v{VOUT}, 3, v{VG}", f"v_lshl_add_u32 v{VOUT}, v{VT}, 11, v{VOUT}",
              f"v_lshlrev_b32 v{VRR+2}, 4, v2", f"v_add_u32 v{VRR+2}, 65536, v{VRR+2}", f"v_add_u32 v{VRW}, s{S2_MW}, v{VRR+2}"]
        for i in (1, 2, 3):
            oa += [[f"s_sub_u32 s4, s{S_W}, {i}", "s_and_b32 s4, s4, 3", "s_lshl_b32 s4, s4, 12", f"s_add_u32 s4, s4, {(i-1)*1024}",
                    f"v_add_u32 v{VRR+i-1}, s4, v{VRR+2}"]]
        CK = []
        GR = [[int(c, 16) for c in g] for g in cfg.grp.split(",")]
        for st in SN():
            for gi, qs in enumerate(GR):
                g0 = n + 60 * (st - 1) + 4 * qs[0]
                it = sck(st, qs, f"h{st}g{gi}{sfx}")
                k = len(it)
                CK += [At(x, lo=g0 - cfg.ckl - (k - 1 - i) // 2, tg=g0 - cfg.ckl - (k - 1 - i) // 2, dl=g0 - 1) for i, x in enumerate(it)]
        b3 = n + 120 + cfg.b3
        fx[b3] = [lambda e: (e.seen("wr2", 3), e.wait(lg_tag="wr2")), "s_barrier", stp(cfg, "d2")]
        tail = []
        for st in range(3): tail += rd(st)
        for st in range(3): tail += fin2(st)
        QS += [Q([At(x, dl=n + 9) for x in resinit(1)], n - 8, n + 8, ahead=4, prio=1), Q(CK, 0, 0, prio=4, ahead=0.5),
               Q(oa + wr(0) + resinit(2) + resinit(3), n + 10, n + 55, slack=4), Q(wr(1), n + 76, n + 84),
               Q([At((x, "wr2"), dl=b3 - 1) for x in wr(2)], n + 122, b3 - 1, prio=3), Q(tail, b3, n + 176, slack=3, ahead=3)]
        log = []
        report(cfg, "D" + sfx, pack(e, M0[4 * nq:] + mf(1, 4) + mf(2) + mf(3), QS, fx, log=log, gmin=cfg.gd), log)
        stamp(e, cfg, "mm")
        e(wr(3)); e.wait(lg=0); e("s_barrier")
        e(rd(3)); e(fin(3))
        stamp(e, cfg, "end")
        write_stamps(e, cfg, len(cfg.stamps or []), 0x1000000)
        e("s_endpgm")
        return
    H = [hload(1, q) for q in range(11, 15)] + [hnext(), At(poll(False), lo=cfg.pl4, tg=cfg.pl4), At(chk(4, False, f"c4{sfx}")[0], lo=cfg.h2k)]
    H += [At(hload(2, q), lo=frx(q)) for q in range(15)] + [hnext(), At(poll(False), lo=cfg.pl5, tg=cfg.pl5)]
    H += [At(chk(5, False, f"c5{sfx}")[0] + [stp(cfg, "spin")], lo=cfg.h3k)] + [At(hload(3, q), lo=fry(q)) for q in range(15)]
    QS = [Q(rr, 0, n - 8, slack=1, prio=2, ahead=3), Q(H, 0, 0, slack=1, ahead=1, cad=1.0, prio=1)]
    oa = [f"v_lshlrev_b32 v{VOUT}, 3, v{VG}", f"v_lshl_add_u32 v{VOUT}, v{VT}, 11, v{VOUT}",
          f"v_lshlrev_b32 v{VRR+2}, 4, v2", f"v_add_u32 v{VRR+2}, 65536, v{VRR+2}", f"v_add_u32 v{VRW}, s{S2_MW}, v{VRR+2}"]
    for i in (1, 2, 3):
        oa += [[f"s_sub_u32 s4, s{S_W}, {i}", "s_and_b32 s4, s4, 3", "s_lshl_b32 s4, s4, 12", f"s_add_u32 s4, s4, {(i-1)*1024}",
                f"v_add_u32 v{VRR+i-1}, s4, v{VRR+2}"]]
    pa, pb = pub(5, "hs3")
    QS += [Q([At(x, dl=n + 9) for x in resinit(1)], n - 8, n + 8, ahead=4, prio=1),
           Q([At(pa[0], lo=cfg.pk5), At(pb[0], lo=cfg.pk5 + 3)], 0, 0, slack=0),
           Q(oa + wr(0) + resinit(2) + resinit(3), n + 10, n + 55, slack=4), Q(wr(1), n + 76, n + 84)]
    log = []
    report(cfg, "D012" + sfx, pack(e, M0[4 * nq:] + mf(1, 4) + mf(2), QS, fx, log=log), log)
    e(wr(2)); e.wait(lg=0); e("s_barrier")
    stamp(e, cfg, "d2")
    for s in range(3): e(rd(s))
    for s in range(3): e(fin(s))
    stamp(e, cfg, "r2")
    e(mf(3))
    stamp(e, cfg, "mm")
    e(wr(3)); e.wait(lg=0); e("s_barrier")
    e(rd(3)); e(fin(3))
    stamp(e, cfg, "end")
    if cfg.stamps and "drain" in cfg.stamps:
        e.wait(vm=0); stamp(e, cfg, "drain")
    write_stamps(e, cfg, len(cfg.stamps or []), 0x1000000)
    e("s_endpgm")

def slow_paths(e, cfg, sfx):
    def clean(): e.vm = []; e.lg = []; e._raw(Ins("; ---")); e.out[-1].kind = "flush"; e.out[-1].text = ""
    dec = [f"s_sub_u32 s{S_CNT}, s{S_CNT}, 1", f"s_cselect_b32 s{S_CNT}, 0, s{S_CNT}"]
    clean()
    e(f"L_ep{sfx}:")
    e(dec); e(f"s_cbranch_scc1 L_ep{sfx}ok")
    e([epl()]); e("s_waitcnt vmcnt(0)"); e.vm = []
    e(f"v_readlane_b32 s{S_EPO}, v{VEP}, s{S_MT}"); e(f"v_readlane_b32 s{S_EPC}, v{VEP}, s5"); e("s_nop 1")
    e(f"s_min_u32 s4, s{S_EPO}, s{S_EPC}"); e("s_cmp_eq_u32 s4, 0")
    e(f"s_cbranch_scc1 L_ep{sfx}"); e(f"s_branch L_ep{sfx}ok")
    for lab, st, qs, nis, hn in SLOW:
        clean()
        e(f"L_{lab}:")
        e(dec); e(f"s_cbranch_scc1 L_{lab}ok")
        e(f"v_subrev_u32 v{VEP}, {(hn - st) * 2 * TILEB}, v{V2H}")
        e("s_waitcnt vmcnt(0)")
        for q in range(qs[0], nis):
            e(smax(st, q, True)); e(f"v_cmp_eq_u32 vcc, -1, v{VM_}"); e(f"s_cbranch_vccz L_{lab}s{q}")
            e([hload(st, q, VEP)]); e.vm = []
            e(f"L_{lab}s{q}:")
        e("s_waitcnt vmcnt(0)")
        for q in qs: e(smax(st, q, q == qs[0]))
        e(f"v_cmp_eq_u32 vcc, -1, v{VM_}"); e(f"s_cbranch_vccnz L_{lab}"); e(f"s_branch L_{lab}ok")
    SLOW.clear()
    for lab, c, own in (("st", 1, True), ("c2", 2, False), ("c3", 3, False), ("c4", 4, False), ("c5", 5, False))[:5 - len(SN())]:
        clean()
        lab += sfx
        e(f"L_{lab}:")
        e(dec); e(f"s_cbranch_scc1 L_{lab}ok")
        e([poll(own)]); e("s_waitcnt vmcnt(0)"); e.vm = []
        e(chk(c, own, lab)[0][:-1]); e(f"s_branch L_{lab}ok")

def kernel(cfg):
    e = Emitter()
    lat = {}
    for nm in cfg.stamps or []:
        if nm.startswith("la:"): t, n = nm[3:].split("/"); lat[(t, int(n))] = nm
    def hook(e, tag, n):
        if (tag, n) in lat:
            nm = lat[(tag, n)]
            stamp(e, cfg, nm); e.wait(vm_tag=tag); stamp(e, cfg, "lb" + nm[2:])
    e.hook = hook
    common(e, cfg)
    st = e.save()
    for attn in (True, False):
        sfx = "a" if attn else "f"
        if not attn:
            e("L_ffn:"); e.restore(st)
        e.nfill = len(SN()) * (1 if attn else 3)
        prologue(e, cfg, attn)
        phase_a(e, cfg, attn, sfx)
        rest = middle(e, cfg, attn, sfx)
        phase_d(e, cfg, sfx, rest)
        slow_paths(e, cfg, sfx)
    e("L_end:")
    e("s_endpgm")
    return e

def desc(name, vg, acc):
    return f""".section .rodata,"a"
.p2align 6
.amdhsa_kernel {name}
  .amdhsa_next_free_vgpr {vg}
  .amdhsa_next_free_sgpr 102
  .amdhsa_accum_offset {acc}
  .amdhsa_group_segment_fixed_size 0
  .amdhsa_kernarg_size 88
  .amdhsa_user_sgpr_count 2
  .amdhsa_user_sgpr_kernarg_segment_ptr 1
  .amdhsa_system_sgpr_workgroup_id_x 1
.end_amdhsa_kernel
"""
def head(name): return f".globl {name}\n.p2align 8\n.type {name},@function\n{name}:\n"

def main():
    ap = argparse.ArgumentParser()
    ap.add_argument("out"); ap.add_argument("--stamps", default="")
    I = dict(hcl=7, c3k=2, c3j=0, idx=0, hsk=10, xp1a=8, ntlb=5, xt=-1, xk0=100, xk1=125, ga=0, gm=0, gd=0, gov=8, fg0=0, fg1=0, ad=0, fk0=2, fk1=8, ckl=2, b3=10, krn=-1, l2x=1, cbx=0, mtx=0, pfn=8, pfw=8, pfx=0, pfk0=1, pfk1=10, swave=0, mall2=13, mallat=4, sxat=12, mallkb=2, pst=2, ldk=5, smk=6, epk=10, flk=12, pk2=50, pk3=36, hk=120, pk4=22, pk5=32, pl3=0, h1d=20, pl4=16, h2k=34, pl5=60, h3k=86,
             s15=8, lb=11, rend=3, e0=0, e1=4, eslack=6, w0=4, nq=8, rlead=2, verbose=0, l2at=9, l2wk=3, p0=10, p1=10, p2=16, c1p=6, c1k=36, wslack=6, pld=30, n1=8, h1k=176)
    for k, v in I.items(): ap.add_argument("--" + k, type=int, default=v)
    F = dict(hc1=3.0, hc2=4.0, hc3=4.0, hcm=2.0, wcad=1.0, hcad=2.0, pper=3.0, dper=3.0, ew=0.6)
    for k, v in F.items(): ap.add_argument("--" + k, type=float, default=v)
    ap.add_argument("--w2pg", default="1,2,0,3,4,1,2,0,3,4,5,6,1,2,0")
    ap.add_argument("--wa", default="2,0,1"); ap.add_argument("--we01", default="D3 D4 R2 D7")
    ap.add_argument("--wm", default="R0 D5 R1 D6 R3@30 D8 R4 D9 D10 D11 R5 D12 R6 D13 R7 D14")
    ap.add_argument("--grp", default="0123,4567,89ab,cde"); ap.add_argument("-x", default=""); ap.add_argument("--omod", default="")
    a = ap.parse_args()
    cfg = Cfg(); cfg.x = a.x.split(","); cfg.stamps = [x for x in a.stamps.split(',') if x]
    for k in list(I) + list(F) + ["omod", "we01", "wm", "grp"]: setattr(cfg, k, getattr(a, k))
    cfg.at = {"mall": a.mallat, "sx": a.sxat, "l2t": a.l2at}
    cfg.wa = [int(x) for x in a.wa.split(",") if x]
    cfg.w2pg = [int(x) for x in a.w2pg.split(",")]
    if "hsa" in cfg.x: S2_HS[:] = HSA
    XOPT.extend(cfg.x); Emitter.notes = "notes" in cfg.x
    k = kernel(cfg)
    s = "; hand-scheduled CDNA4 assembly (emitted by a macro script)\n"
    s += f"; stamps: {a.stamps} x: {a.x}\n" if a.stamps else ""
    s += f"; @launch grid=(256,1,1) block=(256,1,1) lds=163840\n"
    s += '.amdgcn_target "amdgcn-amd-amdhsa--gfx950"\n.text\n'
    s += head(NAME + "_kernel") + k.text()
    s += desc(NAME + "_kernel", 512, 256)
    open(a.out, "w").write(s)
    print("nops:", k.nops, "instrs:", len(k.out))
main()
```

```python
import sys, math, struct, argparse
sys.path.insert(0, "gen")
from asm import *

NAME = "parallel_sum__sliding_local_dilated__dense_activation_gelu__prompt"
STAGE = 32768
WOFF = 0
XOFF = 24576
HOFF = 131072
STAT = 139264
CNT = STAT + 1536
PG = {0: 147456, 1: 65536, 2: 81920, 3: 98304, 4: 114688, 5: 0, 6: 16384, 7: 32768, 8: 49152}
TILEB = 60 * 1024
FLAGOFF = 128 * TILEB
STOFF = FLAGOFF + 2048
WSEND = STOFF + 16384
H2OFF = 0x800000
BIG = 0x40000000
NEG = 0xF149F2CA
def f2u(x): return struct.unpack("<I", struct.pack("<f", x))[0]
LOG2E = 1.4426950408889634
C_SM = 0.25 * LOG2E
G0 = -2.0 * math.sqrt(2.0 / math.pi) * LOG2E
G1 = G0 * 0.044715

def vr(b, n=1): return f"v{b}" if n == 1 else f"v[{b}:{b+n-1}]"
def ar(b, n=1): return f"a{b}" if n == 1 else f"a[{b}:{b+n-1}]"
def sr(b, n=1): return f"s{b}" if n == 1 else f"s[{b}:{b+n-1}]"
def xr(b, n=1): return vr(b, n) if b < 256 else ar(b - 256, n)

S_W, S_MT, S_N = 26, 27, 3
SX, SW, SH, SB, SWA, SWB, SO, SD = 28, 32, 36, 40, 44, 48, 52, 84
SB2, SF = 12, 16
S_XR, S_B2O, S_FLP, S_FLC, S_FLO, S_ROT = 8, 9, 20, 21, 22, 23
S_TW = 82
S_TW2 = 0
S_XBASE, S_XC, S_KHD, S_KW, S_KH, S_KT = 59, 60, 61, 63, 64, 65
VWV = [[132, 133], [80, 81], [82, 83]]
S_MX, S_MW, S_MH, S_MP = 66, 67, 68, 62
S_T = 69
S_M1, S_M2, S_M3, S_MD = 70, 72, 74, 76
S_SEG = 78
S_C = 82
S_STAMP = 88
S2_RB, S2_CB, S2_MW, S2_KW = 6, 7, 10, 11
S_STP, S_STC, S_P = 56, 57, 58
S_CNT, S_EPO, S_EPC, S_MASK = 81, 24, 25, 77
S2_HS = [None] + [59, 60, 61, 62, 63, 64, 65, 66, 67, 68, 70, 71, 72, 73]
def ACC(seg, pos): return 4 + (seg * 5 + pos) * 4
def ST(i): return 64 + 4 * i
ONES = 76
VW2 = 80
VX, VXP, VH_, VW, VXA, VXS, VWA = 128, 130, 131, 132, 134, 140, 144
V2T, V2W, V2H = 146, 158, 162
VHS, VG, VT, VL4, VEP, VFL, VL24, VCN = 163, 164, 165, 166, 167, 168, 169, 170
VSA = 171
RM = 176
def RMJ(j): return RM + (8 if j == 8 else 2 * j if j < 4 else 2 * j + 2)
T0 = 194
def WF(k, seg): return 12 * k + 4 * seg
def XF(b, j): return ar(192 + 24 * b + 4 * j, 4)
def XP(k, u): return ar(192 + 8 * (k & 3) + 4 * u, 4)
SETX = [256 + 48 + 4 * i for i in range(15)]
SETY = [ST(0), ST(1), ST(2), 128, 136, ACC(0, 4), ACC(1, 4), ACC(2, 4), 132, ACC(2, 0), ACC(2, 1), ACC(0, 2), ACC(0, 3), ACC(1, 2), ACC(1, 3)]
W2R = [VW2, VW2 + 16, VW2 + 32, 256 + 240, 256 + 224] + [256 + 16 * i for i in range(3)] + [256 + 108 + 16 * i for i in range(5)] + [256 + 192, 256 + 208]
def wfree(r): return 96 + 6 * (-(-(r - 256) // 12))
def ACC2(s, i): return [ACC(0, 0), ACC(0, 1), ACC(1, 0), ACC(1, 1)][i] if s == 0 else T0 + 16 * (s - 1) + 4 * i
RESX, RESB, B2F = RM, RM + 8, VSA + 1
CMAX = 5
VOUT, VRW, VRR = 140, 141, 142
REDP = [1, 2, 3, 4]

XOPT = []
HSA = [None] + [59, 61, 63, 64, 65, 66, 67, 68, 40, 41, 42, 43, 0, 1]
class Cfg:
    stamps = False
    x = ()

def stamp(e, cfg, name):
    if cfg.stamps and name in cfg.stamps:
        i = cfg.stamps.index(name)
        e(f"{'s_memtime' if 'clk' in cfg.x else 's_memrealtime'} {sr(S_STAMP + 2 * i, 2)}")
def stp(cfg, name):
    f = lambda e: stamp(e, cfg, name)
    f.free = not (cfg.stamps and name in cfg.stamps)
    return f

def DBO(): return 64 if "dbg" in XOPT else 0

def write_stamps(e, cfg, n, off):
    if not cfg.stamps: return
    e.wait(vm=0, lg=0)
    if "cnt" in cfg.stamps:
        i = cfg.stamps.index("cnt")
        e(f"s_sub_u32 s4, 30000, s{S_CNT}"); e("s_mul_i32 s4, s4, 100")
        e(f"s_add_u32 s{S_STAMP+2*i}, s{S_STAMP+2*i-2}, s4"); e(f"s_addc_u32 s{S_STAMP+2*i+1}, s{S_STAMP+2*i-1}, 0")
    e(f"v_subrev_u32 v1, {64 * cfg.swave}, v0"); e("v_lshlrev_b32 v1, 20, v1")
    if "dbg" in cfg.x:
        e(f"s_not_b32 s4, s{S_STAMP}"); e("v_mov_b32 v2, s4")
        e(f"buffer_atomic_umax v2, v1, {sr(SD,4)}, 0 offen offset:0 sc1")
        for i in range(n):
            e(f"v_mov_b32 v{3+i}, s{S_STAMP + 2 * i}")
            e(f"buffer_atomic_umax v{3+i}, v1, {sr(SD,4)}, 0 offen offset:{4 + 4 * i} sc1")
        e("s_cmp_eq_u32 s2, 100"); e(f"s_cselect_b32 s8, 0, {BIG}")
        for i in range(n):
            e(f"buffer_store_dword v{3+i}, v1, {sr(SD,4)}, s8 offen offset:{32 + 4 * i} sc1")
        e.wait(vm=0)
        return
    e(f"s_add_u32 s4, s{SF}, {off}"); e(f"s_addc_u32 s5, s{SF+1}, 0")
    e("s_mov_b32 s6, 0x10000"); e("s_mov_b32 s7, 0x20000")
    e(f"s_mul_i32 s8, s2, {n * 8}")
    for i in range(n):
        e(f"v_mov_b32 v2, s{S_STAMP + 2 * i}"); e(f"v_mov_b32 v3, s{S_STAMP + 2 * i + 1}")
        e(f"buffer_store_dwordx2 v[2:3], v1, s[4:7], s8 offen offset:{8 * i}")
        e.wait(vm=0)

def srd(d, lo, hi, nrec):
    return [f"s_mov_b32 s{d}, s{lo}", f"s_mov_b32 s{d+1}, s{hi}", f"s_mov_b32 s{d+2}, {nrec}", f"s_mov_b32 s{d+3}, 0x20000"]

def m0set(base, c):
    return f"s_add_u32 m0, s{base}, {c}" if c >= 0 else f"s_sub_u32 m0, s{base}, {-c}"

def xadv(): return [f"s_add_u32 s{S_XC}, s{S_XC}, 128", f"s_bitset0_b32 s{S_XC}, 10"]
def W3(): return "w3" in XOPT
def dma_stage(st, attn):
    sb = (st % 4) * STAGE; tag = f"st{st}"
    stride = 3072 if attn else 2752
    X = lambda i: (f"buffer_load_dwordx4 v{VX+i}, {sr(SX,4)}, s{S_XC} offen offset:{1024*i} lds", tag)
    W = lambda seg, h: (f"buffer_load_dwordx4 v{VWV[seg][h]}, {sr(SW,4)}, s{S_KW} offen offset:{(3072 if W3() else 1024)*h} lds", tag)
    wa = [f"s_add_u32 s{S_KW}, s{S_KW}, {64 * stride}", f"s_sub_u32 s{S_KT}, s{S_KW}, {512 * stride}", f"s_min_u32 s{S_KW}, s{S_KW}, s{S_KT}"] if st else []
    xa = xadv() if st else []
    G = [
        [m0set(S_MW, sb)] + (wa or ["s_nop 0"]) + [W(0, 0)],
        [W(0, 1)],
        [m0set(S_MX, sb)] + (xa or ["s_nop 0"]) + [X(0)],
        [X(1)],
        [m0set(S_MW, sb + (1024 if W3() else 8192)), "s_nop 0", W(1, 0)],
        [W(1, 1)],
        [m0set(S_MW, sb + (2048 if W3() else 16384)), "s_nop 0", W(2, 0)],
        [W(2, 1)],
    ]
    if attn:
        G.append([m0set(S_MH, (st % 4) * 2048), f"s_add_u32 s{S_KH}, s{S_XC}, s{S_KHD}", (f"buffer_load_dword v{VH_}, {sr(SX,4)}, s{S_KH} offen lds", tag)])
    return G

def dma_pair(h):
    G = []
    for kb in range(8):
        G.append(([f"v_add_u32 v{VX}, 65536, v{VXP}"] if h and not kb else []) + [m0set(S_MP, h * 32768 + kb * 4096)] + xadv() +
                 [(f"buffer_load_dwordx4 v{VX if h else VXP}, {sr(SX,4)}, s{S_XC} offen lds", f"xp{h}")])
    return G

def w2_dma(cfg, q):
    pgn = cfg.w2pg[q]; pg = PG[pgn]
    first = []
    prev = [k for k in range(q) if cfg.w2pg[k] == pgn]
    if prev: first.append(lambda e, k=prev[-1]: (e.seen(f"w2r_{k}", 8), e.wait(lg_tag=f"w2r_{k}")))
    if q == 0: srdr, so = SWA, "0"
    else:
        srdr, so = SWB, f"s{S2_KW}"
        if "hsa" in XOPT: first += [[need("hss"), f"s_lshl_b32 s{S2_KW}, s{S2_HS[q]}, 5"]]
        else: first += [[f"s_add_u32 s{S2_KW}, s{S_ROT}, {(q - 1) * 32768}", f"s_sub_u32 s5, s{S2_KW}, {14 * 32768}",
                   f"s_min_u32 s{S2_KW}, s{S2_KW}, s5"]]
    d = lambda pc: (f"buffer_load_dwordx4 v{V2W+pc}, {sr(srdr,4)}, {so} offen offset:{1024*pc} lds", f"w2_{q}")
    if ("nod67" in cfg.x and q >= 10) or ("nod45" in cfg.x and 5 <= q < 10) or "now2" in cfg.x: d = lambda pc: ("s_nop 1", f"w2_{q}")
    m = f"s_add_u32 m0, s{S2_MW}, {pg}"
    return [first + [m, "s_nop 0", d(0)], [d(1)], [d(2)], [d(3)]]

def w2_read(cfg, q):
    pg = PG[cfg.w2pg[q]]
    L = []
    for i in range(4):
        for h in range(2):
            o = pg + h * 512
            b = o >> 16
            L.append((f"ds_read_b64_tr_b16 {xr(W2R[q]+4*i+2*h,2)}, v{V2T+4*b+i} offset:{o & 65535}", f"w2r_{q}"))
    L[0] = [stp(cfg, f"r{q}a"), lambda e: (e.seen(f"w2_{q}", 4), e.wait(vm_tag=f"w2_{q}")), stp(cfg, f"r{q}b"), L[0]]
    return L

def v2t_setup(cfg):
    a, b, c = V2T + 4, V2T + 5, V2T + 6
    L = [f"v_bfe_u32 v{a}, v2, 2, 2",
         f"v_lshl_add_u32 v{b}, v{VG}, 3, v{a}",
         f"v_bfe_u32 v{c}, v2, 1, 1",
         f"v_and_b32 v{a}, 2, v{a}", f"v_xor_b32 v{c}, v{c}, v{a}",
         f"v_and_b32 v{a}, 1, v{VG}", f"v_lshlrev_b32 v{a}, 2, v{a}", f"v_xor_b32 v{c}, v{c}, v{a}",
         f"v_and_b32 v{a}, 1, v2", f"v_lshl_add_u32 v{c}, v{c}, 1, v{a}", f"v_lshlrev_b32 v{c}, 3, v{c}",
         f"v_lshl_add_u32 v{c}, v{b}, 7, v{c}",
         f"v_add_u32 v{c}, s{S2_MW}, v{c}"]
    for i in range(4):
        L.append([f"s_add_u32 s4, s{S_W}, {i}", "s_and_b32 s4, s4, 3", "s_lshl_b32 s4, s4, 5"])
        L.append(f"v_xor_b32 v{V2T+i}, s4, v{c}")
    nb = 3 if 0 in cfg.w2pg else 2
    for bb in range(1, nb):
        for i in range(4): L.append(f"v_add_u32 v{V2T+4*bb+i}, {65536*bb}, v{V2T+i}")
    return L

def frag_reads(k, attn):
    s, ks, b = k >> 1, k & 1, k & 1
    hi = (s % 4) >> 1; sb = (s % 2) * STAGE
    def X(j): return f"ds_read_b128 {XF(b, j)}, v{VXA + 2*hi + ks} offset:{sb + XOFF + j * 2048}"
    def W(seg, h): return f"ds_read_b64_tr_b16 {ar(WF(k, seg) + 2 * h, 2)}, v{VWA + hi} offset:{sb + (seg * 128 + ks * 12288 + h * 1536 if W3() else seg * 8192 + ks * 4096 + h * 512)}"
    L = [(f"ds_read_b128 {XF(b, 5)}, v{VXS + 2*hi + ks} offset:{sb + XOFF}", f"fs{k}")]
    if attn: L.append((f"ds_read_b128 {XF(b, 4)}, v{VXA + 4 + ks} offset:{(s % 4) * 2048}", f"fs{k}"))
    L += [(x, f"fa{k}") for x in (W(0, 0), W(0, 1), X(0), W(1, 0), W(1, 1), W(2, 0), W(2, 1), X(1))]
    L += [(x, f"fb{k}") for x in (X(2), X(3))]
    return L

def mfa(first):
    return lambda d, a, bb: f"v_mfma_f32_16x16x32_bf16 {vr(d,4)}, {a}, {bb}, {'0' if first else vr(d,4)}"
def a_mfmas(k, attn):
    b = k & 1; mf = mfa(k == 0)
    M = []
    for j in ((4, 0, 1, 2, 3) if k == 15 else range(5)):
        for seg in range(3):
            w = ar(WF(k, seg), 4); x = XF(b, j) if (attn or j < 4) else vr(ONES, 4)
            M.append(mf(ACC(seg, j), x, w) if (attn and seg == 2) else mf(ACC(seg, j), w, x))
    return M
def s_mfmas(k, attn):
    b = k & 1; mf = mfa(k == 0)
    S = [mf(ST(0), vr(ONES, 4), XF(b, 5)), mf(ST(1), XF(b, 5), XF(b, 5))]
    if attn: S.append(mf(ST(2), XF(b, 4), XF(b, 4)))
    return S

def p_reads(h, k):
    kb, ks = k >> 1, k & 1
    return [(f"ds_read_b128 {XP(k, u)}, v{VXA + ks} offset:{h * 32768 + kb * 4096 + u * 2048}", f"p{h}_{k}") for u in range(2)]

def p_mfmas(h, k, attn):
    M = []
    for u in range(2):
        for seg in range(3):
            d = ACC(seg, 2 * h + u); w = ar(WF(k, seg), 4); x = XP(k, u)
            a, b = (x, w) if (attn and seg == 2) else (w, x)
            M.append(f"v_mfma_f32_16x16x32_bf16 {vr(d,4)}, {a}, {b}, {'0' if k == 0 else vr(d,4)}")
    return M

def common(e, cfg):
    stamp(e, cfg, "start")
    e("s_load_dwordx16 s[4:19], s[0:1], 0")
    e("s_load_dwordx4 s[20:23], s[0:1], 64")
    e("s_load_dwordx2 s[24:25], s[0:1], 80")
    e("s_cmp_ge_u32 s2, 256")
    e("s_cbranch_scc1 L_end")
    if cfg.idx: e(f"s_xor_b32 s2, s2, {cfg.idx}")
    e("v_lshrrev_b32 v1, 6, v0")
    e("v_and_b32 v2, 63, v0")
    e("s_lshr_b32 s70, s2, 3")
    if "code" in cfg.x:
        e("s_getpc_b64 s[84:85]")
        e("L_pc:")
        e("s_lshl_b32 s71, s70, 8")
        e("v_lshlrev_b32 v3, 6, v1"); e("v_lshl_add_u32 v3, v2, 13, v3")
        e("s_mov_b32 s86, L_end-L_pc"); e("s_mov_b32 s87, 0x20000")
        e(f"buffer_load_dword v{T0+14 if 'pf' in cfg.x else T0+12}, v3, s[84:87], s71 offen", "touch")
    e("s_and_b32 s71, s2, 1")
    e("s_lshl_b32 s71, s71, 3")
    e(f"v_readfirstlane_b32 s{S_W}, v1")
    e("s_and_b32 s72, s70, 7")
    e(f"s_add_u32 s{S_MT}, s71, s72")
    if cfg.mtx: e(f"s_xor_b32 s{S_MT}, s{S_MT}, {cfg.mtx}")
    e(f"s_and_b32 s{S_P}, s2, 6")
    e("s_bfe_u32 s74, s2, 0x10006")
    e(f"s_add_u32 s{S_P}, s{S_P}, s74")
    e("v_lshrrev_b32 v3, 3, v2")
    e(f"v_lshrrev_b32 v{VG}, 4, v2")
    e("v_and_b32 v5, 7, v2")
    e(f"v_xor_b32 v6, v{VG}, v5")
    e("v_lshlrev_b32 v6, 4, v6")
    e("v_lshl_add_u32 v6, v3, 11, v6")
    e(f"s_and_b32 s74, s{S_MT}, 1")
    e("s_lshl_b32 s74, s74, 10")
    e("v_add_u32 v6, s74, v6")
    e(f"v_lshl_add_u32 v{VX}, v1, 15, v6")
    e(f"v_xor_b32 v7, 64, v{VX}")
    e(f"v_add_u32 v{VX+1}, {16384 - 1024}, v7")
    e(f"s_lshr_b32 s75, s{S_MT}, 1")
    e("s_lshl_b32 s76, s75, 18")
    e(f"s_add_u32 s{S_XBASE}, s76, s74")
    e("s_lshr_b32 s77, s2, 6"); e("s_lshl_b32 s77, s77, 1")
    if cfg.krn < 0: e(f"s_add_u32 s77, s77, s{S_MT}")
    elif cfg.krn & 6:
        e(f"s_and_b32 s72, s{S_MT}, {(cfg.krn >> 1) & 3 if cfg.krn & 6 != 4 else 4}"); e("s_add_u32 s77, s77, s72")
    if cfg.krn < 0 or cfg.krn & 1: e("s_bfe_u32 s72, s2, 0x10001"); e("s_add_u32 s77, s77, s72")
    pass; e(f"s_and_b32 s77, s77, {0 if 'nokrot' in cfg.x else 6 if 'krot4' in cfg.x else 4 if 'krot2' in cfg.x else 7}")
    e("s_lshl_b32 s72, s77, 7"); e(f"s_add_u32 s{S_XC}, s76, s72")
    e(f"s_lshl_b32 s{S_MW}, s{S_W}, 11")
    e(f"s_add_u32 s{S_MX}, s{S_MW}, {XOFF}")
    if W3(): e(f"s_mul_i32 s{S_MW}, s{S_W}, 6144")
    e(f"s_mov_b32 s{SW+3}, 0x20000")
    if not W3(): e("v_lshl_add_u32 v8, v1, 4, v3")
    e(f"v_and_b32 v9, 1, v{VG}")
    e("v_lshlrev_b32 v9, 1, v9")
    e("v_xor_b32 v9, v9, v5")
    e("v_lshlrev_b32 v10, 4, v9")
    if not W3(): e("v_xor_b32 v9, 64, v10")
    e(f"s_mov_b32 s{SX+2}, 0x200000"); e(f"s_mov_b32 s{SX+3}, 0x20000")
    e("s_bitcmp1_b32 s2, 7")
    if "pre" in cfg.x:
        e("s_movk_i32 s78, 3072"); e("s_cmov_b32 s78, 2752")
        e("s_movk_i32 s79, 1024"); e("s_cmov_b32 s79, 128")
        e("s_movk_i32 s73, 128"); e("s_cmov_b32 s73, 384")
        e(f"s_mul_i32 s73, s{S_P}, s73")
        if W3():
            e("s_lshl_b32 s80, s78, 9"); e(f"s_sub_u32 s{SW+2}, s80, s73")
            e("s_lshl_b32 s80, s78, 6"); e(f"s_mul_i32 s{S_KW}, s77, s80")
            e("s_lshl_b32 s80, s78, 3"); e("s_sub_u32 s80, s80, 3072"); e("s_sub_u32 s79, s79, 128"); e("s_movk_i32 s81, -24")
            for c in range(3):
                n = "v2" if c == 0 else "v11"
                if c: e(f"v_add_u32 v11, {64 * c}, v2")
                e(f"v_mul_u32_u24 v8, 171, {n}"); e("v_lshrrev_b32 v8, 12, v8")
                e(f"v_mad_i32_i24 v9, v8, s81, {n}")
                e("v_and_b32 v11, 2, v8"); e("v_xor_b32 v11, v11, v9")
                e("v_lshrrev_b32 v9, 3, v9"); e("v_mul_u32_u24 v9, s79, v9"); e("v_lshl_add_u32 v9, v11, 4, v9")
                e("v_lshl_add_u32 v8, v1, 4, v8")
                e(f"v_mad_u32_u24 v{VWV[c][0]}, v8, s78, v9")
                e("v_xad_u32 v9, v9, 64, s80")
                e(f"v_mad_u32_u24 v{VWV[c][1]}, v8, s78, v9")
        else:
            e("v_mul_u32_u24 v8, s78, v8")
            e("s_lshl_b32 s80, s78, 3"); e("s_sub_u32 s80, s80, 1024")
            e(f"v_add_u32 v{VW}, v8, v10")
            e("v_add_u32 v9, s80, v9")
            e("s_lshl_b32 s80, s78, 9"); e(f"s_sub_u32 s{SW+2}, s80, s73")
            e(f"v_add_u32 v{VW+1}, v8, v9")
            e("s_lshl_b32 s80, s78, 6"); e(f"s_mul_i32 s{S_KW}, s77, s80")
            for h in range(2): e(f"v_add_u32 v{VWV[1][h]}, s79, v{VW+h}")
            for h in range(2): e(f"v_lshl_add_u32 v{VWV[2][h]}, s79, 1, v{VW+h}")
        e("s_bitcmp1_b32 s2, 7")
        stamp(e, cfg, "pk")
        e.wait(lg=0)
        e(f"s_cselect_b64 {sr(SW,2)}, s[12:13], s[6:7]")
        e(f"s_mov_b64 {sr(SX,2)}, s[4:5]")
        e(f"s_add_u32 s{SW}, s{SW}, s73"); e(f"s_addc_u32 s{SW+1}, s{SW+1}, 0")
        stamp(e, cfg, "karg")
        e(dma_stage(0, False))
        if "l2e" in cfg.x:
            e(f"s_and_b32 s80, s{S_MT}, 7"); e("v_lshl_add_u32 v12, s80, 6, v2"); e("v_mul_u32_u24 v12, s78, v12")
            e(f"s_mul_i32 s80, s{S_W}, s79"); e("s_mul_i32 s81, s79, 3"); e("s_sub_u32 s81, s81, 4"); e("s_min_u32 s80, s80, s81")
            e(f"buffer_load_dword v{T0+13}, v12, {sr(SW,4)}, s80 offen", "touch")
            if cfg.l2x:
                e("s_lshr_b32 s80, s2, 6"); e("s_lshl_b32 s80, s80, 2"); e(f"s_add_u32 s80, s80, s{S_W}"); e(f"s_lshl_b32 s80, s80, {15 - cfg.l2x}")
                e(f"s_add_u32 s80, s80, s{S_XBASE}")
                e("v_lshlrev_b32 v13, 7, v5"); e("v_lshl_add_u32 v13, v3, 11, v13")
                if cfg.l2x == 2: e("v_and_b32 v12, 32, v2"); e("v_lshl_add_u32 v13, v12, 24, v13")
                e(f"buffer_load_dword v{T0+14}, v13, {sr(SX,4)}, s80 offen", "touch")
        e("s_bitcmp1_b32 s2, 7")
    e.flush()
    e("s_cbranch_scc0 L_ffn" if "ff1" in cfg.x else "s_cbranch_scc1 L_ffn")

SXL = T0 + 16
STT = T0 + 20
LT = T0 + 26
def mall1(A, n1, n2, kb0):
    A([f"s_cmp_eq_u32 s{S_W}, 0", "s_cselect_b32 s76, s4, s6", "s_cselect_b32 s77, s5, s7", f"s_cselect_b32 s75, 64, {n1}",
       f"s_cselect_b32 s72, 0, {kb0 * 64 * 24}", "s_mov_b32 s71, 16383"])
    A([f"s_cmp_ge_u32 s{S_W}, 2", "s_cselect_b32 s76, s12, s76", "s_cselect_b32 s77, s13, s77", f"s_cselect_b32 s75, {n2}, s75",
       f"s_cselect_b32 s72, {kb0 * 64 * 43 // 2}, s72", "s_cselect_b32 s71, 11007, s71"])
    A("s_mul_i32 s78, s74, s75"); A("s_add_u32 s72, s72, s78"); A("s_sub_u32 s75, s75, 1")
    A("v_min_u32 v12, s75, v2"); A("v_add_u32 v12, s72, v12"); A("v_min_u32 v12, s71, v12"); A("v_lshlrev_b32 v12, 7, v12")
    A(("M", "mall", [(f"global_load_dword v{LT}, v12, s[76:77]", "touch")]))

def prologue(e, cfg, attn):
    stride = 3072 if attn else 2752
    pre = "pre" in cfg.x
    if not pre:
        e(f"s_mul_i32 s73, s{S_P}, {128 if attn else 384}")
        e(f"v_mul_u32_u24 v8, {stride}, v8")
        e(f"s_sub_u32 s{SW+2}, {512 * stride}, s73")
        e(f"v_add_u32 v{VW}, v8, v10")
        e(f"v_add_u32 v9, {8 * stride - 1024}, v9")
        e(f"v_add_u32 v{VW+1}, v8, v9")
        e(f"s_mul_i32 s{S_KW}, s77, {64 * stride}")
        for seg in (1, 2):
            for h in range(2): e(f"v_add_u32 v{VWV[seg][h]}, {seg * (1024 if attn else 128)}, v{VW+h}")
    if attn:
        e(f"s_mov_b32 s{S_KHD}, -16384")
        e("s_cmp_eq_u32 s75, 0")
        e(f"s_cmov_b32 s{S_KHD}, {BIG}")
        e(f"s_lshl_b32 s{S_MH}, s{S_W}, 8")
        e(f"s_add_u32 s{S_MH}, s{S_MH}, {HOFF + 1024}")
        e("v_lshrrev_b32 v8, 5, v2")
        e("v_lshl_add_u32 v8, v1, 1, v8")
        e("v_bfe_u32 v9, v2, 2, 3")
        e("v_xor_b32 v9, v9, v1")
        e("v_xor_b32 v9, 4, v9")
        e("v_and_b32 v11, 3, v2")
        e("v_lshl_add_u32 v9, v9, 2, v11")
        e("v_lshlrev_b32 v9, 2, v9")
        e(f"v_lshl_add_u32 v{VH_}, v8, 11, v9")
        e(f"v_add_u32 v{VH_}, s74, v{VH_}")
        e(f"s_mov_b32 s{S_N}, s{S_P}")
    else:
        e(f"s_add_u32 s{S_N}, s{S_P}, 8")
    if not pre:
        e.wait(lg=0)
        e(f"s_mov_b32 s{SX}, s4"); e(f"s_mov_b32 s{SX+1}, s5")
        w0 = 6 if attn else 12
        e(f"s_add_u32 s{SW}, s{w0}, s73"); e(f"s_addc_u32 s{SW+1}, s{w0+1}, 0")
        stamp(e, cfg, "karg")
    stamp(e, cfg, "br")
    L = []
    A = L.append
    if "mall" in cfg.x:
        kb0 = cfg.mallkb
        n1 = (8 - kb0) * 64 * 24 // 256; n2 = -(-((8 - kb0) * 64 * 43 // 2) // 256)
        A("s_and_b32 s74, s2, 1"); A("s_lshl_b32 s74, s74, 7"); A("s_bfe_u32 s75, s2, 0x20001"); A("s_lshl_b32 s75, s75, 5")
        A("s_add_u32 s74, s74, s75"); A("s_add_u32 s74, s74, s70")
        if "mall1" in cfg.x: mall1(A, n1, n2, kb0)
        if "c31" in cfg.x:
            A([f"s_cmp_eq_u32 s{S_W}, 0", "s_cselect_b32 s78, s4, s6", "s_cselect_b32 s79, s5, s7", "s_cselect_b32 s75, 8, 6", "s_mov_b32 s71, 2047"])
            A([f"s_cmp_ge_u32 s{S_W}, 2", "s_cselect_b32 s78, s12, s78", "s_cselect_b32 s79, s13, s79", "s_cselect_b32 s71, 1375, s71"])
            A("s_mul_i32 s72, s74, s75"); A("s_sub_u32 s75, s75, 1")
            A("v_min_u32 v12, s75, v2"); A("v_add_u32 v12, s72, v12"); A("v_min_u32 v12, s71, v12"); A(f"v_lshlrev_b32 v{T0+14}, 10, v12")
            A([(f"global_load_dword v{T0+14}, v{T0+14}, s[78:79] offset:384", "touch")])
        A([f"s_cmp_eq_u32 s{S_W}, 3", f"s_cselect_b32 s{S_TW}, s16, s8", f"s_cselect_b32 s{S_TW+1}, s17, s9", "s_cselect_b32 s75, 43, 16"])
        A("s_mul_i32 s72, s74, s75"); A("s_sub_u32 s75, s75, 1")
        A("v_min_u32 v12, s75, v2"); A(f"v_add_lshl_u32 v{LT+1}, v12, s72, 7")
    if "c3t" in cfg.x and attn:
        A(["s_and_b32 s74, s70, 7", "s_sub_u32 s75, s74, 2", "s_cmp_lt_u32 s74, 2", f"s_cselect_b32 s{SB}, s8, s16", f"s_cselect_b32 s{SB+1}, s9, s17",
           "s_cselect_b32 s74, s74, s75", f"s_mov_b32 s{SB+2}, {1376 * 1024}", f"s_cmov_b32 s{SB+2}, {512 * 1024}"])
        A(["s_bitcmp1_b32 s2, 6", f"s_cmov_b32 s{SB+2}, 0"] if cfg.c3j == 0 else ["s_bitcmp0_b32 s2, 6", f"s_cmov_b32 s{SB+2}, 0"])
        A(f"s_mov_b32 s{SB+3}, 0x20000")
        A("s_lshl_b32 s74, s74, 18"); A("s_add_u32 s74, s74, 384")
        A(f"v_lshl_add_u32 v{T0+13}, v0, 10, s74")
        if cfg.c3k < 0: A(("M", "c3t", [c3t()]))
    if "l2t" in cfg.x:
        A(f"s_and_b32 s74, s{S_MT}, 7"); A("v_lshl_add_u32 v12, s74, 6, v2"); A(f"v_mul_u32_u24 v12, {stride}, v12")
        if attn: A(f"s_lshl_b32 s75, s{S_W}, 10")
        else: A(f"s_lshl_b32 s75, s{S_W}, 7"); A("s_min_u32 s75, s75, 380")
        A("s_lshr_b32 s74, s2, 6"); A("s_lshl_b32 s74, s74, 2"); A(f"s_add_u32 s74, s74, s{S_W}"); A("s_lshl_b32 s74, s74, 14")
        A(f"s_add_u32 s74, s74, s{S_XBASE}")
        A("v_lshlrev_b32 v13, 7, v5"); A("v_lshl_add_u32 v13, v3, 11, v13")
        A(("M", "l2t", [(f"buffer_load_dword v{T0+13}, v12, {sr(SW,4)}, s75 offen", "touch"),
                        (f"buffer_load_dword v{T0+14}, v13, {sr(SX,4)}, s74 offen", "touch")]))
    if "pf" in cfg.x:
        A("s_lshl_b32 s74, s70, 2"); A(f"s_add_u32 s74, s74, s{S_W}"); A("s_lshl_b32 s74, s74, 14")
        A(f"s_sub_u32 s75, s74, {512 * 1024}")
        A(["s_cmp_lt_u32 s70, 8", f"s_cselect_b32 s{S_TW}, s8, s16", f"s_cselect_b32 s{S_TW+1}, s9, s17", "s_cselect_b32 s74, s74, s75",
           f"s_mov_b32 s{S_TW2}, {1376 * 1024}", f"s_cmov_b32 s{S_TW2}, {512 * 1024}"])
        A(f"s_min_u32 s74, s74, s{S_TW2}")
        A([f"s_add_u32 s{S_TW}, s{S_TW}, s74", f"s_addc_u32 s{S_TW+1}, s{S_TW+1}, 0"])
        A(f"s_sub_u32 s{S_TW2}, s{S_TW2}, s74")
        A(f"v_lshlrev_b32 v{VPF}, 7, v2")
        if cfg.pfn > 2:
            A(f"v_and_b32 v12, {64 - 128 // cfg.pfn}, v2"); A(f"v_lshl_add_u32 v{VPF}, v12, 24, v{VPF}")
        A("s_lshr_b32 s74, s2, 6"); A("s_lshl_b32 s74, s74, 2"); A(f"s_add_u32 s74, s74, s{S_W}"); A("s_lshl_b32 s74, s74, 13")
        A(f"s_add_u32 s74, s74, s{S_XBASE}"); A(f"s_add_u32 s{S_TW2+1}, s74, {64 * 2048}")
        A(f"v_lshlrev_b32 v{VPF+1}, 7, v5"); A(f"v_lshl_add_u32 v{VPF+1}, v3, 11, v{VPF+1}")
        A("v_and_b32 v12, 32, v2"); A(f"v_lshl_add_u32 v{VPF+1}, v12, 24, v{VPF+1}")
    if "rbx" in cfg.x or "rbs" in cfg.x:
        A("s_bfe_u32 s4, s2, 0x20001"); A("s_lshl_b32 s4, s4, 2"); A("s_and_b32 s5, s2, 1")
        if "rbx" in cfg.x: A("s_xor_b32 s5, s5, 1")
        A("s_lshl_b32 s5, s5, 4"); A("s_add_u32 s4, s4, s5"); A("s_and_b32 s5, s70, 3")
    else:
        A("s_and_b32 s4, s2, 7"); A("s_lshl_b32 s4, s4, 2"); A("s_and_b32 s5, s70, 3")
    A(f"s_add_u32 s{S2_RB}, s4, s5")
    A(f"s_lshr_b32 s{S2_CB}, s70, 2")
    if cfg.cbx: A(f"s_xor_b32 s{S2_CB}, s{S2_CB}, {cfg.cbx}")
    A(f"s_lshl_b32 s72, s{S2_CB}, 7")
    if "l2w" in cfg.x:
        A(f"s_lshl_b32 s74, s5, 1"); A(f"s_add_u32 s74, s74, s{S_W}"); A("s_lshl_b32 s74, s74, 6")
        A("s_mul_i32 s75, s5, 344"); A(f"s_mul_i32 s76, s{S_W}, 58"); A("s_add_u32 s75, s75, s76"); A("s_sub_u32 s76, s75, 116")
        A([f"s_cmp_lt_u32 s{S_W}, 2", f"s_cselect_b32 s{S_TW}, s8, s16", f"s_cselect_b32 s{S_TW+1}, s9, s17", "s_cselect_b32 s74, s74, s76",
           "s_cselect_b32 s76, 63, 57"])
        A("v_min_u32 v12, s76, v2"); A("v_add_u32 v12, s74, v12"); A(f"v_lshl_add_u32 v{LT+1}, v12, 10, s72")
        A("v_min_u32 v12, 57, v2"); A("v_add_u32 v12, s75, v12"); A("v_add_u32 v12, 116, v12"); A("v_min_u32 v12, 1375, v12")
        A(f"v_lshl_add_u32 v{VFL}, v12, 10, s72")
        A(f"s_mov_b32 s{S_TW2}, s16"); A(f"s_mov_b32 s{S_TW2+1}, s17")
    A(f"s_mul_i32 s12, s{S_W}, {15 * 32768}")
    A("s_add_u32 s12, s12, s72")
    A(f"s_sub_u32 s13, s12, {16 * 32768}")
    A([f"s_cmp_lt_u32 s{S_W}, 2", f"s_cselect_b32 s{SWA}, s8, s16", f"s_cselect_b32 s{SWA+1}, s9, s17",
       "s_cselect_b32 s75, s12, s13", f"s_mov_b32 s76, {1376 * 1024}", f"s_cmov_b32 s76, {512 * 1024}"])
    A([f"s_add_u32 s{SWA}, s{SWA}, s75", f"s_addc_u32 s{SWA+1}, s{SWA+1}, 0"])
    A(f"s_sub_u32 s{SWA+2}, s76, s75"); A(f"s_mov_b32 s{SWA+3}, 0x20000")
    A("s_add_u32 s12, s12, 32768"); A("s_add_u32 s13, s13, 32768")
    A([f"s_cmp_lt_u32 s{S_W}, 1", f"s_cselect_b32 s{SWB}, s8, s16", f"s_cselect_b32 s{SWB+1}, s9, s17",
       "s_cselect_b32 s75, s12, s13", f"s_mov_b32 s76, {1376 * 1024}", f"s_cmov_b32 s76, {512 * 1024}"])
    A([f"s_add_u32 s{SWB}, s{SWB}, s75", f"s_addc_u32 s{SWB+1}, s{SWB+1}, 0"])
    A(f"s_sub_u32 s{SWB+2}, s76, s75"); A(f"s_mov_b32 s{SWB+3}, 0x20000")
    if not attn:
        for x in srd(SB, 14, 15, 2752): A(x)
    for x in srd(SB2, 18, 19, 1024): A(x)
    for x in srd(SF, 24, 25, H2OFF + FLAGOFF + 1024 if "hc3" in cfg.x else WSEND): A(x)
    for x in srd(SD, 22, 23, 256): A(x)
    A(f"v_and_b32 v{VT}, 15, v2")
    A(f"v_lshlrev_b32 v{VL4}, 2, v{VT}")
    A(f"s_lshl_b32 s74, s{S_MT}, 7"); A(f"s_add_u32 s{S_FLO}, s74, {FLAGOFF}")
    A(f"s_lshl_b32 s75, s{S_W}, 5"); A(f"s_add_u32 s{S_B2O}, s72, s75")
    A(f"s_lshr_b32 s74, s{S2_RB}, 2"); A("s_lshl_b32 s74, s74, 18")
    A(f"s_bfe_u32 s75, s{S2_RB}, 0x10001"); A("s_lshl_b32 s75, s75, 10"); A("s_add_u32 s74, s74, s75")
    A(f"s_and_b32 s75, s{S2_RB}, 1"); A("s_lshl_b32 s75, s75, 15")
    A("s_add_u32 s74, s74, s75")
    A(f"s_add_u32 s{S_XR}, s74, s{S_B2O}")
    A([f"s_add_u32 s{SO}, s20, s{S_XR}", f"s_addc_u32 s{SO+1}, s21, 0"])
    A(f"s_sub_u32 s{SO+2}, 0x200000, s{S_XR}"); A(f"s_mov_b32 s{SO+3}, 0x20000")
    A(f"s_lshl_b32 s74, s{S_N}, 2"); A(f"s_add_u32 s75, s74, s{S_W}"); A("s_lshl_b32 s76, s75, 11")
    A(f"s_add_u32 s76, s76, s{S_XBASE}"); A(f"s_add_u32 s{S_T}, s76, {64 * 2048}")
    A("v_lshlrev_b32 v20, 4, v2")
    A(("M", "sx", [(f"buffer_load_dword v{LT+2}, v{VL4}, {sr(SF,4)}, s{S_FLO} offen sc1", "stale"),
                   (f"buffer_load_dwordx4 {vr(SXL,4)}, v20, {sr(SX,4)}, s{S_T} offen", "sx")] + ([epl()] if "dw" in cfg.x else [])))
    A(f"s_add_u32 s{S_FLP}, s{S_FLO}, s74")
    A(f"s_lshl_b32 s{S_STC}, s{S_MT}, 10"); A(f"s_add_u32 s{S_STC}, s{S_STC}, {STOFF}")
    A("s_lshl_b32 s75, s75, 2"); A(f"s_add_u32 s{S_STP}, s{S_STC}, s75")
    A(f"s_lshr_b32 s75, s{S2_RB}, 1"); A(f"s_lshl_b32 s{S_FLC}, s75, 7"); A(f"s_add_u32 s{S_FLC}, s{S_FLC}, {FLAGOFF}")
    A(f"s_lshl_b32 s{S2_MW}, s{S_W}, 12")
    A(f"s_lshl_b32 s{S_MP}, s{S_W}, 10")
    A(f"s_mov_b32 s{S_CNT}, 30000")
    if "rot2" in cfg.x:
        A(f"s_and_b32 s74, s{S2_RB}, 3"); A("s_lshl_b32 s74, s74, 1"); A(f"s_add_u32 s74, s74, s{S2_CB}")
        A(f"s_mul_i32 s{S_ROT}, s74, 7"); A(f"s_lshr_b32 s{S_ROT}, s{S_ROT}, 2")
        A(f"s_sub_u32 s74, s{S_ROT}, 14"); A(f"s_min_u32 s{S_ROT}, s{S_ROT}, s74")
    else:
        A(f"s_and_b32 s74, s{S2_RB}, 3"); A("s_lshl_b32 s74, s74, 1"); A(f"s_add_u32 s74, s74, s{S2_CB}"); A("s_lshl_b32 s74, s74, 2")
        A("s_and_b32 s75, s2, 7"); A("s_add_u32 s74, s74, s75"); A("s_and_b32 s74, s74, 31")
        A("s_mul_i32 s74, s74, 7"); A(f"s_lshr_b32 s{S_ROT}, s74, 4")
    A(f"s_lshl_b32 s{S_ROT}, s{S_ROT}, 15")
    if "norot" in cfg.x: A(f"s_mov_b32 s{S_ROT}, 0")
    A("v_and_b32 v12, 1, v1"); A("v_lshlrev_b32 v12, 6, v12"); A("v_xor_b32 v12, v12, v6")
    A("v_lshl_add_u32 v12, v1, 14, v12"); A(f"v_add_u32 v{VXP}, {64 * 2048}, v12")
    A(f"v_lshl_add_u32 v{V2W}, v3, 10, v10")
    A(f"v_xor_b32 v12, 64, v{V2W}")
    A(f"v_add_u32 v{V2W+1}, 7168, v12"); A(f"v_add_u32 v{V2W+2}, {2*7168}, v{V2W}"); A(f"v_add_u32 v{V2W+3}, {3*7168}, v12")
    A(f"s_mul_i32 s75, s{S_MT}, {8 * TILEB}")
    A(f"s_mul_i32 s76, s{S_P}, {2048 if attn else 6144}")
    A("s_add_u32 s74, s75, s76")
    if not attn: A("s_add_u32 s74, s74, 16384")
    A([f"s_add_u32 s{SH}, s24, s74", f"s_addc_u32 s{SH+1}, s25, 0"])
    A(f"s_mov_b32 s{SH+2}, {8 * TILEB + (H2OFF + 1024 if 'hc3' in cfg.x else 0)}"); A(f"s_mov_b32 s{SH+3}, 0x20000")
    for i in range(4): A(f"v_mov_b32 v{ONES+i}, 0x3f803f80")
    A("v_lshlrev_b32 v8, 2, v0")
    A(f"v_add_u32 v8, {HOFF}, v8")
    if attn:
        for i in range(4): A(f"ds_write_b32 v8, v{ONES} offset:{2048 * i}")
    A("v_mov_b32 v9, 0")
    A(f"ds_write_b32 v8, v9 offset:{CNT - HOFF}")
    A("v_bfe_u32 v12, v2, 1, 3")
    A(f"v_xor_b32 v12, v12, v{VG}")
    A("v_lshlrev_b32 v12, 4, v12")
    A(f"v_lshl_add_u32 v{VXA}, v{VT}, 7, v12")
    A(f"v_xor_b32 v{VXA+1}, 64, v{VXA}")
    A(f"v_add_u32 v{VXA+2}, 0x10000, v{VXA}")
    A(f"v_add_u32 v{VXA+3}, 0x10000, v{VXA+1}")
    if attn:
        A(f"v_add_u32 v{VXA+4}, {HOFF}, v{VXA}"); A(f"v_add_u32 v{VXA+5}, {HOFF}, v{VXA+1}")
    for i in range(4): A(f"v_lshl_add_u32 v{VXS+i}, v1, 11, v{VXA+i}")
    A("v_bfe_u32 v15, v2, 2, 2")
    A(f"v_lshl_add_u32 v12, v{VG}, 3, v15")
    A("v_bfe_u32 v13, v2, 1, 1")
    A("v_lshl_add_u32 v13, v1, 1, v13")
    A("v_and_b32 v14, 2, v15")
    A("v_xor_b32 v13, v13, v14")
    A(f"v_and_b32 v14, 1, v{VG}")
    A("v_lshlrev_b32 v14, 2, v14")
    A("v_xor_b32 v13, v13, v14")
    A("v_and_b32 v14, 1, v2")
    A("v_lshl_add_u32 v13, v13, 1, v14")
    A("v_lshlrev_b32 v13, 3, v13")
    if W3(): A("v_mul_u32_u24 v12, 3, v12")
    A("v_lshl_add_u32 v13, v12, 7, v13")
    A(f"v_add_u32 v{VWA}, {WOFF}, v13")
    A(f"v_add_u32 v{VWA+1}, {WOFF + 0x10000}, v13")
    A(f"v_and_b32 v16, 1, v{VG}")
    A(f"v_mul_u32_u24 v16, {TILEB}, v16")
    A("v_and_b32 v12, 1, v1")
    A("v_lshlrev_b32 v12, 1, v12")
    A(f"v_lshrrev_b32 v13, 1, v{VG}")
    A("v_add_u32 v12, v12, v13")
    A("v_lshl_add_u32 v16, v12, 8, v16")
    A(f"v_lshl_add_u32 v16, v{VT}, 4, v16")
    A("v_lshrrev_b32 v12, 1, v1")
    A(f"v_lshl_add_u32 v{VHS}, v12, 10, v16")
    def away(d, c):
        A(f"v_xor_b32 v12, 3, v{c}"); A("v_min_u32 v12, 1, v12"); A("v_xor_b32 v12, 1, v12")
        A(f"v_mul_u32_u24 v12, {H2OFF + 128 * cfg.hcl - 384}, v12"); A(f"v_add_u32 v{d}, v{d}, v12")
    if "hc3" in cfg.x: A(f"v_bfe_u32 v13, v{VHS}, 7, 3"); away(VHS, 13)
    A(f"v_lshlrev_b32 v{VL24}, 24, v2")
    A(f"v_mov_b32 v{VCN}, {CNT}")
    A(f"s_lshr_b32 s75, s{S2_RB}, 1"); A("s_lshl_b32 s75, s75, 3"); A(f"s_and_b32 s76, s{S2_RB}, 1"); A("s_add_u32 s75, s75, s76")
    A(f"s_mul_i32 s75, s75, {TILEB}"); A(f"s_mul_i32 s76, s{S_W}, {15 * 1024}"); A("s_add_u32 s75, s75, s76")
    A("v_lshlrev_b32 v12, 4, v2"); A(f"v_add_u32 v{V2H}, s75, v12")
    if "hc3" in cfg.x: away(V2H, 3)
    if "tlb" in cfg.x:
        A(f"v_lshlrev_b32 v{T0+13}, 16, v2"); A(f"v_and_b32 v{T0+14}, 0x70000, v{T0+13}"); A(f"v_add_u32 v{T0+14}, s75, v{T0+14}")
        A(f"v_and_b32 v{T0+15}, 0x30000, v{T0+13}")
        A(("M", "tlb", [(f"buffer_load_dword v{T0+12}, v{T0+13}, {sr(SWA,4)}, 0 offen", "touch"), (f"buffer_load_dword v{T0+12}, v{T0+13}, {sr(SWB,4)}, 0 offen", "touch"),
                        (f"buffer_load_dword v{T0+12}, v{T0+13}, {sr(SH,4)}, 0 offen sc1", "touch"), (f"buffer_load_dword v{T0+12}, v{T0+14}, {sr(SF,4)}, 0 offen sc1", "touch"),
                        (f"buffer_load_dword v{T0+12}, v{T0+15}, {sr(SO,4)}, 0 offen sc1", "touch")][:cfg.ntlb]))
    L += v2t_setup(cfg)
    L += attn_pre() if attn else ffn_pre()
    A("v_and_b32 v11, 3, v2"); A("v_bfe_u32 v15, v2, 2, 2")
    A(f"v_cmp_eq_u32 {sr(S_M1,2)}, 1, v11")
    A(f"v_cmp_eq_u32 {sr(S_M2,2)}, 2, v11")
    A(f"v_cmp_eq_u32 {sr(S_M3,2)}, 3, v11")
    A(f"v_cmp_eq_u32 {sr(S_MD,2)}, v15, v{VG}")
    A(f"v_lshl_add_u32 v12, v1, 4, v{VT}")
    A(f"v_lshlrev_b32 v13, 3, v12")
    A(f"v_add_u32 v13, {STAT}, v13")
    A(f"v_lshlrev_b32 v14, 2, v12")
    A(f"v_add_u32 v14, {STAT + 640}, v14")
    A(f"v_lshlrev_b32 v{VSA+4}, 3, v{VT}")
    A(f"v_add_u32 v15, {STAT + 512}, v{VSA+4}")
    A(f"v_add_u32 v16, {STAT + 640 + 256}, v{VL4}")
    A(f"v_mov_b32 v17, {STAT + 1280}")
    for i in range(4): A(f"v_cndmask_b32 v{VSA+i}, v17, v{13+i}, {sr(S_MD,2)}")
    A(f"v_add_u32 v{VSA+4}, {STAT}, v{VSA+4}")
    D = []
    for s in range(cfg.pst): D += dma_stage(s, attn)
    for nm in cfg.stamps or []:
        if nm[0] == "p" and nm[1:].isdigit(): D[int(nm[1:])] = D[int(nm[1:])] + [stp(cfg, nm)]
    X = [x[2] for x in L if isinstance(x, tuple) and x[0] == "M"]
    L = [x for x in L if not (isinstance(x, tuple) and x[0] == "M")]
    e(D[8 if pre else 0:cfg.p0]); e(weave(D[cfg.p0:cfg.p1], L, start=0, per=cfg.pper)); stamp(e, cfg, "set")
    e(D[cfg.p1:cfg.p2]); e(X); e(D[cfg.p2:])
    if "pf" in cfg.x:
        e(pf_srd())
        if cfg.pfx < 0: e([pf_x()])
    stamp(e, cfg, "pro")

def c3t(): return (f"buffer_load_dword v{T0+13}, v{T0+13}, {sr(SB,4)}, 0 offen", "touch")
VPF = T0 + 12
def pf_srd(): return [f"s_mov_b32 s{SB}, s{S_TW}", f"s_mov_b32 s{SB+1}, s{S_TW+1}", f"s_mov_b32 s{SB+2}, s{S_TW2}", f"s_mov_b32 s{SB+3}, 0x20000"]
def pf_w(cfg, t): return [f"s_mov_b32 s{S_TW}, {t * 16384 // cfg.pfn}", (f"buffer_load_dword a255, v{VPF}, {sr(SB,4)}, s{S_TW} offen", "touch")]
def pf_x(): return (f"buffer_load_dword a255, v{VPF+1}, {sr(SX,4)}, s{S_TW2+1} offen", "touch")
def l2w_loads():
    return [(f"global_load_dword v{T0+12}, v{LT+1}, {sr(S_TW,2)}", "touch"), (f"global_load_dword v{T0+15}, v{VFL}, {sr(S_TW2,2)}", "touch")]

def leader():
    a = LT + 2
    L = [f"v_lshrrev_b32 v{a}, 3, v{a}", f"v_lshlrev_b32 v{a}, v{a}, 1"]
    for r in (8, 4, 2, 1): L.append(f"v_or_b32_dpp v{a}, v{a}, v{a} row_ror:{r} row_mask:0xf bank_mask:0xf")
    L += [f"v_lshlrev_b32 v{LT+3}, 24, v0", f"v_readfirstlane_b32 s4, v{a}", f"s_lshl_b32 s5, s{S_MT}, 2",
          "s_ff0_i32_b32 s4, s4", "s_or_b32 s4, s4, 32", "s_lshl_b32 s4, s4, 3", f"v_mov_b32 v{a}, s4",
          [f"s_cmp_lg_u32 s{S_N}, 0", f"s_cmov_b32 s5, {BIG}"],
          (f"buffer_store_dword v{a}, v{LT+3}, {sr(SD,4)}, s5 offen offset:{DBO()} sc1", "ep")]
    return L

def fin_stats(m, q):
    return [f"v_fma_f32 v{q}, -v{m}, v{m}, v{q}", f"v_max_f32 v{q}, 0, v{q}",
            f"v_cvt_pk_bf16_f32 v{q}, v{m}, v{q}",
            f"v_lshlrev_b32 v{m}, 16, v{q}", f"v_and_b32 v{q}, 0xffff0000, v{q}",
            f"v_add_f32 v{q}, 0x{f2u(1e-5):x}, v{q}", f"v_cvt_pk_bf16_f32 v{q}, v{q}, v{q}", f"v_and_b32 v{q}, 0xffff0000, v{q}",
            f"v_sqrt_f32 v{q}, v{q}", f"v_cvt_pk_bf16_f32 v{q}, v{q}, v{q}", f"v_and_b32 v{q}, 0xffff0000, v{q}",
            f"v_rcp_f32 v{q}, v{q}", f"v_mul_f32 v{m}, -v{m}, v{q}"]

def stats_make():
    q0, s0, t = STT, STT + 1, STT + 2
    L = []
    for i in range(4):
        c = lambda d: "0" if i == 0 else f"v{d}"
        L += [f"v_dot2_f32_bf16 v{s0}, v{SXL+i}, v{ONES}, {c(s0)}", f"v_dot2_f32_bf16 v{q0}, v{SXL+i}, v{SXL+i}, {c(q0)}"]
    L += [f"v_permlane32_swap_b32 v{s0}, v{q0}", f"v_add_f32 v{s0}, v{s0}, v{q0}", f"v_mov_b32 v{q0}, v{s0}",
          f"v_permlane16_swap_b32 v{s0}, v{q0}", f"v_add_f32 v{s0}, v{s0}, v{q0}"]
    for r in (8, 4, 2, 1): L.append(f"v_add_f32_dpp v{s0}, v{s0}, v{s0} row_ror:{r} row_mask:0xf bank_mask:0xf")
    inv = f2u(1.0 / 512)
    L += [f"v_mul_f32 v{s0}, 0x{inv:x}, v{s0}", f"v_mov_b32 v{q0}, v{s0}",
          f"v_permlane32_swap_b32 v{s0}, v{q0}"]
    L += fin_stats(s0, q0)
    L += [[f"s_lshl_b32 s4, s{S_STP}, 1", f"s_sub_u32 s4, s4, s{S_STC}"],
          (f"buffer_store_dwordx2 {vr(q0,2)}, v{VL24}, {sr(SF,4)}, s4 offen sc1", "pub1"),
          (f"buffer_store_dword v{q0}, v{VL24}, {sr(SF,4)}, s{S_STP} offen offset:512 sc1", "pub1"),
          (f"buffer_store_dword v{s0}, v{VL24}, {sr(SF,4)}, s{S_STP} offen offset:768 sc1", "pub1")]
    return L

def stats_side(attn):
    L = []
    t = T0 + 16
    n = 2 if attn else 1
    for i, sq in enumerate((1, 2)[:n]):
        d = t + 2 * i
        L.append(f"v_cndmask_b32 v{d}, v{ST(sq)}, v{ST(sq)+1}, {sr(S_M1,2)}")
        L.append(f"v_cndmask_b32 v{d}, v{d}, v{ST(sq)+2}, {sr(S_M2,2)}")
        L.append(f"v_cndmask_b32 v{d}, v{d}, v{ST(sq)+3}, {sr(S_M3,2)}")
    if attn: L.append(f"v_permlane32_swap_b32 v{ST(2)}, v{ST(2)+1}")
    sums = (ST(0), ST(2))
    inv = f2u(1.0 / 512)
    for i in range(n): L.append(f"v_mul_f32 v{t+2*i+1}, 0x{inv:x}, v{sums[i]}")
    for i in range(n): L.append(f"v_mul_f32 v{t+2*i}, 0x{inv:x}, v{t+2*i}")
    F = [fin_stats(t + 2 * i + 1, t + 2 * i) for i in range(n)]
    for x in zip(*F): L += list(x)
    L.append(f"ds_write_b64 v{VSA}, {vr(t,2)}")
    if attn:
        L.append(f"ds_write_b64 v{VSA+2}, {vr(t+2,2)}")
        L.append(f"ds_write2_b32 v{VSA+1}, v{t}, v{t+1} offset0:0 offset1:80")
        L.append(f"ds_write2_b32 v{VSA+3}, v{t+2}, v{t+3} offset0:0 offset1:80")
    return L

SENT = T0
def SNT(): return "snt" in XOPT
def SN(): return () if not SNT() else (3,) if "f3" in XOPT else (2, 3) if "f23" in XOPT else (1, 2, 3)
def fills(attn, SENT=SENT):
    L = [f"v_mov_b32 v{SENT+i}, -1" for i in range(4)]
    for jp in SN():
        for seg in range(1 if attn else 3):
            L.append([f"s_add_u32 s{S_T}, s{S_SEG+seg}, {jp * 2 * TILEB}",
                      (f"buffer_store_dwordx4 {vr(SENT,4)}, v{VHS}, {sr(SH,4)}, s{S_T} offen {'' if 'fpl' in XOPT else 'sc1'}", "fill")])
    return L
def clamp(Q, jp): return [f"v_min_u32 v{Q}, -2, v{Q}", f"v_min_u32 v{Q+2}, -2, v{Q+2}"] if jp in SN() else []
def nofill(e): assert not any(x[1] == "fill" for x in e.vm), "fill still open"
nofill.free = True
def hstore(quad, seg, jp):
    if f"nost{jp}" in XOPT: return ["s_nop 1"]
    return ([nofill] if jp in SN() else []) + [f"s_add_u32 s{S_T}, s{S_SEG+seg}, {jp * 2 * TILEB}",
            (f"buffer_store_dwordx4 {vr(quad,4)}, v{VHS}, {sr(SH,4)}, s{S_T} offen sc1", f"hs{jp}")]

def epl(): return (f"buffer_load_dword v{VEP}, v{VL4}, {sr(SD,4)}, 0 offen offset:{DBO()} sc1", "epl")
def poll(own): return (f"buffer_load_dword v{VFL}, v{VL4}, {sr(SF,4)}, s{S_FLO if own else S_FLC} offen sc1", "poll")

def pub(c, tag):
    def done(e):
        if SNT() and c == min(SN()) + 1:
            assert e.tags.get("fill", 0) == e.nfill, (e.tags.get("fill", 0), e.nfill)
            nofill(e)
    done.free = True
    a = [[lambda e: e.wait(vm_tag=tag), done, "s_mov_b64 exec, 1", f"ds_add_rtn_u32 v3, v{VCN}, v{VCN} offset:{4*c}", "s_mov_b64 exec, -1"]]
    b = [[f"s_add_u32 s5, s{S_EPO}, {c}", f"v_readfirstlane_b32 s4, v3", f"v_mov_b32 v3, s5", f"s_cmp_eq_u32 s4, {3 * CNT}", f"s_cselect_b32 s4, s{S_FLP}, {BIG}",
          (f"buffer_store_dword v3, v{VL24}, {sr(SF,4)}, s4 offen sc1", "flag")]]
    return a, b

def chk(c, own, lab):
    return [[mark2(f"chk{c}"), f"s_add_u32 s4, s{S_EPO if own else S_EPC}, {c}", f"v_subrev_u32 v1, s4, v{VFL}", f"v_cmp_lt_u32 vcc, {CMAX - c}, v1", "s_nop 0",
             f"s_and_b32 s4, vcc_lo, " + ("0xffff" if own else f"s{S_MASK}"), ("s_nop 0" if ("nochk" in XOPT and not own) else f"s_cbranch_scc1 L_{lab}"), f"L_{lab}ok:"]]

def mark2(tag):
    f = lambda e: e.tags.__setitem__(tag, 1)
    f.free = True
    return f

def cnt(x):
    if isinstance(x, list): return sum(cnt(y) for y in x)
    if callable(x): return 0.5
    if isinstance(x, tuple): x = x[0]
    return 3 if x.startswith(("buffer_", "global_")) else 1

def kstep(e, M, reads=(), side=(), bar=None, sstart=0):
    n = len(M)
    slots = [[] for _ in range(n)]
    i0 = 0
    if bar: slots[1] += bar; i0 = 1
    for i, r in enumerate(reads): slots[min(i0 + i, n - 1)].append(r)
    tot = sum(cnt(x) for x in side)
    cap = [(1.0 if (i0 <= i < i0 + len(reads)) else 2.0) if ((i > i0 or not bar) and i >= sstart) else 0 for i in range(n)]
    sc = tot / sum(cap) if tot else 0
    acc = 0.0; lim = 0.0; i = 0
    for x in side:
        while i < n - 1 and acc + 1e-9 >= lim + cap[i] * sc:
            lim += cap[i] * sc; i += 1
        slots[i].append(x); acc += cnt(x)
    for m, s in zip(M, slots):
        e(m); e(s)

def sets_m0(x):
    if isinstance(x, list): return any(sets_m0(y) for y in x)
    return isinstance(x, str) and " m0," in x
def needs_m0(x):
    if sets_m0(x): return False
    if isinstance(x, list): return any(needs_m0(y) for y in x)
    if isinstance(x, tuple): x = x[0]
    return isinstance(x, str) and x.endswith(" lds")

def merge(a, b):
    out = []; i = j = 0
    while i < len(a) or j < len(b):
        if j >= len(b) or (i < len(a) and (i * len(b) <= j * len(a) or (sets_m0(b[j]) and needs_m0(a[i])))): out.append(a[i]); i += 1
        else: out.append(b[j]); j += 1
    return out

def spread(main, side, lo=0.0, hi=1.0):
    n = len(main); a = int(n * lo); b = max(a + 1, int(n * hi))
    if not side: return list(main)
    return main[:a] + weave(main[a:b], side, start=0, per=len(side) / (b - a)) + main[b:]

def single(G, lo=None, sp=0):
    out = []
    for i, g in enumerate(G):
        for x in g:
            if x != "s_nop 0": out.append(At(x, lo=lo + int(i * sp) if sp else lo))
    return out
def mark(tag):
    f = lambda e: e.tags.__setitem__(tag, 1)
    f.free = True
    return f
def need(tag, n=1):
    f = lambda e: e.seen(tag, n)
    f.free = True
    return f
def wlg(tag): return lambda e: e.wait(lg_tag=tag)
def report(cfg, nm, r, log):
    if cfg.verbose > 2:
        acc = {}
        for g, c, k in log: acc[g // 16] = acc.get(g // 16, 0) + c
        print(nm, "per 16 gaps:", " ".join(str(v) for v in acc.values())); return
    if cfg.verbose: print(f"{nm}: {r[0]} + {r[1]}  ({len(log)} gaps)", " ".join(f"{k or '-'}{'' if c <= 17 else c}" for g, c, k in log) if cfg.verbose > 1 else "")

def phase_a(e, cfg, attn, sfx):
    e.wait(vm_tag="st0", lg=0)
    e("s_barrier")
    stamp(e, cfg, "loop")
    e(frag_reads(0, attn))
    A = []; S = []
    for k in range(16):
        S.append(len(A))
        M = a_mfmas(k, attn)
        if k == 0: M = M + s_mfmas(0, attn)
        if k < 14: M = M + s_mfmas(k + 1, attn)
        if k == 14: M = M[:cfg.s15] + s_mfmas(15, attn) + M[cfg.s15:]
        A += M
    S.append(len(A))
    fx = {}; QS = []
    bar = {}
    for k in range(1, 15, 2):
        bar[k] = S[k] + 1
        fx[bar[k]] = [lambda e, s=k >> 1: e.wait(vm_tag=f"st{s+1}", lg=0), "s_barrier", stp(cfg, f"k{k}")]
    for k in range(15):
        QS.append(Q(frag_reads(k + 1, attn), bar.get(k, S[k]), S[k + 1] - cfg.rend, slack=2, ahead=1, prio=2))
        w = [At(wlg(f"fa{k+1}"), lo=S[k + 1] - 2, dl=S[k + 1] - 1)]
        if k & 1: w.append(At(wlg(f"fb{k+1}"), lo=S[k + 1] + 3, dl=S[k + 1] + 4))
        QS.append(Q(w, S[k], S[k], prio=5))
    dm = []
    for s in range(cfg.pst, 8): dm += single(dma_stage(s, attn), bar[2 * (s - 4) + 1] if s >= 4 else (S[1] + cfg.s3k if cfg.dsp and s == 3 else 0), cfg.dsp)
    if "nodma" in cfg.x: dm = []
    dm += single(dma_pair(0), bar[9]) + single(dma_pair(1)[:cfg.xp1a], bar[11])
    for q in cfg.wa: dm += single(w2_dma(cfg, q), 0 if cfg.w2pg[q] == 0 else bar[13])
    QS.append(Q(dm, 0, 0, per=cfg.dper, slack=3, ahead=1, prio=1))
    def side(items, k0, k1, **kw): QS.append(Q(items, S[k0], S[k1], slack=6, **kw))
    side(leader(), cfg.ldk, cfg.ldk + 1)
    side(stats_make(), cfg.smk, cfg.smk + 3)
    if SNT() and cfg.fg1 == 0: side(fills(attn), cfg.fk0, cfg.fk1)
    if "mall" in cfg.x: side([(f"global_load_dword v{LT}, v{LT+1}, {sr(S_TW,2)}", "touch")], cfg.mall2, cfg.mall2)
    if "c3t" in cfg.x and attn and cfg.c3k >= 0: side([c3t()], cfg.c3k, cfg.c3k)
    if "l2w" in cfg.x: side(l2w_loads(), cfg.l2wk, cfg.l2wk + 1)
    if "pf" in cfg.x:
        if cfg.pfx >= 0: side([At(pf_x(), lo=S[cfg.pfx] + 4)], cfg.pfx, cfg.pfx)
        g0, g1 = S[cfg.pfk0] + 4, S[cfg.pfk1] + 4
        side([At(pf_w(cfg, t), lo=int(g0 + (g1 - g0) * t / max(1, cfg.pfn - 1))) for t in range(cfg.pfw)], cfg.pfk0, cfg.pfk0)
    pa, pb = pub(1, "pub1")
    side([epl(), At(pa[0], lo=S[cfg.flk]),
          At([f"s_lshr_b32 s5, s{S2_RB}, 1", f"v_readlane_b32 s{S_EPO}, v{VEP}, s{S_MT}", f"v_readlane_b32 s{S_EPC}, v{VEP}, s5", "s_nop 0",
              f"s_min_u32 s4, s{S_EPO}, s{S_EPC}", "s_cmp_eq_u32 s4, 0", f"s_cbranch_scc1 L_ep{sfx}", f"L_ep{sfx}ok:"], lo=S[cfg.flk] + 6),
          At(pb[0], lo=S[cfg.flk + 1])], cfg.epk, cfg.epk)
    if "hsa" in cfg.x: side([need("st7", 9 if attn else 8)] + hs_early(), cfg.hsk, cfg.hsk + 2)
    if not attn:
        bb = []
        for seg in range(3):
            for hh in range(2):
                bb.append(f"v_lshlrev_b32 v{F_BB+4*seg+2*hh}, 16, v{F_B1+2*seg+hh}")
                bb.append(f"v_and_b32 v{F_BB+4*seg+2*hh+1}, 0xffff0000, v{F_B1+2*seg+hh}")
        side(bb, 11, 13)
    lb = S[15] + cfg.lb
    QS.append(Q(stats_side(attn), S[14] + cfg.s15 + 5, lb - 2, slack=1, ahead=3, prio=3))
    for it in QS[-1].L: it.dl = min(it.dl, lb - 1)
    fx[lb] = [lambda e: e.wait(vm_tag="xp0", lg=0), "s_barrier", stp(cfg, "lbar")]
    rm = [f"ds_read_b64 {vr(RMJ(j),2)}, v{VSA+4} offset:{128*(4 if j == 8 else j)}" for j in ((8, 0, 1, 2, 3) if attn else range(4))]
    QS.append(Q(rm, lb, lb + 2, slack=1, ahead=3))
    log = []
    report(cfg, "A" + sfx, pack(e, A, QS, fx, log=log, gmin=cfg.ga), log)
    stamp(e, cfg, "lend")

F_BB, F_A, F_G, F_B1 = T0 + 30, T0, T0 + 42, T0 + 44
def ffn_pre():
    L = []; A = L.append
    A("v_lshlrev_b32 v21, 5, v1")
    A(f"v_lshl_add_u32 v21, v{VG}, 3, v21")
    A(f"s_mul_i32 s76, s{S_P}, 384"); A("v_add_u32 v21, s76, v21")
    A(("M", "b1", [f"buffer_load_dwordx2 {vr(F_B1+2*seg,2)}, v21, {sr(SB,4)}, 0 offen offset:{128*seg}" for seg in range(3)]))
    A(f"s_mul_i32 s74, s{S_P}, 12"); A(f"s_add_u32 s74, s74, s{S_W}")
    for seg in range(3):
        A([f"s_mov_b32 s{S_SEG+seg}, {BIG}", f"s_cmp_lt_u32 s74, {88 - 4*seg}", f"s_cmov_b32 s{S_SEG+seg}, {2048*seg}"])
    A(f"v_mov_b32 v{F_G}, 0x{f2u(G1):x}"); A(f"v_mov_b32 v{F_G+1}, 0x{f2u(G0):x}")
    return L

F_CS = T0 + 50
def ffn_ep(cfg, jp, plain=False):
    LL = []
    BB = F_BB
    G = vr(F_G, 2)
    for seg in range(3):
        L = []; E = L.append
        CS = ACC(seg, 4) if jp < 2 else F_CS + 4 * seg
        A = F_A + 8 * seg; Q = ACC(seg, (2 * jp) & 3)
        P = []
        for u in range(2):
            j = 2 * jp + u
            for h in range(2):
                P.append((ACC(seg, j & 3) + 2 * h, RMJ(j), CS + 2 * h, BB + 4 * seg + 2 * h, 2 * u + h))
        for a, rm, cs, bb, i in P:
            E(f"v_pk_fma_f32 {vr(A+2*i,2)}, {vr(rm,2)}, {vr(cs,2)}, {vr(bb,2)} op_sel:[1,0,0] op_sel_hi:[1,1,1]")
        for a, rm, cs, bb, i in P:
            E(f"v_pk_fma_f32 {vr(a,2)}, {vr(rm,2)}, {vr(a,2)}, {vr(A+2*i,2)} op_sel:[0,0,0] op_sel_hi:[0,1,1]")
        for a, rm, cs, bb, i in P:
            E(f"v_pk_mul_f32 {vr(A+2*i,2)}, {vr(a,2)}, {vr(a,2)}")
        for a, rm, cs, bb, i in P:
            E(f"v_pk_fma_f32 {vr(A+2*i,2)}, {vr(A+2*i,2)}, {G}, {G} op_sel:[0,0,1] op_sel_hi:[1,0,1]")
        for a, rm, cs, bb, i in P:
            E(f"v_pk_mul_f32 {vr(A+2*i,2)}, {vr(A+2*i,2)}, {vr(a,2)}")
        for i in range(8): E(f"v_exp_f32 v{A+i}, v{A+i}")
        if plain:
            for i in range(8): E(f"v_add_f32 v{A+i}, 1.0, v{A+i}")
        else:
            for i in range(4): E(f"v_pk_add_f32 {vr(A+2*i,2)}, {vr(A+2*i,2)}, 1.0 op_sel_hi:[1,0]")
        for i in range(8): E(f"v_rcp_f32 v{A+i}, v{A+i}")
        for a, rm, cs, bb, i in P:
            E(f"v_pk_mul_f32 {vr(A+2*i,2)}, {vr(A+2*i,2)}, {vr(a,2)}")
        st = hstore(Q, seg, jp)
        for i in (0, 2): E(f"v_cvt_pk_bf16_f32 v{Q+i}, v{A+2*i}, v{A+2*i+1}")
        L += clamp(Q, jp)
        for i in (1, 3): E(f"v_cvt_pk_bf16_f32 v{Q+i}, v{A+2*i}, v{A+2*i+1}")
        E(f"v_permlane16_swap_b32 v{Q}, v{Q+2}")
        E(f"v_permlane16_swap_b32 v{Q+1}, v{Q+3}")
        E(Delay(1))
        E(st)
        LL.append(L)
    return LL

TT, SEC, R4, CSQ, CSK, CSV, KP, VHH = T0, T0 + 8, T0 + 16, T0 + 32, T0 + 36, T0 + 40, T0 + 42, T0 + 46
CCUR, CPREV, MPREV, CFIRST, VR4 = T0 + 52, T0 + 56, T0 + 60, RM + 10, 3
def attn_pre():
    L = []; A = L.append
    A(f"v_mov_b32 v13, 0x{NEG:x}")
    A("v_mov_b32 v5, 0xffff"); A("v_mov_b32 v18, 0xffff0000")
    A(f"v_lshlrev_b32 v7, 2, v{VG}")
    A(f"v_sub_u32 v7, v{VT}, v7")
    A([f"s_cmp_lt_u32 s{S_MT}, 2", "s_cselect_b64 s[4:5], 0, -1"])
    for r in range(4):
        A(f"v_subrev_u32 v8, {r}, v7")
        A("v_cmp_gt_u32 vcc, 8, v8")
        A("v_cmp_gt_i32 s[74:75], -8, v8")
        A(f"v_cndmask_b32 v{CCUR+r}, v13, 0, vcc")
        A(f"v_cndmask_b32 v{CPREV+r}, v13, 0, s[74:75]")
        A(f"v_cndmask_b32 v{14+r}, 0, v{18 if r & 1 else 5}, s[74:75]")
        A(f"v_cndmask_b32 v{CFIRST+r}, v13, v{CPREV+r}, s[4:5]")
    A(f"v_or_b32 v{MPREV}, v14, v15"); A(f"v_or_b32 v{MPREV+1}, v16, v17")
    A(f"s_mov_b32 s{S_SEG}, 0")
    return L

def rd4(j, b):
    o = 64 * (4 if j == 8 else j)
    return [f"ds_read_b128 {vr(R4+8*b,4)}, v{VSA} offset:{o}", f"ds_read_b128 {vr(R4+8*b+4,4)}, v{VSA} offset:{o+320}"]

def attn_ep(cfg, jp, mid=()):
    L = []; E = L.append
    def ln_qk(a, j, cs, d):
        rm = RMJ(j)
        return [f"v_pk_mul_f32 {vr(TT,2)}, {vr(rm,2)}, {vr(cs,2)} op_sel:[1,0] op_sel_hi:[1,1]",
                f"v_pk_mul_f32 {vr(TT+2,2)}, {vr(rm,2)}, {vr(cs+2,2)} op_sel:[1,0] op_sel_hi:[1,1]",
                f"v_pk_fma_f32 {vr(TT,2)}, {vr(rm,2)}, {vr(a,2)}, {vr(TT,2)} op_sel:[0,0,0] op_sel_hi:[0,1,1]",
                f"v_pk_fma_f32 {vr(TT+2,2)}, {vr(rm,2)}, {vr(a+2,2)}, {vr(TT+2,2)} op_sel:[0,0,0] op_sel_hi:[0,1,1]",
                f"v_cvt_pk_bf16_f32 v{d}, v{TT}, v{TT+1}",
                f"v_cvt_pk_bf16_f32 v{d+1}, v{TT+2}, v{TT+3}"]
    def ln_v(a, b, d):
        r4 = R4 + 8 * b; m4 = r4 + 4; t = TT + 4
        return [f"v_pk_mul_f32 {vr(t,2)}, {vr(m4,2)}, {vr(CSV,2)} op_sel_hi:[1,0]",
                f"v_pk_mul_f32 {vr(t+2,2)}, {vr(m4+2,2)}, {vr(CSV,2)} op_sel_hi:[1,0]",
                f"v_pk_fma_f32 {vr(t,2)}, {vr(r4,2)}, {vr(a,2)}, {vr(t,2)}",
                f"v_pk_fma_f32 {vr(t+2,2)}, {vr(r4+2,2)}, {vr(a+2,2)}, {vr(t+2,2)}",
                f"v_cvt_pk_bf16_f32 v{d}, v{t}, v{t+1}",
                f"v_cvt_pk_bf16_f32 v{d+1}, v{t+2}, v{t+3}"]
    js = (2 * jp, 2 * jp + 1); ps = {j: j & 3 for j in js}
    kprev = KP + 2 * (jp & 1); knext = KP + 2 * ((jp + 1) & 1)
    if jp == 0:
        E(f"v_lshlrev_b32 v{VSA}, 4, v{VG}"); E(f"v_add_u32 v{VSA}, {STAT + 640}, v{VSA}")
        L += rd4(8, 0) + rd4(0, 1)
        E(f"s_mov_b32 s{S_C}, 0x{f2u(C_SM):x}"); E(f"s_mov_b32 s{S_C+1}, 0x{f2u(C_SM):x}")
        for r in range(4):
            E(f"v_mov_b32_dpp v{CSQ+r}, v{ACC(0,4)+r} row_newbcast:0 row_mask:0xf bank_mask:0xf")
            E(f"v_mov_b32_dpp v{CSK+r}, v{ACC(1,4)+r} row_newbcast:0 row_mask:0xf bank_mask:0xf")
        E(f"v_mov_b32 v{CSV}, v{ACC(2,4)}"); E(f"v_mov_b32 v{CSV+1}, v{ACC(2,4)}")
        L += ln_qk(ACC(1, 4), 8, CSK, kprev)
        E(f"v_permlane32_swap_b32 v{CSV}, v{CSV+1}")
        L += interleave(ln_qk(ACC(1, 0), 0, CSK, ACC(1, 0)), ln_v(ACC(2, 4), 0, VHH))
        L += rd4(1, 0)
        L += interleave(ln_qk(ACC(0, 0), 0, CSQ, ACC(0, 0)), ln_v(ACC(2, 0), 1, VHH + 2))
        L += rd4(2, 1)
        L += interleave(ln_qk(ACC(1, 1), 1, CSK, knext), ln_v(ACC(2, 1), 0, VHH + 4))
        L += rd4(3, 0)
        L += ln_qk(ACC(0, 1), 1, CSQ, ACC(0, 1))
    else:
        b0, b1 = (1, 0) if jp == 1 else (0, 1)
        E(f"v_mov_b32 v{VHH}, v{VHH+4}"); E(f"v_mov_b32 v{VHH+1}, v{VHH+5}")
        p0, p1 = ps[js[0]], ps[js[1]]
        L += interleave(ln_qk(ACC(1, p0), js[0], CSK, ACC(1, p0)), ln_v(ACC(2, p0), b0, VHH + 2))
        L += ln_qk(ACC(0, p0), js[0], CSQ, ACC(0, p0))
        L += interleave(ln_qk(ACC(1, p1), js[1], CSK, knext), ln_v(ACC(2, p1), b1, VHH + 4))
        L += ln_qk(ACC(0, p1), js[1], CSQ, ACC(0, p1))
    sec = {j: SEC + 4 * (j & 1) for j in js}
    E(Delay(1))
    for j in js:
        kp = kprev if j == js[0] else ACC(1, ps[js[0]])
        kc = ACC(1, ps[j]) if j == js[0] else knext
        cp = CFIRST if j == 0 else CPREV
        E(f"v_mfma_f32_16x16x16_bf16 {vr(ACC(2,ps[j]),4)}, {vr(kp,2)}, {vr(ACC(0,ps[j]),2)}, {vr(cp,4)}")
        E(f"v_mfma_f32_16x16x16_bf16 {vr(sec[j],4)}, {vr(kc,2)}, {vr(ACC(0,ps[j]),2)}, {vr(CCUR,4)}")
    L += list(mid)
    E(Delay(2))
    X = {j: ACC(2, ps[j]) for j in js}
    Mx = {j: ACC(0, ps[j]) + 2 for j in js}
    P = {j: ACC(1, ps[j]) for j in js}
    for j in js:
        for r in range(4): E(f"v_max_f32 v{X[j]+r}, v{X[j]+r}, v{sec[j]+r}")
    for j in js: E(f"v_max3_f32 v{Mx[j]}, v{X[j]}, v{X[j]+1}, v{X[j]+2}")
    for j in js: E(f"v_max_f32 v{Mx[j]}, v{Mx[j]}, v{X[j]+3}")
    for j in js: E(f"v_mov_b32 v{Mx[j]+1}, v{Mx[j]}")
    for j in js: E(f"v_permlane32_swap_b32 v{Mx[j]}, v{Mx[j]+1}")
    for j in js: E(f"v_max_f32 v{Mx[j]}, v{Mx[j]}, v{Mx[j]+1}")
    for j in js: E(f"v_mov_b32 v{Mx[j]+1}, v{Mx[j]}")
    for j in js: E(f"v_permlane16_swap_b32 v{Mx[j]}, v{Mx[j]+1}")
    for j in js: E(f"v_max_f32 v{Mx[j]}, v{Mx[j]}, v{Mx[j]+1}")
    for j in js: E(f"v_mul_f32 v{Mx[j]}, s{S_C}, v{Mx[j]}")
    for j in js:
        for h in range(2):
            E(f"v_pk_fma_f32 {vr(X[j]+2*h,2)}, {vr(X[j]+2*h,2)}, {sr(S_C,2)}, {vr(Mx[j],2)} op_sel_hi:[1,1,0] neg_lo:[0,0,1] neg_hi:[0,0,1]")
    for j in js:
        for r in range(4): E(f"v_exp_f32 v{X[j]+r}, v{X[j]+r}")
    for j in js:
        E(f"v_cvt_pk_bf16_f32 v{P[j]+2}, v{X[j]}, v{X[j]+1}")
        E(f"v_cvt_pk_bf16_f32 v{P[j]+3}, v{X[j]+2}, v{X[j]+3}")
    for j in js:
        E(f"v_and_b32 v{P[j]}, v{MPREV}, v{P[j]+2}")
        E(f"v_and_b32 v{P[j]+1}, v{MPREV+1}, v{P[j]+3}")
    for j in js:
        E(f"v_xor_b32 v{P[j]+2}, v{P[j]+2}, v{P[j]}")
        E(f"v_xor_b32 v{P[j]+3}, v{P[j]+3}, v{P[j]+1}")
    E(Delay(1))
    for j in js:
        E(f"v_mfma_f32_16x16x32_bf16 {vr(sec[j],4)}, {vr(ONES,4)}, {vr(P[j],4)}, 0")
        E(f"v_mfma_f32_16x16x32_bf16 {vr(X[j],4)}, {vr(VHH+2*(j&1),4)}, {vr(P[j],4)}, 0")
    Q = TT + 4 * (jp & 1)
    st = hstore(Q, 0, jp)
    E(Delay(2))
    for j in js: E(f"v_rcp_f32 v{sec[j]}, v{sec[j]}")
    for j in js:
        for h in range(2):
            E(f"v_pk_mul_f32 {vr(X[j]+2*h,2)}, {vr(X[j]+2*h,2)}, {vr(sec[j],2)} op_sel_hi:[1,0]")
    for u, j in enumerate(js): E(f"v_cvt_pk_bf16_f32 v{Q+2*u}, v{X[j]}, v{X[j]+1}")
    L += clamp(Q, jp)
    for u, j in enumerate(js): E(f"v_cvt_pk_bf16_f32 v{Q+2*u+1}, v{X[j]+2}, v{X[j]+3}")
    E(f"v_permlane16_swap_b32 v{Q}, v{Q+2}")
    E(f"v_permlane16_swap_b32 v{Q+1}, v{Q+3}")
    E(Delay(1))
    E(st)
    return [L]

def interleave(a, b):
    out = []
    for x, y in zip(a, b): out += [x, y]
    return out

def hload(s, q, va=None):
    reg = (SETX if s % 2 == 0 else SETY)[q]
    so, off = ("0", 0) if q == 0 else (f"s{S2_HS[q]}", 1024)
    if f"noh{s}" in XOPT: return ("s_nop 1", f"h{s}")
    ld = (f"buffer_load_dwordx4 {xr(reg,4)}, v{va or V2H}, {sr(SF,4)}, {so} offen offset:{off} sc1", f"h{s}")
    return [need(f"chk{min(SN()) + 1}" if s in SN() else f"chk{s + 2}"), ld] if va is None else ld
def hnext(): return (f"v_add_u32 v{V2H}, {2 * TILEB}, v{V2H}", "hn")
SLOW = []
VM_ = VFL
def smax(s, q, first):
    r = (SETX if s % 2 == 0 else SETY)[q]; L = []
    a, b = r, r + 2
    if r >= 256:
        L = [f"v_accvgpr_read_b32 v1, a{r-256}", f"v_accvgpr_read_b32 v3, a{r-254}"]; a, b = 1, 3
    return L + [f"v_max_u32 v{VM_}, v{a}, v{b}" if first else f"v_max3_u32 v{VM_}, v{a}, v{b}, v{VM_}"]
def sck(s, qs, lab):
    L = []
    for q in qs: L += smax(s, q, q == qs[0])
    def rec(e):
        e.seen(f"h{s}", qs[-1] + 1)
        SLOW.append((lab, s, qs, e.tags[f"h{s}"], e.tags.get("hn", 0)))
    rec.free = True
    L.append([rec, f"v_cmp_eq_u32 vcc, -1, v{VM_}", "s_nop 0" if "nochk" in XOPT else f"s_cbranch_vccnz L_{lab}", f"L_{lab}ok:"])
    return L

def hs_early():
    L = [f"s_lshr_b32 s{S2_HS[1]}, s{S_ROT}, 5"]
    for q in range(2, 15): L.append([f"s_add_u32 s{S2_HS[q]}, s{S2_HS[q-1]}, 1024", f"s_cmp_eq_u32 s{S2_HS[q]}, {14 * 1024}", f"s_cmov_b32 s{S2_HS[q]}, 0"])
    return L + [mark("hss")]
def hs_setup():
    if "hsa" in XOPT: return hs_setup0()[-1:]
    return hs_setup0()
def hs_setup0():
    L = [f"s_lshr_b32 s{S_MASK}, s{S_ROT}, 5"]
    for q in range(1, 15):
        d = S2_HS[q]; t = S2_HS[q + 1] if q < 14 else S_MASK
        L += [f"s_add_u32 s{d}, s{S_MASK}, {(q - 1) * 1024}", f"s_sub_u32 s{t}, s{d}, {14 * 1024}", f"s_min_u32 s{d}, s{d}, s{t}"]
    L.append(["s_mov_b32 s4, 0x078000ff", "s_mov_b32 s5, 0xf0001c00", f"s_lshl_b32 s{S_MASK}, s{S_W}, 4",
              f"s_lshr_b64 s[4:5], s[4:5], s{S_MASK}", f"s_and_b32 s{S_MASK}, s4, 0xffff"])
    return L

def nodelay(L): return [x for x in L if not isinstance(x, Delay)]
def wseq(cfg, spec, lo=None):
    out = []
    for t in spec.split():
        t, _, at = t.partition("@")
        q = int(t[1:])
        l = lo and lo(t)
        if at: l = max(l or 0, int(at))
        out += single(w2_dma(cfg, q), l) if t[0] == "D" else [At(x, lo=l) for x in w2_read(cfg, q)]
    return out
def unat(L): return [x.item if isinstance(x, At) else x for x in L]

def equeues(cfg, LL, lo, hi, **kw):
    kw["hard"] = True
    if len(LL) == 1: return [Q(LL[0], lo, hi, **kw)]
    n = hi - lo; w = n * cfg.ew; st = (n - w) / 2
    return [Q(L, lo + int(st * i), lo + st * i + w, **kw) for i, L in enumerate(LL)]

def middle(e, cfg, attn, sfx):
    def ld4(j, b):
        return [(f"buffer_load_dwordx4 {vr(R4+8*b+4*i,4)}, v{VSA+2}, {sr(SF,4)}, s{S_STC} offen offset:{512+256*i+64*(j-4)} sc1", "stl") for i in range(2)]
    def ep(jp, plain=False):
        if not attn: return ffn_ep(cfg, jp, plain)
        mid = ld4(2 * jp + 2, 0) + ld4(2 * jp + 3, 1) if jp in (1, 2) else []
        if jp == 1: mid = [mark("lnv1")]
        return attn_ep(cfg, jp, mid)
    pre = []
    for k in range(3): pre += p_reads(0, k)
    m = []
    for L in ep(0): m += nodelay(L)
    w = wseq(cfg, cfg.we01)
    G = []
    for x in unat(w):
        if G and (sets_m0(G[-1][-1]) or kind(flat([x])[0])[0] == "s" and kind(flat(G[-1])[-1])[0] == "s"): G[-1].append(x)
        else: G.append([x])
    G = [[unat(single([g]))] for g in dma_pair(1)[cfg.xp1a:]] + G
    e(spread(m, ([poll(True)] if cfg.c1p < 0 else []) + G + pre, 0.05, 0.95))
    stamp(e, cfg, "e01")
    A = []
    for h in range(2):
        for k in range(16): A += p_mfmas(h, k, attn)
    QS = []; fx = {}
    rd = []
    for kk in range(3, 32):
        g = 6 * (kk - 3)
        rd += [At(x, lo=g, tg=g + 3 * u, dl=min(g + 8, 75) if kk < 16 else g + 8) for u, x in enumerate(p_reads(kk >> 4, kk & 15))]
    QS.append(Q(rd, 0, 0, ahead=2, prio=0))
    QS.append(Q([At(wlg(f"p{kk>>4}_{kk&15}"), lo=6 * kk - 3, tg=6 * kk - 3, dl=6 * kk - 1) for kk in range(1, 32)], 0, 0, prio=5))
    fx[77] = [lambda e: e.wait(vm_tag="xp1", lg_tag="p0_15"), "s_barrier"]
    fx[95] = [stp(cfg, "m45")]
    for nm in cfg.stamps or []:
        if nm[0] == "g" and nm[1:].isdigit(): fx.setdefault(int(nm[1:]), []).append(stp(cfg, nm))
    QS += equeues(cfg, ep(1, True), cfg.e0, 96 - cfg.e1, slack=cfg.eslack)
    QS += equeues(cfg, ep(2, True), 96 + cfg.e0, 192 - cfg.e1, slack=cfg.eslack)
    stl = chk(1, True, f"st{sfx}") + [f"v_lshlrev_b32 v{VSA+1}, 1, v{VL4}"]
    if attn: stl += [f"v_lshlrev_b32 v{VSA+2}, 4, v{VG}"]
    for j in range(4, 8):
        stl.append((f"buffer_load_dwordx2 {vr(RMJ(j),2)}, v{VSA+1}, {sr(SF,4)}, s{S_STC} offen offset:{128*(j-4)} sc1", "stl"))
    if attn: stl += [[need("lnv1")] + ld4(4, 0)[:1]] + ld4(4, 0)[1:] + ld4(5, 1)
    stl[0] = At(stl[0], lo=cfg.c1k, dl=cfg.c1k + 1)
    if attn: stl[2] = At(stl[2], dl=cfg.c1k + 2)
    if cfg.c1p >= 0: QS.append(Q([poll(True)], cfg.c1p, cfg.c1p, slack=1, prio=1))
    QS.append(Q(stl, cfg.c1k, cfg.c1k + 12, slack=2, prio=1, hard=True))
    def wlo(t):
        q = int(t[1:])
        if t[0] == "R" and 5 <= q <= 12: return wfree(W2R[q] + 16)
        if t[0] == "D" and cfg.w2pg[q] in (5, 6): return 78
        return None
    QS.append(Q(wseq(cfg, cfg.wm, wlo), cfg.w0, cfg.w0, slack=cfg.wslack, cad=cfg.wcad))
    pa, pb = pub(2, "hs0"); QS.append(Q([At(pa[0], lo=cfg.pk2), At(pb[0], lo=cfg.pk2 + 4)], 0, 0, slack=1))
    pa, pb = pub(3, "hs1")
    if 1 not in SN(): QS.append(Q([At(pa[0], lo=96 + cfg.pk3), At(pb[0], lo=96 + cfg.pk3 + 4)], 0, 0, slack=1))
    if SNT() and cfg.fg1: QS.append(Q(fills(attn, ST(0)), cfg.fg0, cfg.fg1, slack=4))
    QS.append(Q(hs_setup(), 4, 90, slack=20, ahead=10))
    if not attn: QS.append(Q([f"v_mov_b32 v{F_CS+4*seg+r}, v{ACC(seg,4)+r}" for seg in range(3) for r in range(4)], 4, 80, slack=10, ahead=20))
    xrl = [f"v_lshlrev_b32 v{VSA+3}, 3, v{VG}", f"v_lshl_add_u32 v{VSA+4}, v{VT}, 11, v{VSA+3}"]
    for s in range(4):
        xrl.append([f"s_add_u32 s4, s{S_XR}, {65536 * s}", (f"buffer_load_dwordx2 {vr(RESX+2*s,2)}, v{VSA+4}, {sr(SX,4)}, s4 offen", "xr")])
    xrl.append((f"buffer_load_dwordx2 {vr(RESB,2)}, v{VSA+3}, {sr(SB2,4)}, s{S_B2O} offen", "xr"))
    if cfg.xt >= 0:
        QS.append(Q([f"v_lshlrev_b32 v{VSA+3}, 16, v{VG}", f"v_lshl_add_u32 v{VSA+3}, v{VT}, 11, v{VSA+3}",
                     (f"buffer_load_dword v{VSA+4}, v{VSA+3}, {sr(SX,4)}, s{S_XR} offen", "xt")], cfg.xt, cfg.xt + 4, slack=4))
    QS.append(Q(xrl, cfg.xk0, cfg.xk1, slack=6))
    h0 = [At(poll(False), lo=cfg.hk - cfg.pld, tg=cfg.hk - cfg.pld), At(chk(2, False, f"c2{sfx}")[0], lo=cfg.hk)]
    h0 += [At(hload(0, q), lo=wfree(SETX[q] + 4)) for q in range(15)] + [hnext()]
    if 1 in SN(): h0 += [At(hload(1, q), lo=cfg.h1k) for q in range(min(cfg.n1, 8))]
    elif SNT() and not cfg.n1: QS.append(Q([poll(False)], cfg.pl3, cfg.pl3, slack=1, prio=1))
    elif cfg.n1:
        h0 += [At(poll(False), lo=cfg.h1k - cfg.pld, tg=cfg.h1k - cfg.pld), At(chk(3, False, f"c3{sfx}")[0], lo=cfg.h1k)]
        h0 += [hload(1, q) for q in range(min(cfg.n1, 8))]
        h0.sort(key=lambda x: 0)
    QS.append(Q(h0, cfg.hk, cfg.hk, slack=4, cad=cfg.hcad))
    log = []
    report(cfg, "M" + sfx, pack(e, A, QS, fx, log=log, gmin=cfg.gm, gover=cfg.gov), log)
    stamp(e, cfg, "m67")
    return ep(3, True)

def phase_d(e, cfg, sfx, E67):
    def resinit(s):
        a = ACC2(s, 0)
        L = [f"v_lshlrev_b32 v{a}, 16, v{RESX+2*s}", f"v_and_b32 v{a+1}, 0xffff0000, v{RESX+2*s}",
             f"v_lshlrev_b32 v{a+2}, 16, v{RESX+2*s+1}", f"v_and_b32 v{a+3}, 0xffff0000, v{RESX+2*s+1}"]
        return L + [f"v_add_f32 v{a+r}, v{a+r}, v{B2F+r}" for r in range(4)]
    def mf(s, late=0):
        o = [(q, i) for q in range(late) for i in (1, 2, 3)] + [(q, 0) for q in range(late)] + [(q, i) for q in range(late, 15) for i in range(4)]
        M = []
        for q, i in o:
            reg = (SETX if s % 2 == 0 else SETY)[q]
            c = vr(ACC2(s, i), 4) if (q > 0 or i == 0) else "0"
            M.append(f"v_mfma_f32_16x16x32_bf16 {vr(ACC2(s,i),4)}, {xr(W2R[q]+4*i,4)}, {xr(reg,4)}, {c}")
        return M
    def wr(s): return [f"ds_write_b128 v{VRW}, {vr(ACC2(s,i),4)} offset:{PG[REDP[s]] - 65536 + (i-1)*1024}" for i in (1, 2, 3)]
    def rd(s): return [f"ds_read_b128 {vr(ACC2(s,i),4)}, v{VRR+i-1} offset:{PG[REDP[s]] - 65536}" for i in (1, 2, 3)]
    def fin(s):
        a = ACC2(s, 0); L = []
        for h in range(2): L.append(f"v_pk_add_f32 {vr(ACC2(s,1)+2*h,2)}, {vr(ACC2(s,1)+2*h,2)}, {vr(ACC2(s,2)+2*h,2)}")
        for h in range(2): L.append(f"v_pk_add_f32 {vr(a+2*h,2)}, {vr(a+2*h,2)}, {vr(ACC2(s,3)+2*h,2)}")
        for h in range(2): L.append(f"v_pk_add_f32 {vr(a+2*h,2)}, {vr(a+2*h,2)}, {vr(ACC2(s,1)+2*h,2)}")
        L += [f"v_cvt_pk_bf16_f32 v{a}, v{a}, v{a+1}", f"v_cvt_pk_bf16_f32 v{a+1}, v{a+2}, v{a+3}",
              [f"s_mov_b32 s4, {65536 * s}", f"buffer_store_dwordx2 {vr(a,2)}, v{VOUT}, {sr(SO,4)}, s4 offen {cfg.omod}"]]
        return L
    nq = cfg.nq
    M0 = mf(0, 4)
    b2 = [f"v_lshlrev_b32 v{B2F}, 16, v{RESB}", f"v_and_b32 v{B2F+1}, 0xffff0000, v{RESB}",
          f"v_lshlrev_b32 v{B2F+2}, 16, v{RESB+1}", f"v_and_b32 v{B2F+3}, 0xffff0000, v{RESB+1}"] + resinit(0)
    QS = equeues(cfg, E67, 0, 4 * nq - 1, slack=2, prio=1)
    QS.append(Q([At(x, dl=10) for x in b2], 0, 9, slack=2, ahead=4))
    n1 = min(cfg.n1, 8)
    ad = cfg.ad if sfx == "a" else 0
    if SNT():
        h1 = [] if (n1 or 1 in SN()) else [chk(3, False, f"c3{sfx}")[0]]
        QS.append(Q(h1 + [hload(1, q) for q in range(n1, 11)], cfg.h1d, cfg.h1d, slack=2, cad=cfg.hc1))
        if 2 not in SN():
            pa, pb = pub(4, "hs2"); QS.append(Q([At(pa[0], lo=cfg.pk4), At(pb[0], lo=cfg.pk4 + 3)], 0, 0, slack=1))
    else:
        h1 = [] if n1 else [At(poll(False), lo=cfg.pl3, tg=cfg.pl3), At(chk(3, False, f"c3{sfx}")[0], lo=cfg.h1d)]
        QS.append(Q(h1 + [hload(1, q) for q in range(n1, 11)], 0 if n1 else cfg.h1d, 0, slack=2, cad=1.5))
        pa, pb = pub(4, "hs2"); QS.append(Q([At(pa[0], lo=cfg.pk4), At(pb[0], lo=cfg.pk4 + 3)], 0, 0, slack=1))
    log = []
    report(cfg, "D0a" + sfx, pack(e, M0[:4 * nq], QS, log=log, gmin=cfg.gm, gover=2), log)
    stamp(e, cfg, "eend")
    rr = []
    for q in range(nq, 15): rr += [At(x, tg=4 * (q - nq - 1) + i / 2 - cfg.rlead, dl=4 * (q - nq - 1) + i / 2 - cfg.rlead) for i, x in enumerate(w2_read(cfg, q))]
    e(unat(rr[:8])); rr = rr[8:]
    n = 60 - 4 * nq
    fx = {n - 1: [stp(cfg, "d0")], n + 59: [stp(cfg, "d1")]}
    frx = lambda q: max(0, 4 * (q - nq) + 4)
    fry = lambda q: n + (13 + q if q < 4 else 4 * q + 4)
    if SNT():
        def fin2(s):
            a = ACC2(s, 0); L = []
            for r in range(4): L.append(f"v_add_f32 v{ACC2(s,1)+r}, v{ACC2(s,1)+r}, v{ACC2(s,2)+r}")
            for r in range(4): L.append(f"v_add_f32 v{a+r}, v{a+r}, v{ACC2(s,3)+r}")
            for r in range(4): L.append(f"v_add_f32 v{a+r}, v{a+r}, v{ACC2(s,1)+r}")
            return L + fin(s)[6:]
        H = [hload(1, q) for q in range(11, 15)] + [hnext()]
        if 2 not in SN(): H += [At(poll(False), lo=cfg.pl4, tg=cfg.pl4), At(chk(4, False, f"c4{sfx}")[0], lo=cfg.h2k + ad)]
        H += [At(hload(2, q), lo=max(frx(q), int(cfg.h2k + ad + q * cfg.hc2))) for q in range(15)] + [hnext()]
        H += [At(hload(3, q), lo=max(fry(q), int(cfg.h3k + ad + q * cfg.hc3))) for q in range(15)]
        QS = [Q(rr, 0, n - 8, slack=1, prio=2, ahead=3), Q(H, 0, 0, slack=1, ahead=1, cad=cfg.hcm, prio=1)]
        oa = [f"v_lshlrev_b32 v{VOUT}, 3, v{VG}", f"v_lshl_add_u32 v{VOUT}, v{VT}, 11, v{VOUT}",
              f"v_lshlrev_b32 v{VRR+2}, 4, v2", f"v_add_u32 v{VRR+2}, 65536, v{VRR+2}", f"v_add_u32 v{VRW}, s{S2_MW}, v{VRR+2}"]
        for i in (1, 2, 3):
            oa += [[f"s_sub_u32 s4, s{S_W}, {i}", "s_and_b32 s4, s4, 3", "s_lshl_b32 s4, s4, 12", f"s_add_u32 s4, s4, {(i-1)*1024}",
                    f"v_add_u32 v{VRR+i-1}, s4, v{VRR+2}"]]
        CK = []
        GR = [[int(c, 16) for c in g] for g in cfg.grp.split(",")]
        for st in SN():
            for gi, qs in enumerate(GR):
                g0 = n + 60 * (st - 1) + 4 * qs[0]
                it = sck(st, qs, f"h{st}g{gi}{sfx}")
                k = len(it)
                CK += [At(x, lo=g0 - cfg.ckl - (k - 1 - i) // 2, tg=g0 - cfg.ckl - (k - 1 - i) // 2, dl=g0 - 1) for i, x in enumerate(it)]
        b3 = n + 120 + cfg.b3
        fx[b3] = [lambda e: (e.seen("wr2", 3), e.wait(lg_tag="wr2")), "s_barrier", stp(cfg, "d2")]
        tail = []
        for st in range(3): tail += rd(st)
        for st in range(3): tail += fin2(st)
        QS += [Q([At(x, dl=n + 9) for x in resinit(1)], n - 8, n + 8, ahead=4, prio=1), Q(CK, 0, 0, prio=4, ahead=0.5),
               Q(oa + wr(0) + resinit(2) + resinit(3), n + 10, n + 55, slack=4), Q(wr(1), n + 76, n + 84),
               Q([At((x, "wr2"), dl=b3 - 1) for x in wr(2)], n + 122, b3 - 1, prio=3), Q(tail, b3, n + 176, slack=3, ahead=3)]
        log = []
        report(cfg, "D" + sfx, pack(e, M0[4 * nq:] + mf(1, 4) + mf(2) + mf(3), QS, fx, log=log, gmin=cfg.gd), log)
        stamp(e, cfg, "mm")
        e(wr(3)); e.wait(lg=0); e("s_barrier")
        e(rd(3)); e(fin(3))
        stamp(e, cfg, "end")
        write_stamps(e, cfg, len(cfg.stamps or []), 0x1000000)
        e("s_endpgm")
        return
    H = [hload(1, q) for q in range(11, 15)] + [hnext(), At(poll(False), lo=cfg.pl4, tg=cfg.pl4), At(chk(4, False, f"c4{sfx}")[0], lo=cfg.h2k)]
    H += [At(hload(2, q), lo=frx(q)) for q in range(15)] + [hnext(), At(poll(False), lo=cfg.pl5, tg=cfg.pl5)]
    H += [At(chk(5, False, f"c5{sfx}")[0] + [stp(cfg, "spin")], lo=cfg.h3k)] + [At(hload(3, q), lo=fry(q)) for q in range(15)]
    QS = [Q(rr, 0, n - 8, slack=1, prio=2, ahead=3), Q(H, 0, 0, slack=1, ahead=1, cad=1.0, prio=1)]
    oa = [f"v_lshlrev_b32 v{VOUT}, 3, v{VG}", f"v_lshl_add_u32 v{VOUT}, v{VT}, 11, v{VOUT}",
          f"v_lshlrev_b32 v{VRR+2}, 4, v2", f"v_add_u32 v{VRR+2}, 65536, v{VRR+2}", f"v_add_u32 v{VRW}, s{S2_MW}, v{VRR+2}"]
    for i in (1, 2, 3):
        oa += [[f"s_sub_u32 s4, s{S_W}, {i}", "s_and_b32 s4, s4, 3", "s_lshl_b32 s4, s4, 12", f"s_add_u32 s4, s4, {(i-1)*1024}",
                f"v_add_u32 v{VRR+i-1}, s4, v{VRR+2}"]]
    pa, pb = pub(5, "hs3")
    QS += [Q([At(x, dl=n + 9) for x in resinit(1)], n - 8, n + 8, ahead=4, prio=1),
           Q([At(pa[0], lo=cfg.pk5), At(pb[0], lo=cfg.pk5 + 3)], 0, 0, slack=0),
           Q(oa + wr(0) + resinit(2) + resinit(3), n + 10, n + 55, slack=4), Q(wr(1), n + 76, n + 84)]
    log = []
    report(cfg, "D012" + sfx, pack(e, M0[4 * nq:] + mf(1, 4) + mf(2), QS, fx, log=log), log)
    e(wr(2)); e.wait(lg=0); e("s_barrier")
    stamp(e, cfg, "d2")
    for s in range(3): e(rd(s))
    for s in range(3): e(fin(s))
    stamp(e, cfg, "r2")
    e(mf(3))
    stamp(e, cfg, "mm")
    e(wr(3)); e.wait(lg=0); e("s_barrier")
    e(rd(3)); e(fin(3))
    stamp(e, cfg, "end")
    if cfg.stamps and "drain" in cfg.stamps:
        e.wait(vm=0); stamp(e, cfg, "drain")
    write_stamps(e, cfg, len(cfg.stamps or []), 0x1000000)
    e("s_endpgm")

def slow_paths(e, cfg, sfx):
    def clean(): e.vm = []; e.lg = []; e._raw(Ins("; ---")); e.out[-1].kind = "flush"; e.out[-1].text = ""
    dec = [f"s_sub_u32 s{S_CNT}, s{S_CNT}, 1", f"s_cselect_b32 s{S_CNT}, 0, s{S_CNT}"]
    clean()
    e(f"L_ep{sfx}:")
    e(dec); e(f"s_cbranch_scc1 L_ep{sfx}ok")
    e([epl()]); e("s_waitcnt vmcnt(0)"); e.vm = []
    e(f"v_readlane_b32 s{S_EPO}, v{VEP}, s{S_MT}"); e(f"v_readlane_b32 s{S_EPC}, v{VEP}, s5"); e("s_nop 1")
    e(f"s_min_u32 s4, s{S_EPO}, s{S_EPC}"); e("s_cmp_eq_u32 s4, 0")
    e(f"s_cbranch_scc1 L_ep{sfx}"); e(f"s_branch L_ep{sfx}ok")
    for lab, st, qs, nis, hn in SLOW:
        clean()
        e(f"L_{lab}:")
        e(dec); e(f"s_cbranch_scc1 L_{lab}ok")
        e(f"v_subrev_u32 v{VEP}, {(hn - st) * 2 * TILEB}, v{V2H}")
        e("s_waitcnt vmcnt(0)")
        for q in range(qs[0], nis):
            e(smax(st, q, True)); e(f"v_cmp_eq_u32 vcc, -1, v{VM_}"); e(f"s_cbranch_vccz L_{lab}s{q}")
            e([hload(st, q, VEP)]); e.vm = []
            e(f"L_{lab}s{q}:")
        e("s_waitcnt vmcnt(0)")
        for q in qs: e(smax(st, q, q == qs[0]))
        e(f"v_cmp_eq_u32 vcc, -1, v{VM_}"); e(f"s_cbranch_vccnz L_{lab}"); e(f"s_branch L_{lab}ok")
    SLOW.clear()
    for lab, c, own in (("st", 1, True), ("c2", 2, False), ("c3", 3, False), ("c4", 4, False), ("c5", 5, False))[:5 - len(SN())]:
        clean()
        lab += sfx
        e(f"L_{lab}:")
        e(dec); e(f"s_cbranch_scc1 L_{lab}ok")
        e([poll(own)]); e("s_waitcnt vmcnt(0)"); e.vm = []
        e(chk(c, own, lab)[0][:-1]); e(f"s_branch L_{lab}ok")

def kernel(cfg):
    e = Emitter()
    lat = {}
    for nm in cfg.stamps or []:
        if nm.startswith("la:"): t, n = nm[3:].split("/"); lat[(t, int(n))] = nm
    def hook(e, tag, n):
        if (tag, n) in lat:
            nm = lat[(tag, n)]
            stamp(e, cfg, nm); e.wait(vm_tag=tag); stamp(e, cfg, "lb" + nm[2:])
    e.hook = hook
    common(e, cfg)
    st = e.save()
    for attn in ((False, True) if "ff1" in cfg.x else (True, False)):
        sfx = "a" if attn else "f"
        if attn == ("ff1" in cfg.x):
            e("L_ffn:"); e.restore(st)
        e.nfill = len(SN()) * (1 if attn else 3)
        prologue(e, cfg, attn)
        phase_a(e, cfg, attn, sfx)
        rest = middle(e, cfg, attn, sfx)
        phase_d(e, cfg, sfx, rest)
        slow_paths(e, cfg, sfx)
    e("L_end:")
    e("s_endpgm")
    return e

def desc(name, vg, acc):
    return f""".section .rodata,"a"
.p2align 6
.amdhsa_kernel {name}
  .amdhsa_next_free_vgpr {vg}
  .amdhsa_next_free_sgpr 102
  .amdhsa_accum_offset {acc}
  .amdhsa_group_segment_fixed_size 0
  .amdhsa_kernarg_size 88
  .amdhsa_user_sgpr_count 2
  .amdhsa_user_sgpr_kernarg_segment_ptr 1
  .amdhsa_system_sgpr_workgroup_id_x 1
.end_amdhsa_kernel
"""
def head(name): return f".globl {name}\n.p2align 8\n.type {name},@function\n{name}:\n"

def main():
    ap = argparse.ArgumentParser()
    ap.add_argument("out"); ap.add_argument("--stamps", default="")
    I = dict(s3k=0, hcl=7, c3k=2, c3j=0, idx=0, hsk=10, xp1a=8, ntlb=5, xt=-1, xk0=100, xk1=125, ga=0, gm=0, gd=0, gov=8, fg0=0, fg1=0, ad=0, fk0=2, fk1=8, ckl=2, b3=10, krn=-1, l2x=1, cbx=0, mtx=0, pfn=8, pfw=8, pfx=0, pfk0=1, pfk1=10, swave=0, mall2=13, mallat=4, sxat=12, mallkb=2, pst=2, ldk=5, smk=6, epk=10, flk=12, pk2=50, pk3=36, hk=120, pk4=22, pk5=32, pl3=0, h1d=20, pl4=16, h2k=34, pl5=60, h3k=86,
             s15=8, lb=11, rend=3, e0=0, e1=4, eslack=6, w0=4, nq=8, rlead=2, verbose=0, l2at=9, l2wk=3, p0=10, p1=10, p2=16, c1p=6, c1k=36, wslack=6, pld=30, n1=8, h1k=176)
    for k, v in I.items(): ap.add_argument("--" + k, type=int, default=v)
    F = dict(dsp=0.0, hc1=3.0, hc2=4.0, hc3=4.0, hcm=2.0, wcad=1.0, hcad=2.0, pper=3.0, dper=3.0, ew=0.6)
    for k, v in F.items(): ap.add_argument("--" + k, type=float, default=v)
    ap.add_argument("--w2pg", default="1,2,0,3,4,1,2,0,3,4,5,6,1,2,0")
    ap.add_argument("--wa", default="2,0,1"); ap.add_argument("--we01", default="D3 D4 R2 D7")
    ap.add_argument("--wm", default="R0 D5 R1 D6 R3@30 D8 R4 D9 D10 D11 R5 D12 R6 D13 R7 D14")
    ap.add_argument("--grp", default="0123,4567,89ab,cde"); ap.add_argument("-x", default=""); ap.add_argument("--omod", default="")
    a = ap.parse_args()
    cfg = Cfg(); cfg.x = a.x.split(","); cfg.stamps = [x for x in a.stamps.split(',') if x]
    for k in list(I) + list(F) + ["omod", "we01", "wm", "grp"]: setattr(cfg, k, getattr(a, k))
    cfg.at = {"mall": a.mallat, "sx": a.sxat, "l2t": a.l2at}
    cfg.wa = [int(x) for x in a.wa.split(",") if x]
    cfg.w2pg = [int(x) for x in a.w2pg.split(",")]
    if "hsa" in cfg.x: S2_HS[:] = HSA
    XOPT.extend(cfg.x); Emitter.notes = "notes" in cfg.x
    k = kernel(cfg)
    s = "; hand-scheduled CDNA4 assembly (emitted by a macro script)\n"
    s += f"; stamps: {a.stamps} x: {a.x}\n" if a.stamps else ""
    s += f"; @launch grid=(256,1,1) block=(256,1,1) lds=163840\n"
    s += '.amdgcn_target "amdgcn-amd-amdhsa--gfx950"\n.text\n'
    s += head(NAME + "_kernel") + k.text()
    s += desc(NAME + "_kernel", 512, 256)
    open(a.out, "w").write(s)
    print("nops:", k.nops, "instrs:", len(k.out))
main()
```
